```python
import torch

def _softmax(x, axis=-1):
    return torch.softmax(x, dim=axis)
def _gelu(x):
    return torch.nn.functional.gelu(x, approximate="tanh")
def _silu(x):
    return torch.nn.functional.silu(x)
def _sigmoid(x):
    return torch.sigmoid(x)
def _layernorm(x, axis=-1, eps=1e-5):
    m = x.mean(dim=axis, keepdim=True)
    v = x.var(dim=axis, keepdim=True, unbiased=False)
    return (x - m) / torch.sqrt(v + eps)
def _scatter_add(tgt, idx, src, axis=0):
    return tgt.clone().index_add_(axis, idx, src)
def _segment_sum(src, seg, n):
    out = torch.zeros((n,) + src.shape[1:], dtype=src.dtype)
    return out.index_add_(0, seg, src)
def _pad(x, pw):
    flat = tuple(v for pair in reversed(pw) for v in pair)
    return torch.nn.functional.pad(x, flat)

kernel_name = 'standalone__dense_activation_squared_relu__prompt'

def setup_inputs():

    _w = (lambda a: (lambda t: t.to(torch.bfloat16) if t.is_floating_point() else t)(torch.as_tensor(a)))
    B, S, D, F = 1, 2048, 576, 4608
    return {
        "x": _w((lambda *s: torch.randn(*s, dtype=torch.bfloat16) * 0.05)(B, S, D)),
        "w1": _w((lambda *s: torch.randn(*s, dtype=torch.bfloat16) * 0.05)(D, F)),
        "b1": _w((lambda *s: torch.randn(*s, dtype=torch.bfloat16) * 0.05)(F)),
        "w2": _w((lambda *s: torch.randn(*s, dtype=torch.bfloat16) * 0.05)(F, D)),
        "b2": _w((lambda *s: torch.randn(*s, dtype=torch.bfloat16) * 0.05)(D)),
    }

def reference(x, w1, b1, w2, b2):
    h = torch.einsum("bsd,df->bsf", x, w1) + b1
    zero = torch.zeros_like(h)
    r = torch.where(h > zero, h, zero)
    h = r * r
    out = torch.einsum("bsf,fd->bsd", h, w2) + b2
    return out
```

```python
import heapq

class Item:
    __slots__ = ("text", "kind", "tag", "early", "late", "stream", "seq")
    def __init__(self, text, kind, tag=None, early=0, late=None, stream=None):
        self.text, self.kind, self.tag, self.early, self.late, self.stream = text, kind, tag, early, late, stream
        self.seq = 0

class Emitter:
    def __init__(self):
        self.lines = []
        self.vm = []
        self.vm_done = 0
        self.lg = []
        self.lg_done = 0
        self.streams = {}
        self.gap = 0
        self.seq = 0
        self.stats = {"mfma": 0, "fill": 0, "over": 0}

    def raw(self, s):
        for line in s.strip("\n").split("\n"):
            t = line.strip()
            if not t: continue
            self.lines.append(t if t.endswith(":") else "    " + t)
    def comment(self, s): self.lines.append("    ; " + s)
    def vmem(self, s, tag=None):
        self.lines.append("    " + s); self.vm.append(tag)
    def ds(self, s, tag=None):
        self.lines.append("    " + s); self.lg.append(tag)

    def _need(self, ops, tags):
        last = -1
        for i in range(len(ops) - 1, -1, -1):
            if ops[i] in tags:
                last = i; break
        return last
    def vm_wait_text(self, tags):
        if not isinstance(tags, list): tags = [tags]
        last = self._need(self.vm, set(tags))
        assert last >= 0, f"vm wait on tags never issued: {tags}"
        if last < self.vm_done: return None
        n = len(self.vm) - 1 - last
        n = min(n, 63)
        self.vm_done = len(self.vm) - n
        return f"s_waitcnt vmcnt({n})"
    def lg_wait_text(self, tags):
        if not isinstance(tags, list): tags = [tags]
        last = self._need(self.lg, set(tags))
        assert last >= 0, f"lgkm wait on tags never issued: {tags}"
        if last < self.lg_done: return None
        n = len(self.lg) - 1 - last
        n = min(n, 15)
        self.lg_done = len(self.lg) - n
        return f"s_waitcnt lgkmcnt({n})"
    def wait_vm(self, tags):
        t = self.vm_wait_text(tags)
        if t: self.lines.append("    " + t)
    def wait_lg(self, tags):
        t = self.lg_wait_text(tags)
        if t: self.lines.append("    " + t)
    def wait_all(self):
        self.lines.append("    s_waitcnt vmcnt(0) lgkmcnt(0)")
        self.vm_done = len(self.vm); self.lg_done = len(self.lg)
    def wait_vm_all(self):
        self.lines.append("    s_waitcnt vmcnt(0)")
        self.vm_done = len(self.vm)
    def wait_lg_all(self):
        self.lines.append("    s_waitcnt lgkmcnt(0)")
        self.lg_done = len(self.lg)

    def push(self, stream, text, kind, tag=None, early=0, late=None):
        it = Item(text, kind, tag, early, late, stream)
        self.seq += 1; it.seq = self.seq
        self.streams.setdefault(stream, []).append(it)
        return it
    def _emit_item(self, it):
        t = it.text() if callable(it.text) else it.text
        if t is None: return False
        if it.kind == 'm': self.vmem(t, it.tag)
        elif it.kind == 'd': self.ds(t, it.tag)
        else: self.lines.append("    " + t)
        return True
    def _candidates(self):
        c = []
        for name, q in self.streams.items():
            if q and q[0].early <= self.gap:
                c.append(q[0])
        return c
    def fill(self, budget):
        n = 0
        while True:
            c = self._candidates()
            if not c: break
            due = [i for i in c if i.late is not None and i.late <= self.gap]
            if due:
                it = min(due, key=lambda i: (i.late, i.seq))
            elif n < budget:
                it = min(c, key=lambda i: (i.late if i.late is not None else 1 << 30, i.seq))
            else:
                break
            self.streams[it.stream].pop(0)
            if self._emit_item(it):
                n += 1
        if n > budget: self.stats["over"] += n - budget
        self.stats["fill"] += n
        return n
    def flush_streams(self, names=None):
        while True:
            c = [q[0] for nme, q in self.streams.items() if q and (names is None or nme in names)]
            if not c: break
            it = min(c, key=lambda i: i.seq)
            self.streams[it.stream].pop(0)
            self._emit_item(it)
    def pending(self):
        return sum(len(q) for q in self.streams.values())

    def mfma_gap(self, mfma, pre=(), dss=(), budget=None):
        self.lines.append("    " + mfma)
        self.stats["mfma"] += 1
        used = 0
        for p in pre:
            t = p() if callable(p) else p
            if t: self.lines.append("    " + t); used += 1
        for (t, tag) in dss:
            self.ds(t, tag); used += 1
        b = max(0, 2 - used) if budget is None else budget
        self.fill(b)
        self.gap += 1

    def text(self):
        return "\n".join(self.lines) + "\n"
```

```python
import sys
from emit import Emitter

NAME = "standalone__dense_activation_squared_relu__prompt"
X_BYTES, W1_BYTES, B1_BYTES, W2_BYTES, B2_BYTES, OUT_BYTES = 2359296, 5308416, 9216, 5308416, 1152, 2359296
WS_BYTES = 268435456
H_OFF = 0
P_OFF = 20 << 20
OOB = 0x40000000
NS = 5
SLOT = 20480
XBASE = NS * SLOT
LDS_BYTES = XBASE + 4 * 3 * 4096

def srd(e, dst, ptr, nbytes):
    e.raw(f"""
    s_mov_b32 s{dst}, s{ptr}
    s_mov_b32 s{dst+1}, s{ptr+1}
    s_mov_b32 s{dst+2}, {nbytes}
    s_mov_b32 s{dst+3}, 0x20000""")

def decode_ids(e):
    e.raw("""
    s_and_b32 s44, s2, 7
    s_lshr_b32 s45, s2, 3
    s_and_b32 s24, s44, 3
    s_lshr_b32 s46, s44, 2
    s_lshr_b32 s47, s45, 2
    s_and_b32 s25, s45, 3
    s_lshl_b32 s46, s46, 3
    s_add_u32 s21, s46, s47
    s_lshl_b32 s22, s24, 2
    s_add_u32 s22, s22, s25
    s_and_b32 s23, s25, 1
    v_lshrrev_b32 v2, 6, v0
    v_and_b32 v1, 63, v0
    v_readfirstlane_b32 s20, v2
    """)

def kd(name, vgpr, accum, sgpr=96):
    return f""".section .rodata,"a"
.p2align 6
.amdhsa_kernel {name}
  .amdhsa_next_free_vgpr {vgpr}
  .amdhsa_next_free_sgpr {sgpr}
  .amdhsa_accum_offset {accum}
  .amdhsa_group_segment_fixed_size 0
  .amdhsa_kernarg_size 64
  .amdhsa_user_sgpr_count 2
  .amdhsa_user_sgpr_kernarg_segment_ptr 1
  .amdhsa_system_sgpr_workgroup_id_x 1
.end_amdhsa_kernel
.text
"""
def khead(name):
    return f""".globl {name}
.p2align 8
.type {name},@function
{name}:
"""

ACC_A, ACC_B, BIASB = 64, 128, 208
AX, AW = 0, 144
V_WA, V_WB, V_X = 2, 7, 12
V_TE, V_TO = 16, 17
V_XR = 20
V_HS = 22
V_BI = 23
S_X, S_W1, S_B1, S_WS = 4, 8, 12, 16
S_CBA, S_CBB = 26, 27
S_WSO, S_XSO = 28, 29
S_MW, S_MX = 30, 31
S_HSO = 32
S_T = 33

def p1_setup(e):
    e.comment("W1 DMA voffsets")
    e.raw(f"s_mul_i32 s{S_T}, s20, {16*9216}")
    for q in range(5):
        e.raw(f"""
        v_add_u32 v24, {64*q}, v1
        v_mul_u32_u24 v25, 205, v24
        v_lshrrev_b32 v25, 12, v25          ; rho = u16/20
        v_mul_u32_u24 v26, 20, v25
        v_sub_u32 v26, v24, v26             ; c' = u16%20
        v_lshrrev_b32 v27, 2, v25
        v_and_b32 v27, 2, v27               ; ((rho>>3)&1)<<1
        v_xor_b32 v26, v26, v27             ; c
        v_mul_u32_u24 v28, 9216, v25
        v_lshl_add_u32 v28, v26, 4, v28
        v_add_u32 v28, s{S_T}, v28""")
        if q & 3:
            e.raw(f"v_subrev_u32 v28, {(q&3)*1024}, v28")
        e.raw(f"""
        v_mov_b32 v{V_WB+q}, v28
        v_cmp_gt_u32 vcc, 16, v26
        v_mov_b32 v29, {OOB}
        v_cndmask_b32 v{V_WA+q}, v29, v28, vcc""")
    e.raw(f"s_mul_i32 s{S_T}, s20, {32*1152}")
    for q in range(4):
        e.raw(f"""
        v_lshrrev_b32 v24, 3, v1
        v_add_u32 v24, {8*q}, v24
        v_lshrrev_b32 v25, 1, v24
        v_and_b32 v25, 7, v25
        v_and_b32 v26, 7, v1
        v_xor_b32 v26, v26, v25
        v_mul_u32_u24 v24, 1152, v24
        v_lshl_add_u32 v24, v26, 4, v24
        v_add_u32 v24, s{S_T}, v24""")
        if q: e.raw(f"v_subrev_u32 v24, {q*1024}, v24")
        e.raw(f"v_mov_b32 v{V_X+q}, v24")
    e.raw(f"""
    v_lshrrev_b32 v24, 4, v1            ; g
    v_and_b32 v25, 1, v24               ; b
    v_lshrrev_b32 v26, 1, v24           ; reg2
    v_and_b32 v27, 15, v1
    v_lshrrev_b32 v28, 2, v27           ; r4
    v_and_b32 v27, 3, v27               ; c4
    v_lshl_add_u32 v28, v25, 3, v28     ; rho = 8b + r4
    v_mul_u32_u24 v28, 320, v28
    v_mul_u32_u24 v26, 5120, v26
    v_add_u32 v28, v28, v26
    v_lshl_add_u32 v28, v27, 3, v28
    v_lshlrev_b32 v25, 5, v25           ; 32 b
    v_add_u32 v{V_TE}, v28, v25
    v_sub_u32 v{V_TO}, v28, v25
    v_add_u32 v{V_TE+2}, {3*SLOT}, v{V_TE}
    v_add_u32 v{V_TO+2}, {3*SLOT}, v{V_TO}
    """)
    e.raw(f"""
    s_mul_i32 s{S_T}, s20, 12288
    s_add_u32 s{S_MX}, s{S_T}, {XBASE}
    s_mul_i32 s{S_MW}, s20, 5120
    v_and_b32 v24, 15, v1               ; m16
    v_lshrrev_b32 v25, 4, v1            ; g
    v_lshrrev_b32 v26, 1, v24
    v_xor_b32 v25, v25, v26             ; g ^ (m16>>1)   (m16>>1 in 0..7)
    v_lshlrev_b32 v25, 4, v25
    v_lshl_add_u32 v25, v24, 7, v25
    v_add_u32 v{V_XR}, s{S_MX}, v25
    v_xor_b32 v25, 64, v25
    v_add_u32 v{V_XR+1}, s{S_MX}, v25
    """)
    e.raw(f"""
    s_lshl_b32 s{S_T}, s20, 11
    v_lshl_add_u32 v{V_HS}, v1, 4, s{S_T}
    v_lshrrev_b32 v24, 4, v1
    v_lshlrev_b32 v{V_BI}, 3, v24
    s_mul_i32 s{S_CBA}, s22, 576
    s_mul_i32 s{S_T}, s23, 320
    s_add_u32 s{S_CBB}, s{S_CBA}, 256
    s_add_u32 s{S_CBA}, s{S_CBA}, s{S_T}
    s_mul_i32 s{S_T}, s23, 256
    s_sub_u32 s{S_CBB}, s{S_CBB}, s{S_T}
    s_lshl_b32 s{S_T}, s21, 4
    s_add_u32 s{S_T}, s{S_T}, s22
    s_mul_i32 s{S_HSO}, s{S_T}, 73728
    """)

def w1_dma_items(e, C, stream, early, late, push=True):
    partA = C < 9
    c = C if partA else C - 9
    vb = V_WA if partA else V_WB
    cb = S_CBA if partA else S_CBB
    slot = C % NS
    items = [
        (f"s_add_u32 s{S_WSO}, s{cb}, {64*c*9216}", 's', None),
        (f"s_add_u32 m0, s{S_MW}, {slot*SLOT}", 's', None),
    ]
    for q in range(4):
        items.append((f"buffer_load_dwordx4 v{vb+q}, s[{S_W1}:{S_W1+3}], s{S_WSO} offen offset:{q*1024} lds", 'm', ('W', C)))
    items.append((f"s_add_u32 m0, s{S_MW}, {slot*SLOT+4096}", 's', None))
    items.append(("s_nop 0", 's', None) if not push else None)
    items.append((f"buffer_load_dwordx4 v{vb+4}, s[{S_W1}:{S_W1+3}], s{S_WSO} offen lds", 'm', ('W', C)))
    return [i for i in items if i]

def x_dma_items(c):
    slot = c % 3
    items = [
        (f"s_add_u32 s{S_XSO}, s{S_T+1}, {128*c}", 's', None),
        (f"s_add_u32 m0, s{S_MX}, {slot*4096}", 's', None),
    ]
    for q in range(4):
        items.append((f"buffer_load_dwordx4 v{V_X+q}, s[{S_X}:{S_X+3}], s{S_XSO} offen offset:{q*1024} lds", 'm', ('X', c)))
    return items

def emit_now(e, items):
    prev_m0 = False
    for (t, k, tag) in items:
        if k == 'm':
            if prev_m0: e.raw("s_nop 0")
            e.vmem(t, tag)
        else:
            e.raw(t)
        prev_m0 = (k == 's' and " m0," in t)

def push_items(e, stream, items, early, late):
    g = early
    n = len(items)
    for idx, (t, k, tag) in enumerate(items):
        e.push(stream, t, k, tag, early=g, late=late)
        if k == 's' and " m0," in t: g += 1

def tr_read(C, ks, ft, h, dst):
    slot = C % NS
    vb = (V_TE if ft % 2 == 0 else V_TO) + (2 if slot >= 3 else 0)
    off = (slot % 3) * SLOT + ks * 10240 + h * 1280 + ft * 32
    return f"ds_read_b64_tr_b16 a[{dst}:{dst+1}], v{vb} offset:{off}"

def x_read(kt, t):
    c, p = kt // 2, kt % 2
    dst = AX + 8 * kt + 4 * t
    return f"ds_read_b128 a[{dst}:{dst+3}], v{V_XR+p} offset:{(c%3)*4096 + t*2048}"

def bias_load(e, part, base):
    nft = 8 if part == 'A' else 10
    cb = S_CBA if part == 'A' else S_CBB
    for ft in range(nft):
        q = base + 4 * ft
        e.vmem(f"buffer_load_dwordx2 v[{q+2}:{q+3}], v{V_BI}, s[{S_B1}:{S_B1+3}], s{cb} offen offset:{32*ft}", ('BI', part))
def bias_cvt_items(part, base):
    nft = 8 if part == 'A' else 10
    out = []
    for ft in range(nft):
        q = base + 4 * ft
        out += [f"v_lshlrev_b32 v{q}, 16, v{q+2}", f"v_and_b32 v{q+1}, 0xffff0000, v{q+2}",
                f"v_lshlrev_b32 v{q+2}, 16, v{q+3}", f"v_and_b32 v{q+3}, 0xffff0000, v{q+3}"]
    return out

def epi_items(acc, i_local, i_store, t, sc=" sc1"):
    P = acc + 8 * (2 * i_local) + 4 * t
    Q = acc + 8 * (2 * i_local + 1) + 4 * t
    it = []
    for r in range(4): it.append((f"v_mul_f32 v{P+r}, v{P+r}, |v{P+r}|", 'v', None))
    for r in range(4): it.append((f"v_mul_f32 v{Q+r}, v{Q+r}, |v{Q+r}|", 'v', None))
    it.append((f"v_cvt_pk_bf16_f32 v{P}, v{P}, v{P+1}", 'v', None))
    it.append((f"v_cvt_pk_bf16_f32 v{P+1}, v{P+2}, v{P+3}", 'v', None))
    it.append((f"v_cvt_pk_bf16_f32 v{P+2}, v{Q}, v{Q+1}", 'v', None))
    it.append((f"v_cvt_pk_bf16_f32 v{P+3}, v{Q+2}, v{Q+3}", 'v', None))
    for r in range(4): it.append((f"v_pk_max_i16 v{P+r}, v{P+r}, 0", 'v', None))
    if t == 0:
        it.append((f"s_add_u32 s{S_T+2}, s{S_HSO}, {i_store*8192}", 's', None))
    it.append((f"buffer_store_dwordx4 v[{P}:{P+3}], v{V_HS}, s[{S_WS}:{S_WS+3}], s{S_T+2} offen offset:{t*1024}{sc}", 'm', ('H', i_store)))
    return it

def gen_k1(name):
    e = Emitter()
    e.raw(f"""
    s_cmp_ge_u32 s2, 256
    s_cbranch_scc1 L_{name}_end
    s_load_dwordx4 s[36:39], s[0:1], 0
    s_load_dwordx2 s[40:41], s[0:1], 16
    s_load_dwordx2 s[42:43], s[0:1], 56
    """)
    decode_ids(e)
    e.raw("s_nop 3")
    p1_setup(e)
    e.raw(f"s_mul_i32 s{S_T+1}, s21, 147456")
    e.raw("s_waitcnt lgkmcnt(0)")
    srd(e, S_X, 36, X_BYTES); srd(e, S_W1, 38, W1_BYTES); srd(e, S_B1, 40, B1_BYTES); srd(e, S_WS, 42, WS_BYTES)
    emit_now(e, x_dma_items(0)); emit_now(e, w1_dma_items(e, 0, None, 0, 0, push=False))
    bias_load(e, 'A', ACC_B)
    emit_now(e, x_dma_items(1)); emit_now(e, w1_dma_items(e, 1, None, 0, 0, push=False))
    emit_now(e, x_dma_items(2)); emit_now(e, w1_dma_items(e, 2, None, 0, 0, push=False))
    emit_now(e, w1_dma_items(e, 3, None, 0, 0, push=False))
    emit_now(e, w1_dma_items(e, 4, None, 0, 0, push=False))
    bias_load(e, 'B', BIASB)
    e.wait_vm(('BI', 'A'))
    for t in bias_cvt_items('A', ACC_B): e.raw(t)
    e.wait_vm([('W', 0), ('X', 0)])
    e.raw("s_barrier")
    for ft in range(8):
        for h in range(2):
            e.ds(tr_read(0, 0, ft, h, AW + 4 * ft + 2 * h), ('WF', 0, ft))
    for t in range(2): e.ds(x_read(0, t), ('XF', 0))

    steps = [('A', kt) for kt in range(18)] + [('B', kt) for kt in range(18)]
    for si, (part, kt) in enumerate(steps):
        nft = 8 if part == 'A' else 10
        C = (kt // 2) + (0 if part == 'A' else 9)
        ks = kt % 2
        acc = ACC_A if part == 'A' else ACC_B
        cur = AW + 40 * (si % 2); nxt = AW + 40 * ((si + 1) % 2)
        g0 = e.gap
        ngap = 2 * nft
        have_next = si + 1 < len(steps)
        if have_next:
            npart, nkt = steps[si + 1]
            nC = (nkt // 2) + (0 if npart == 'A' else 9)
            nks = nkt % 2
            nnft = 8 if npart == 'A' else 10
            reads = [(tr_read(nC, nks, ft, h, nxt + 4 * ft + 2 * h), ('WF', si + 1, ft)) for ft in range(nnft) for h in range(2)]
            if npart == 'A':
                xr = [(x_read(nkt, t), ('XF', nkt)) for t in range(2)]
                reads = reads[:2] + xr[:1] + reads[2:4] + xr[1:] + reads[4:]
        else:
            reads = []
        per = [[] for _ in range(ngap)]
        nr = len(reads)
        for k, r in enumerate(reads):
            per[min(ngap - 1, (k * ngap) // max(nr, ngap))].append(r) if nr > ngap else per[k].append(r)
        pre0 = []
        if have_next and nks == 0:
            pre0 = ["s_barrier"]
            Cn = nC + 3
            if nC >= 2 and Cn < 18:
                push_items(e, 'dmaW', w1_dma_items(e, Cn, None, 0, 0), g0 + 1, g0 + ngap + 14)
            if npart == 'A' or True:
                xc = nC + 2
                if nC >= 1 and xc < 9 and npart == 'A':
                    push_items(e, 'dmaX', x_dma_items(xc), g0 + 1, g0 + ngap + 14)
        if have_next and nks == 1 and si + 2 < len(steps):
            n2part, n2kt = steps[si + 2]
            n2C = (n2kt // 2) + (0 if n2part == 'A' else 9)
            tags = [('W', n2C)] + ([('X', n2kt // 2)] if n2part == 'A' else [])
            e.push('wait', (lambda tags=tags: e.vm_wait_text(tags)), 'w', early=g0 + ngap - 1, late=g0 + ngap - 1)
        if part == 'A' and kt == 4:
            e.push('bias', lambda: e.vm_wait_text(('BI', 'B')), 'w', early=g0)
            for t in bias_cvt_items('B', BIASB): e.push('bias', t, 'v', early=g0, late=g0 + 200)
        if part == 'B' and kt == 1:
            for i in range(4):
                for t in range(2):
                    for (tx, k, tag) in epi_items(ACC_A, i, i, t):
                        e.push('epi', tx, k, tag, early=g0, late=g0 + 300)
        for ft in range(nft):
            for t in range(2):
                gi = 2 * ft + t
                A = f"a[{cur+4*ft}:{cur+4*ft+3}]"
                B = f"a[{AX+8*kt+4*t}:{AX+8*kt+4*t+3}]"
                D = f"v[{acc+8*ft+4*t}:{acc+8*ft+4*t+3}]"
                if kt == 0:
                    bq = (ACC_B if part == 'A' else BIASB) + 4 * ft
                    Cc = f"v[{bq}:{bq+3}]"
                else:
                    Cc = D
                if t == 0 and ft % 4 == 0:
                    hi = min(ft + 3, nft - 1)
                    tags = [('WF', si, hi)]
                    if ft == 0 and part == 'A': tags.append(('XF', kt))
                    w = e.lg_wait_text(tags)
                    if w: e.raw(w)
                e.mfma_gap(f"v_mfma_f32_16x16x32_bf16 {D}, {A}, {B}, {Cc}", pre=pre0 if gi == 0 else (), dss=per[gi])
    e.flush_streams()
    e.raw("s_nop 7\ns_nop 7")
    for i in range(5):
        for t in range(2):
            for (tx, k, tag) in epi_items(ACC_B, i, 4 + i, t):
                if k == 'm': e.vmem(tx, tag)
                else: e.raw(tx)
    e.wait_vm_all()
    e.raw(f"L_{name}_end:\ns_endpgm")
    print(name, e.stats, file=sys.stderr)
    return khead(name) + e.text() + kd(name, 512, 256)

ACC2 = 64
AW2, AH = 0, 72
HD = 6
V_W2 = 2
V_T2 = 8
V_HL = 10
V_PS = 11
S_W2 = 8
S_SO = 48
S_HB = 66

def ksteps2():
    seq = [(0, i) for i in range(9)]
    seq += [(d, i) for d in (1, 2, 3) for i in range(4)]
    seq += [(d, i) for d in (1, 2, 3) for i in range(4, 9)]
    return seq

def p2_setup(e):
    e.comment("W2 DMA voffsets")
    e.raw(f"""
    s_and_b32 s{S_T}, s20, 1
    s_mul_i32 s{S_T}, s{S_T}, {16*1152}
    """)
    for q in range(5):
        e.raw(f"""
        v_add_u32 v24, {64*q}, v1
        v_mul_u32_u24 v25, 57, v24
        v_lshrrev_b32 v25, 10, v25          ; rho = u16/18
        v_mul_u32_u24 v26, 18, v25
        v_sub_u32 v26, v24, v26             ; c
        v_mul_u32_u24 v28, 1152, v25
        v_lshl_add_u32 v28, v26, 4, v28
        v_add_u32 v28, s{S_T}, v28""")
        if q & 3: e.raw(f"v_subrev_u32 v28, {(q&3)*1024}, v28")
        if q == 4:
            e.raw(f"""
            v_cmp_gt_u32 vcc, 32, v1
            v_mov_b32 v29, {OOB}
            v_cndmask_b32 v{V_W2+q}, v29, v28, vcc""")
        else:
            e.raw(f"v_mov_b32 v{V_W2+q}, v28")
    e.raw(f"""
    v_lshrrev_b32 v24, 4, v1            ; g
    v_and_b32 v27, 15, v1
    v_lshrrev_b32 v28, 2, v27           ; r4
    v_and_b32 v27, 3, v27               ; c4
    v_lshl_add_u32 v28, v24, 2, v28     ; 4g + r4
    v_mul_u32_u24 v28, 288, v28
    v_lshl_add_u32 v{V_T2}, v27, 3, v28
    v_add_u32 v{V_T2+1}, {3*SLOT}, v{V_T2}
    s_mul_i32 s{S_MW}, s20, 5120
    s_lshl_b32 s{S_T}, s20, 11
    v_lshl_add_u32 v{V_HL}, v1, 4, s{S_T}
    """)
    for d in range(4):
        e.raw(f"""
        s_add_u32 s34, s25, {d}
        s_and_b32 s34, s34, 3               ; j'
        s_lshl_b32 s35, s24, 2
        s_add_u32 s35, s35, s34             ; s'
        s_lshl_b32 s36, s21, 4
        s_add_u32 s36, s36, s35
        s_mul_i32 s{S_HB+d}, s36, 73728
        s_and_b32 s34, s34, 1               ; parity
        s_mul_i32 s35, s35, {288*1152}
        s_mul_i32 s36, s25, 288
        s_add_u32 s35, s35, s36
        s_mul_i32 s36, s34, {160*1152}
        s_add_u32 s{70+d}, s35, s36         ; RA
        s_mul_i32 s36, s34, {128*1152}
        s_sub_u32 s{74+d}, s35, s36
        """)
    seq = ksteps2()
    e.raw("s_lshr_b32 s34, s20, 1\ns_cmp_eq_u32 s34, 0")
    for c in range(18):
        vals = []
        for ks in range(2):
            d, i = seq[2 * c + ks]
            base = (70 if i < 4 else 74) + d
            vals.append((base, 32 * i * 1152))
        e.raw(f"""
        s_add_u32 s35, s{vals[0][0]}, {vals[0][1]}
        s_add_u32 s36, s{vals[1][0]}, {vals[1][1]}
        s_cmp_eq_u32 s34, 0
        s_cselect_b32 s{S_SO+c}, s35, s36""")

def w2_dma_items(C):
    slot = C % NS
    items = [(f"s_add_u32 m0, s{S_MW}, {slot*SLOT}", 's', None)]
    for q in range(4):
        items.append((f"buffer_load_dwordx4 v{V_W2+q}, s[{S_W2}:{S_W2+3}], s{S_SO+C} offen offset:{q*1024} lds", 'm', ('W', C)))
    items.append((f"s_add_u32 m0, s{S_MW}, {slot*SLOT+4096}", 's', None))
    items.append((f"buffer_load_dwordx4 v{V_W2+4}, s[{S_W2}:{S_W2+3}], s{S_SO+C} offen lds", 'm', ('W', C)))
    return items

def h_load_items(q):
    d, i = ksteps2()[q]
    dst = AH + 8 * (q % HD)
    it = [(f"s_add_u32 s{S_T+2}, s{S_HB+d}, {i*8192}", 's', None)]
    for t in range(2):
        it.append((f"buffer_load_dwordx4 a[{dst+4*t}:{dst+4*t+3}], v{V_HL}, s[{S_WS}:{S_WS+3}], s{S_T+2} offen offset:{t*1024} sc1", 'm', ('H', q)))
    return it

def tr2_read(q, nt, h, dst):
    C, ks = q // 2, q % 2
    slot = C % NS
    vb = V_T2 + (1 if slot >= 3 else 0)
    off = (slot % 3) * SLOT + ks * 10240 + h * 5120 + nt * 32
    return f"ds_read_b64_tr_b16 a[{dst}:{dst+1}], v{vb} offset:{off}"

def gen_k2(name):
    e = Emitter()
    e.raw(f"""
    s_cmp_ge_u32 s2, 256
    s_cbranch_scc1 L_{name}_end
    s_load_dwordx2 s[38:39], s[0:1], 24
    s_load_dwordx2 s[42:43], s[0:1], 56
    """)
    decode_ids(e)
    e.raw("s_nop 3")
    p2_setup(e)
    e.raw("s_waitcnt lgkmcnt(0)")
    srd(e, S_W2, 38, W2_BYTES); srd(e, S_WS, 42, WS_BYTES)
    for q in range(2): emit_now(e, h_load_items(q))
    emit_now(e, w2_dma_items(0))
    for C in range(1, 5):
        emit_now(e, w2_dma_items(C))
        for q in (2 * C, 2 * C + 1):
            if q < HD: emit_now(e, h_load_items(q))
    e.wait_vm([('W', 0)])
    e.raw("s_barrier")
    for nt in range(9):
        for h in range(2): e.ds(tr2_read(0, nt, h, AW2 + 4 * nt + 2 * h), ('WF', 0, nt))
    NQ = 36
    for q in range(NQ):
        cur = AW2 + 36 * (q % 2); nxt = AW2 + 36 * ((q + 1) % 2)
        g0 = e.gap; ngap = 18
        have_next = q + 1 < NQ
        reads = [(tr2_read(q + 1, nt, h, nxt + 4 * nt + 2 * h), ('WF', q + 1, nt)) for nt in range(9) for h in range(2)] if have_next else []
        pre0 = []
        if have_next and (q + 1) % 2 == 0:
            pre0 = ["s_barrier"]
            nC = (q + 1) // 2
            if nC >= 2 and nC + 3 < 18:
                push_items(e, 'dmaW', w2_dma_items(nC + 3), g0 + 1, g0 + ngap + 14)
        if have_next and (q + 1) % 2 == 1 and q + 2 < NQ:
            tags = [('W', (q + 2) // 2)]
            e.push('wait', (lambda tags=tags: e.vm_wait_text(tags)), 'w', early=g0 + ngap - 1, late=g0 + ngap - 1)
        qn = q + HD - 1
        if q >= 1 and qn < NQ:
            for (tx, k, tag) in h_load_items(qn): e.push('dmaH', tx, k, tag, early=g0 + 1, late=g0 + ngap - 2)
        hb = AH + 8 * (q % HD)
        for nt in range(9):
            for t in range(2):
                gi = 2 * nt + t
                A = f"a[{cur+4*nt}:{cur+4*nt+3}]"
                B = f"a[{hb+4*t}:{hb+4*t+3}]"
                D = f"v[{ACC2+8*nt+4*t}:{ACC2+8*nt+4*t+3}]"
                Cc = "0" if q == 0 else D
                if gi == 0:
                    w = e.vm_wait_text([('H', q)])
                    if w: e.raw(w)
                if t == 0 and nt % 4 == 0:
                    w = e.lg_wait_text([('WF', q, min(nt + 3, 8))])
                    if w: e.raw(w)
                e.mfma_gap(f"v_mfma_f32_16x16x32_bf16 {D}, {A}, {B}, {Cc}", pre=pre0 if gi == 0 else (), dss=[reads[gi]] if have_next else [])
    e.flush_streams()
    e.raw(f"""
    s_nop 7
    s_nop 7
    s_lshl_b32 s34, s24, 4
    s_add_u32 s34, s34, s21
    s_lshl_b32 s34, s34, 2
    s_add_u32 s34, s34, s25
    s_lshl_b32 s34, s34, 2
    s_add_u32 s34, s34, s20
    s_mul_i32 s34, s34, {18*1024}
    s_add_u32 s34, s34, {P_OFF}
    v_lshlrev_b32 v{V_PS}, 4, v1
    """)
    for k in range(18):
        if k % 4 == 0 and k: e.raw(f"s_add_u32 s34, s34, 4096")
        r = ACC2 + 4 * k
        e.vmem(f"buffer_store_dwordx4 v[{r}:{r+3}], v{V_PS}, s[{S_WS}:{S_WS+3}], s34 offen offset:{(k%4)*1024} sc1")
    e.wait_vm_all()
    e.raw(f"L_{name}_end:\ns_endpgm")
    print(name, e.stats, file=sys.stderr)
    return khead(name) + e.text() + kd(name, 512, 256)

def gen_k3(name):
    e = Emitter()
    e.raw(f"""
    s_cmp_ge_u32 s2, 256
    s_cbranch_scc1 L_{name}_end
    s_load_dwordx4 s[36:39], s[0:1], 32      ; b2, out
    s_load_dwordx2 s[42:43], s[0:1], 56
    s_lshr_b32 s21, s2, 4       ; m
    s_lshr_b32 s25, s2, 2
    s_and_b32 s25, s25, 3       ; j
    s_and_b32 s20, s2, 3        ; w
    v_lshlrev_b32 v2, 4, v0
    s_waitcnt lgkmcnt(0)
    """)
    srd(e, 4, 36, B2_BYTES); srd(e, 8, 38, OUT_BYTES); srd(e, S_WS, 42, WS_BYTES)
    e.raw(f"""
    s_lshl_b32 s34, s21, 2
    s_add_u32 s34, s34, s25
    s_lshl_b32 s34, s34, 2
    s_add_u32 s34, s34, s20
    s_mul_i32 s34, s34, {18*1024}
    s_add_u32 s34, s34, {P_OFF}
    v_lshrrev_b32 v3, 4, v0
    v_lshlrev_b32 v3, 3, v3     ; 8 g
    s_mul_i32 s35, s25, 288
    """)
    for nt in range(9):
        e.vmem(f"buffer_load_dwordx2 v[{4+2*nt}:{5+2*nt}], v3, s[4:7], s35 offen offset:{32*nt}", 'b')
    for kq in range(4):
        base = 32 if kq == 0 else 104
        e.raw(f"s_add_u32 s33, s34, {kq*16*4*4*18*1024}")
        for k in range(18):
            if k % 4 == 0 and k: e.raw("s_add_u32 s33, s33, 4096")
            e.vmem(f"buffer_load_dwordx4 v[{base+4*k}:{base+4*k+3}], v2, s[{S_WS}:{S_WS+3}], s33 offen offset:{(k%4)*1024} sc1", (kq, k))
        if kq:
            e.wait_vm_all()
            for r in range(72): e.raw(f"v_add_f32 v{32+r}, v{32+r}, v{104+r}")
    e.raw(f"""
    s_lshl_b32 s33, s21, 7
    s_lshl_b32 s34, s20, 5
    s_add_u32 s33, s33, s34
    s_mul_i32 s33, s33, 1152
    s_add_u32 s33, s33, s35
    v_and_b32 v22, 15, v0
    v_mul_u32_u24 v22, 1152, v22
    v_add_u32 v22, v22, v3
    v_add_u32 v23, {16*1152}, v22
    """)
    for nt in range(9):
        b = 4 + 2 * nt
        for t in range(2):
            r = 32 + 8 * nt + 4 * t
            e.raw(f"""
            v_lshlrev_b32 v24, 16, v{b}
            v_and_b32 v25, 0xffff0000, v{b}
            v_lshlrev_b32 v26, 16, v{b+1}
            v_and_b32 v27, 0xffff0000, v{b+1}
            v_add_f32 v24, v24, v{r}
            v_add_f32 v25, v25, v{r+1}
            v_add_f32 v26, v26, v{r+2}
            v_add_f32 v27, v27, v{r+3}
            v_cvt_pk_bf16_f32 v{r}, v24, v25
            v_cvt_pk_bf16_f32 v{r+1}, v26, v27
            """)
            e.vmem(f"buffer_store_dwordx2 v[{r}:{r+1}], v{22+t}, s[8:11], s33 offen offset:{32*nt}")
    e.wait_vm_all()
    e.raw(f"L_{name}_end:\ns_endpgm")
    return khead(name) + e.text() + kd(name, 184, 184)

def main(path):
    hdr = f"""; MLP: out = relu(x@w1+b1)^2 @ w2 + b2   (checkpoint 1: three launches)
; @launch kernel=mlp_p1_kernel grid=(256,1,1) block=(256,1,1) lds={LDS_BYTES}
; @launch kernel=mlp_p2_kernel grid=(256,1,1) block=(256,1,1) lds={NS*SLOT}
; @launch kernel=mlp_red_kernel grid=(256,1,1) block=(64,1,1) lds=0
.amdgcn_target "amdgcn-amd-amdhsa--gfx950"
.text
"""
    txt = hdr + gen_k1("mlp_p1_kernel") + gen_k2("mlp_p2_kernel") + gen_k3("mlp_red_kernel")
    open(path, "w").write(txt)

if __name__ == "__main__":
    main(sys.argv[1] if len(sys.argv) > 1 else "cp1.s")
```

```python
import sys
from emit import Emitter

NAME = "standalone__dense_activation_squared_relu__prompt"
X_BYTES, W1_BYTES, B1_BYTES, W2_BYTES, B2_BYTES, OUT_BYTES = 2359296, 5308416, 9216, 5308416, 1152, 2359296
WS_BYTES = 268435456
H_OFF = 0
P_OFF = 20 << 20
OOB = 0x40000000
NS = 5
SLOT = 20480
XBASE = NS * SLOT
LDS_BYTES = XBASE + 4 * 3 * 4096

def srd(e, dst, ptr, nbytes):
    e.raw(f"""
    s_mov_b32 s{dst}, s{ptr}
    s_mov_b32 s{dst+1}, s{ptr+1}
    s_mov_b32 s{dst+2}, {nbytes}
    s_mov_b32 s{dst+3}, 0x20000""")

def decode_ids(e):
    e.raw("""
    s_and_b32 s44, s2, 7
    s_lshr_b32 s45, s2, 3
    s_and_b32 s24, s44, 3
    s_lshr_b32 s46, s44, 2
    s_lshr_b32 s47, s45, 2
    s_and_b32 s25, s45, 3
    s_lshl_b32 s46, s46, 3
    s_add_u32 s21, s46, s47
    s_lshl_b32 s22, s24, 2
    s_add_u32 s22, s22, s25
    s_and_b32 s23, s25, 1
    v_lshrrev_b32 v2, 6, v0
    v_and_b32 v1, 63, v0
    v_readfirstlane_b32 s20, v2
    """)

def kd(name, vgpr, accum, sgpr=96):
    return f""".section .rodata,"a"
.p2align 6
.amdhsa_kernel {name}
  .amdhsa_next_free_vgpr {vgpr}
  .amdhsa_next_free_sgpr {sgpr}
  .amdhsa_accum_offset {accum}
  .amdhsa_group_segment_fixed_size 0
  .amdhsa_kernarg_size 64
  .amdhsa_user_sgpr_count 2
  .amdhsa_user_sgpr_kernarg_segment_ptr 1
  .amdhsa_system_sgpr_workgroup_id_x 1
.end_amdhsa_kernel
.text
"""
def khead(name):
    return f""".globl {name}
.p2align 8
.type {name},@function
{name}:
"""

ACC_A, ACC_B, BIASB = 64, 128, 208
AX, AW = 0, 144
V_WA, V_WB, V_X = 2, 7, 12
V_TE, V_TO = 16, 17
V_XR = 20
V_HS = 22
V_BI = 23
S_X, S_W1, S_B1, S_WS = 4, 8, 12, 16
S_CBA, S_CBB = 26, 27
S_WSO, S_XSO = 28, 29
S_MW, S_MX = 30, 31
S_HSO = 32
S_T = 33

def p1_setup(e):
    e.comment("W1 DMA voffsets")
    e.raw(f"s_mul_i32 s{S_T}, s20, {16*9216}")
    for q in range(5):
        e.raw(f"""
        v_add_u32 v24, {64*q}, v1
        v_mul_u32_u24 v25, 205, v24
        v_lshrrev_b32 v25, 12, v25          ; rho = u16/20
        v_mul_u32_u24 v26, 20, v25
        v_sub_u32 v26, v24, v26             ; c' = u16%20
        v_lshrrev_b32 v27, 2, v25
        v_and_b32 v27, 2, v27               ; ((rho>>3)&1)<<1
        v_xor_b32 v26, v26, v27             ; c
        v_mul_u32_u24 v28, 9216, v25
        v_lshl_add_u32 v28, v26, 4, v28
        v_add_u32 v28, s{S_T}, v28""")
        if q & 3:
            e.raw(f"v_subrev_u32 v28, {(q&3)*1024}, v28")
        e.raw(f"""
        v_mov_b32 v{V_WB+q}, v28
        v_cmp_gt_u32 vcc, 16, v26
        v_mov_b32 v29, {OOB}
        v_cndmask_b32 v{V_WA+q}, v29, v28, vcc""")
    e.raw(f"s_mul_i32 s{S_T}, s20, {32*1152}")
    for q in range(4):
        e.raw(f"""
        v_lshrrev_b32 v24, 3, v1
        v_add_u32 v24, {8*q}, v24
        v_lshrrev_b32 v25, 1, v24
        v_and_b32 v25, 7, v25
        v_and_b32 v26, 7, v1
        v_xor_b32 v26, v26, v25
        v_mul_u32_u24 v24, 1152, v24
        v_lshl_add_u32 v24, v26, 4, v24
        v_add_u32 v24, s{S_T}, v24""")
        if q: e.raw(f"v_subrev_u32 v24, {q*1024}, v24")
        e.raw(f"v_mov_b32 v{V_X+q}, v24")
    e.raw(f"""
    v_lshrrev_b32 v24, 4, v1            ; g
    v_and_b32 v25, 1, v24               ; b
    v_lshrrev_b32 v26, 1, v24           ; reg2
    v_and_b32 v27, 15, v1
    v_lshrrev_b32 v28, 2, v27           ; r4
    v_and_b32 v27, 3, v27               ; c4
    v_lshl_add_u32 v28, v25, 3, v28     ; rho = 8b + r4
    v_mul_u32_u24 v28, 320, v28
    v_mul_u32_u24 v26, 5120, v26
    v_add_u32 v28, v28, v26
    v_lshl_add_u32 v28, v27, 3, v28
    v_lshlrev_b32 v25, 5, v25           ; 32 b
    v_add_u32 v{V_TE}, v28, v25
    v_sub_u32 v{V_TO}, v28, v25
    v_add_u32 v{V_TE+2}, {3*SLOT}, v{V_TE}
    v_add_u32 v{V_TO+2}, {3*SLOT}, v{V_TO}
    """)
    e.raw(f"""
    s_mul_i32 s{S_T}, s20, 12288
    s_add_u32 s{S_MX}, s{S_T}, {XBASE}
    s_mul_i32 s{S_MW}, s20, 5120
    v_and_b32 v24, 15, v1               ; m16
    v_lshrrev_b32 v25, 4, v1            ; g
    v_lshrrev_b32 v26, 1, v24
    v_xor_b32 v25, v25, v26             ; g ^ (m16>>1)   (m16>>1 in 0..7)
    v_lshlrev_b32 v25, 4, v25
    v_lshl_add_u32 v25, v24, 7, v25
    v_add_u32 v{V_XR}, s{S_MX}, v25
    v_xor_b32 v25, 64, v25
    v_add_u32 v{V_XR+1}, s{S_MX}, v25
    """)
    e.raw(f"""
    s_lshl_b32 s{S_T}, s20, 11
    v_lshl_add_u32 v{V_HS}, v1, 4, s{S_T}
    v_lshrrev_b32 v24, 4, v1
    v_lshlrev_b32 v{V_BI}, 3, v24
    s_mul_i32 s{S_CBA}, s22, 576
    s_mul_i32 s{S_T}, s23, 320
    s_add_u32 s{S_CBB}, s{S_CBA}, 256
    s_add_u32 s{S_CBA}, s{S_CBA}, s{S_T}
    s_mul_i32 s{S_T}, s23, 256
    s_sub_u32 s{S_CBB}, s{S_CBB}, s{S_T}
    s_lshl_b32 s{S_T}, s21, 4
    s_add_u32 s{S_T}, s{S_T}, s22
    s_mul_i32 s{S_HSO}, s{S_T}, 73728
    """)

def w1_dma_items(e, C, stream, early, late, push=True):
    partA = C < 9
    c = C if partA else C - 9
    vb = V_WA if partA else V_WB
    cb = S_CBA if partA else S_CBB
    slot = C % NS
    items = [
        (f"s_add_u32 s{S_WSO}, s{cb}, {64*c*9216}", 's', None),
        (f"s_add_u32 m0, s{S_MW}, {slot*SLOT}", 's', None),
    ]
    for q in range(4):
        items.append((f"buffer_load_dwordx4 v{vb+q}, s[{S_W1}:{S_W1+3}], s{S_WSO} offen offset:{q*1024} lds", 'm', ('W', C)))
    items.append((f"s_add_u32 m0, s{S_MW}, {slot*SLOT+4096}", 's', None))
    items.append(("s_nop 0", 's', None) if not push else None)
    items.append((f"buffer_load_dwordx4 v{vb+4}, s[{S_W1}:{S_W1+3}], s{S_WSO} offen lds", 'm', ('W', C)))
    return [i for i in items if i]

def x_dma_items(c):
    slot = c % 3
    items = [
        (f"s_add_u32 s{S_XSO}, s{S_T+1}, {128*c}", 's', None),
        (f"s_add_u32 m0, s{S_MX}, {slot*4096}", 's', None),
    ]
    for q in range(4):
        items.append((f"buffer_load_dwordx4 v{V_X+q}, s[{S_X}:{S_X+3}], s{S_XSO} offen offset:{q*1024} lds", 'm', ('X', c)))
    return items

def emit_now(e, items):
    prev_m0 = False
    for (t, k, tag) in items:
        if k == 'm':
            if prev_m0: e.raw("s_nop 0")
            e.vmem(t, tag)
        else:
            e.raw(t)
        prev_m0 = (k == 's' and " m0," in t)

def push_items(e, stream, items, early, late):
    g = early
    n = len(items)
    for idx, (t, k, tag) in enumerate(items):
        e.push(stream, t, k, tag, early=g, late=late)
        if k == 's' and " m0," in t: g += 1

def tr_read(C, ks, ft, h, dst):
    slot = C % NS
    vb = (V_TE if ft % 2 == 0 else V_TO) + (2 if slot >= 3 else 0)
    off = (slot % 3) * SLOT + ks * 10240 + h * 1280 + ft * 32
    return f"ds_read_b64_tr_b16 a[{dst}:{dst+1}], v{vb} offset:{off}"

def x_read(kt, t):
    c, p = kt // 2, kt % 2
    dst = AX + 8 * kt + 4 * t
    return f"ds_read_b128 a[{dst}:{dst+3}], v{V_XR+p} offset:{(c%3)*4096 + t*2048}"

def bias_load(e, part, base):
    nft = 8 if part == 'A' else 10
    cb = S_CBA if part == 'A' else S_CBB
    for ft in range(nft):
        q = base + 4 * ft
        e.vmem(f"buffer_load_dwordx2 v[{q+2}:{q+3}], v{V_BI}, s[{S_B1}:{S_B1+3}], s{cb} offen offset:{32*ft}", ('BI', part))
def bias_cvt_items(part, base):
    nft = 8 if part == 'A' else 10
    out = []
    for ft in range(nft):
        q = base + 4 * ft
        out += [f"v_lshlrev_b32 v{q}, 16, v{q+2}", f"v_and_b32 v{q+1}, 0xffff0000, v{q+2}",
                f"v_lshlrev_b32 v{q+2}, 16, v{q+3}", f"v_and_b32 v{q+3}, 0xffff0000, v{q+3}"]
    return out

def epi_items(acc, i_local, i_store, t, sc=" sc1"):
    P = acc + 8 * (2 * i_local) + 4 * t
    Q = acc + 8 * (2 * i_local + 1) + 4 * t
    it = []
    for r in range(4): it.append((f"v_mul_f32 v{P+r}, v{P+r}, |v{P+r}|", 'v', None))
    for r in range(4): it.append((f"v_mul_f32 v{Q+r}, v{Q+r}, |v{Q+r}|", 'v', None))
    it.append((f"v_cvt_pk_bf16_f32 v{P}, v{P}, v{P+1}", 'v', None))
    it.append((f"v_cvt_pk_bf16_f32 v{P+1}, v{P+2}, v{P+3}", 'v', None))
    it.append((f"v_cvt_pk_bf16_f32 v{P+2}, v{Q}, v{Q+1}", 'v', None))
    it.append((f"v_cvt_pk_bf16_f32 v{P+3}, v{Q+2}, v{Q+3}", 'v', None))
    for r in range(4): it.append((f"v_pk_max_i16 v{P+r}, v{P+r}, 0", 'v', None))
    if t == 0:
        it.append((f"s_add_u32 s{S_T+2}, s{S_HSO}, {i_store*8192}", 's', None))
    it.append((f"buffer_store_dwordx4 v[{P}:{P+3}], v{V_HS}, s[{S_WS}:{S_WS+3}], s{S_T+2} offen offset:{t*1024}{sc}", 'm', ('H', i_store)))
    return it

STAMP = False
def stamp(e, idx):
    if not STAMP: return
    e.raw(f"s_memrealtime s[78:79]\ns_waitcnt lgkmcnt(0)\ns_mov_b32 s{80+idx}, s78")
def stamp_flush(e, n, kernarg_dbg_off=48):
    if not STAMP: return
    e.raw(f"""
    s_load_dwordx2 s[78:79], s[0:1], {kernarg_dbg_off}
    s_waitcnt lgkmcnt(0)
    s_mov_b32 s92, s78
    s_mov_b32 s93, s79
    s_mov_b32 s94, 256
    s_mov_b32 s95, 0x20000
    s_cmp_eq_u32 s2, 0
    s_cselect_b32 s78, 0, 32
    s_cmp_eq_u32 s2, 0
    s_cselect_b32 s79, 1, 0
    s_cmp_eq_u32 s2, 255
    s_cselect_b32 s79, 1, s79
    s_cmp_eq_u32 s20, 0
    s_cselect_b32 s79, s79, 0
    s_cmp_eq_u32 s79, 0
    s_cbranch_scc1 L_nostamp
    v_mov_b32 v24, s78""")
    for i in range(n):
        e.raw(f"v_mov_b32 v25, s{80+i}\nbuffer_store_dword v25, v24, s[92:95], 0 offen offset:{4*i}")
    e.raw("s_waitcnt vmcnt(0)\nL_nostamp:")

def gen_k1(name):
    e = Emitter()
    stamp(e, 0)
    e.raw(f"""
    s_cmp_ge_u32 s2, 256
    s_cbranch_scc1 L_{name}_end
    s_load_dwordx4 s[36:39], s[0:1], 0
    s_load_dwordx2 s[40:41], s[0:1], 16
    s_load_dwordx2 s[42:43], s[0:1], 56
    """)
    decode_ids(e)
    e.raw("s_nop 3")
    p1_setup(e)
    e.raw(f"s_mul_i32 s{S_T+1}, s21, 147456")
    e.raw("s_waitcnt lgkmcnt(0)")
    stamp(e, 1)
    srd(e, S_X, 36, X_BYTES); srd(e, S_W1, 38, W1_BYTES); srd(e, S_B1, 40, B1_BYTES); srd(e, S_WS, 42, WS_BYTES)
    emit_now(e, x_dma_items(0)); emit_now(e, w1_dma_items(e, 0, None, 0, 0, push=False))
    bias_load(e, 'A', ACC_B)
    emit_now(e, x_dma_items(1)); emit_now(e, w1_dma_items(e, 1, None, 0, 0, push=False))
    emit_now(e, x_dma_items(2)); emit_now(e, w1_dma_items(e, 2, None, 0, 0, push=False))
    emit_now(e, w1_dma_items(e, 3, None, 0, 0, push=False))
    emit_now(e, w1_dma_items(e, 4, None, 0, 0, push=False))
    bias_load(e, 'B', BIASB)
    e.wait_vm(('BI', 'A'))
    for t in bias_cvt_items('A', ACC_B): e.raw(t)
    stamp(e, 2)
    e.wait_vm([('W', 0), ('X', 0)])
    e.raw("s_barrier")
    stamp(e, 3)
    for ft in range(8):
        for h in range(2):
            e.ds(tr_read(0, 0, ft, h, AW + 4 * ft + 2 * h), ('WF', 0, ft))
    for t in range(2): e.ds(x_read(0, t), ('XF', 0))

    steps = [('A', kt) for kt in range(18)] + [('B', kt) for kt in range(18)]
    for si, (part, kt) in enumerate(steps):
        nft = 8 if part == 'A' else 10
        C = (kt // 2) + (0 if part == 'A' else 9)
        ks = kt % 2
        acc = ACC_A if part == 'A' else ACC_B
        cur = AW + 40 * (si % 2); nxt = AW + 40 * ((si + 1) % 2)
        g0 = e.gap
        ngap = 2 * nft
        if part == 'B' and kt == 0: stamp(e, 4)
        have_next = si + 1 < len(steps)
        if have_next:
            npart, nkt = steps[si + 1]
            nC = (nkt // 2) + (0 if npart == 'A' else 9)
            nks = nkt % 2
            nnft = 8 if npart == 'A' else 10
            reads = [(tr_read(nC, nks, ft, h, nxt + 4 * ft + 2 * h), ('WF', si + 1, ft)) for ft in range(nnft) for h in range(2)]
            if npart == 'A':
                xr = [(x_read(nkt, t), ('XF', nkt)) for t in range(2)]
                reads = reads[:2] + xr[:1] + reads[2:4] + xr[1:] + reads[4:]
        else:
            reads = []
        per = [[] for _ in range(ngap)]
        nr = len(reads)
        for k, r in enumerate(reads):
            per[min(ngap - 1, (k * ngap) // max(nr, ngap))].append(r) if nr > ngap else per[k].append(r)
        pre0 = []
        if have_next and nks == 0:
            pre0 = ["s_barrier"]
            Cn = nC + 3
            if nC >= 2 and Cn < 18:
                push_items(e, 'dmaW', w1_dma_items(e, Cn, None, 0, 0), g0 + 1, g0 + ngap + 14)
            if npart == 'A' or True:
                xc = nC + 2
                if nC >= 1 and xc < 9 and npart == 'A':
                    push_items(e, 'dmaX', x_dma_items(xc), g0 + 1, g0 + ngap + 14)
        if have_next and nks == 1 and si + 2 < len(steps):
            n2part, n2kt = steps[si + 2]
            n2C = (n2kt // 2) + (0 if n2part == 'A' else 9)
            tags = [('W', n2C)] + ([('X', n2kt // 2)] if n2part == 'A' else [])
            e.push('wait', (lambda tags=tags: e.vm_wait_text(tags)), 'w', early=g0 + ngap - 1, late=g0 + ngap - 1)
        if part == 'A' and kt == 4:
            e.push('bias', lambda: e.vm_wait_text(('BI', 'B')), 'w', early=g0)
            for t in bias_cvt_items('B', BIASB): e.push('bias', t, 'v', early=g0, late=g0 + 200)
        if part == 'B' and kt == 1:
            for i in range(4):
                for t in range(2):
                    for (tx, k, tag) in epi_items(ACC_A, i, i, t):
                        e.push('epi', tx, k, tag, early=g0, late=g0 + 300)
        for ft in range(nft):
            for t in range(2):
                gi = 2 * ft + t
                A = f"a[{cur+4*ft}:{cur+4*ft+3}]"
                B = f"a[{AX+8*kt+4*t}:{AX+8*kt+4*t+3}]"
                D = f"v[{acc+8*ft+4*t}:{acc+8*ft+4*t+3}]"
                if kt == 0:
                    bq = (ACC_B if part == 'A' else BIASB) + 4 * ft
                    Cc = f"v[{bq}:{bq+3}]"
                else:
                    Cc = D
                if t == 0 and ft % 4 == 0:
                    hi = min(ft + 3, nft - 1)
                    tags = [('WF', si, hi)]
                    if ft == 0 and part == 'A': tags.append(('XF', kt))
                    w = e.lg_wait_text(tags)
                    if w: e.raw(w)
                e.mfma_gap(f"v_mfma_f32_16x16x32_bf16 {D}, {A}, {B}, {Cc}", pre=pre0 if gi == 0 else (), dss=per[gi])
    e.flush_streams()
    stamp(e, 5)
    e.raw("s_nop 7\ns_nop 7")
    for i in range(5):
        for t in range(2):
            for (tx, k, tag) in epi_items(ACC_B, i, 4 + i, t):
                if k == 'm': e.vmem(tx, tag)
                else: e.raw(tx)
    stamp(e, 6)
    e.wait_vm_all()
    stamp(e, 7)
    stamp_flush(e, 8)
    e.raw(f"L_{name}_end:\ns_endpgm")
    print(name, e.stats, file=sys.stderr)
    return khead(name) + e.text() + kd(name, 512, 256)

ACC2 = 64
AW2, AH = 0, 72
HD = 6
V_W2 = 2
V_T2 = 8
V_HL = 10
V_PS = 11
S_W2 = 8
S_SO = 48
S_HB = 66

def ksteps2():
    seq = [(0, i) for i in range(9)]
    seq += [(d, i) for d in (1, 2, 3) for i in range(4)]
    seq += [(d, i) for d in (1, 2, 3) for i in range(4, 9)]
    return seq

def p2_setup(e):
    e.comment("W2 DMA voffsets")
    e.raw(f"""
    s_and_b32 s{S_T}, s20, 1
    s_mul_i32 s{S_T}, s{S_T}, {16*1152}
    """)
    for q in range(5):
        e.raw(f"""
        v_add_u32 v24, {64*q}, v1
        v_mul_u32_u24 v25, 57, v24
        v_lshrrev_b32 v25, 10, v25          ; rho = u16/18
        v_mul_u32_u24 v26, 18, v25
        v_sub_u32 v26, v24, v26             ; c
        v_mul_u32_u24 v28, 1152, v25
        v_lshl_add_u32 v28, v26, 4, v28
        v_add_u32 v28, s{S_T}, v28""")
        if q & 3: e.raw(f"v_subrev_u32 v28, {(q&3)*1024}, v28")
        if q == 4:
            e.raw(f"""
            v_cmp_gt_u32 vcc, 32, v1
            v_mov_b32 v29, {OOB}
            v_cndmask_b32 v{V_W2+q}, v29, v28, vcc""")
        else:
            e.raw(f"v_mov_b32 v{V_W2+q}, v28")
    e.raw(f"""
    v_lshrrev_b32 v24, 4, v1            ; g
    v_and_b32 v27, 15, v1
    v_lshrrev_b32 v28, 2, v27           ; r4
    v_and_b32 v27, 3, v27               ; c4
    v_lshl_add_u32 v28, v24, 2, v28     ; 4g + r4
    v_mul_u32_u24 v28, 288, v28
    v_lshl_add_u32 v{V_T2}, v27, 3, v28
    v_add_u32 v{V_T2+1}, {3*SLOT}, v{V_T2}
    s_mul_i32 s{S_MW}, s20, 5120
    s_lshl_b32 s{S_T}, s20, 11
    v_lshl_add_u32 v{V_HL}, v1, 4, s{S_T}
    """)
    for d in range(4):
        e.raw(f"""
        s_add_u32 s34, s25, {d}
        s_and_b32 s34, s34, 3               ; j'
        s_lshl_b32 s35, s24, 2
        s_add_u32 s35, s35, s34             ; s'
        s_lshl_b32 s36, s21, 4
        s_add_u32 s36, s36, s35
        s_mul_i32 s{S_HB+d}, s36, 73728
        s_and_b32 s34, s34, 1               ; parity
        s_mul_i32 s35, s35, {288*1152}
        s_mul_i32 s36, s25, 288
        s_add_u32 s35, s35, s36
        s_mul_i32 s36, s34, {160*1152}
        s_add_u32 s{70+d}, s35, s36         ; RA
        s_mul_i32 s36, s34, {128*1152}
        s_sub_u32 s{74+d}, s35, s36
        """)
    seq = ksteps2()
    e.raw("s_lshr_b32 s34, s20, 1\ns_cmp_eq_u32 s34, 0")
    for c in range(18):
        vals = []
        for ks in range(2):
            d, i = seq[2 * c + ks]
            base = (70 if i < 4 else 74) + d
            vals.append((base, 32 * i * 1152))
        e.raw(f"""
        s_add_u32 s35, s{vals[0][0]}, {vals[0][1]}
        s_add_u32 s36, s{vals[1][0]}, {vals[1][1]}
        s_cmp_eq_u32 s34, 0
        s_cselect_b32 s{S_SO+c}, s35, s36""")

def w2_dma_items(C):
    slot = C % NS
    items = [(f"s_add_u32 m0, s{S_MW}, {slot*SLOT}", 's', None)]
    for q in range(4):
        items.append((f"buffer_load_dwordx4 v{V_W2+q}, s[{S_W2}:{S_W2+3}], s{S_SO+C} offen offset:{q*1024} lds", 'm', ('W', C)))
    items.append((f"s_add_u32 m0, s{S_MW}, {slot*SLOT+4096}", 's', None))
    items.append((f"buffer_load_dwordx4 v{V_W2+4}, s[{S_W2}:{S_W2+3}], s{S_SO+C} offen lds", 'm', ('W', C)))
    return items

def h_load_items(q):
    d, i = ksteps2()[q]
    dst = AH + 8 * (q % HD)
    it = [(f"s_add_u32 s{S_T+2}, s{S_HB+d}, {i*8192}", 's', None)]
    for t in range(2):
        it.append((f"buffer_load_dwordx4 a[{dst+4*t}:{dst+4*t+3}], v{V_HL}, s[{S_WS}:{S_WS+3}], s{S_T+2} offen offset:{t*1024} sc1", 'm', ('H', q)))
    return it

def tr2_read(q, nt, h, dst):
    C, ks = q // 2, q % 2
    slot = C % NS
    vb = V_T2 + (1 if slot >= 3 else 0)
    off = (slot % 3) * SLOT + ks * 10240 + h * 5120 + nt * 32
    return f"ds_read_b64_tr_b16 a[{dst}:{dst+1}], v{vb} offset:{off}"

def gen_k2(name):
    e = Emitter()
    e.raw(f"""
    s_cmp_ge_u32 s2, 256
    s_cbranch_scc1 L_{name}_end
    s_load_dwordx2 s[38:39], s[0:1], 24
    s_load_dwordx2 s[42:43], s[0:1], 56
    """)
    decode_ids(e)
    e.raw("s_nop 3")
    p2_setup(e)
    e.raw("s_waitcnt lgkmcnt(0)")
    srd(e, S_W2, 38, W2_BYTES); srd(e, S_WS, 42, WS_BYTES)
    for q in range(2): emit_now(e, h_load_items(q))
    emit_now(e, w2_dma_items(0))
    for C in range(1, 5):
        emit_now(e, w2_dma_items(C))
        for q in (2 * C, 2 * C + 1):
            if q < HD: emit_now(e, h_load_items(q))
    e.wait_vm([('W', 0)])
    e.raw("s_barrier")
    for nt in range(9):
        for h in range(2): e.ds(tr2_read(0, nt, h, AW2 + 4 * nt + 2 * h), ('WF', 0, nt))
    NQ = 36
    for q in range(NQ):
        cur = AW2 + 36 * (q % 2); nxt = AW2 + 36 * ((q + 1) % 2)
        g0 = e.gap; ngap = 18
        have_next = q + 1 < NQ
        reads = [(tr2_read(q + 1, nt, h, nxt + 4 * nt + 2 * h), ('WF', q + 1, nt)) for nt in range(9) for h in range(2)] if have_next else []
        pre0 = []
        if have_next and (q + 1) % 2 == 0:
            pre0 = ["s_barrier"]
            nC = (q + 1) // 2
            if nC >= 2 and nC + 3 < 18:
                push_items(e, 'dmaW', w2_dma_items(nC + 3), g0 + 1, g0 + ngap + 14)
        if have_next and (q + 1) % 2 == 1 and q + 2 < NQ:
            tags = [('W', (q + 2) // 2)]
            e.push('wait', (lambda tags=tags: e.vm_wait_text(tags)), 'w', early=g0 + ngap - 1, late=g0 + ngap - 1)
        qn = q + HD - 1
        if q >= 1 and qn < NQ:
            for (tx, k, tag) in h_load_items(qn): e.push('dmaH', tx, k, tag, early=g0 + 1, late=g0 + ngap - 2)
        hb = AH + 8 * (q % HD)
        for nt in range(9):
            for t in range(2):
                gi = 2 * nt + t
                A = f"a[{cur+4*nt}:{cur+4*nt+3}]"
                B = f"a[{hb+4*t}:{hb+4*t+3}]"
                D = f"v[{ACC2+8*nt+4*t}:{ACC2+8*nt+4*t+3}]"
                Cc = "0" if q == 0 else D
                if gi == 0:
                    w = e.vm_wait_text([('H', q)])
                    if w: e.raw(w)
                if t == 0 and nt % 4 == 0:
                    w = e.lg_wait_text([('WF', q, min(nt + 3, 8))])
                    if w: e.raw(w)
                e.mfma_gap(f"v_mfma_f32_16x16x32_bf16 {D}, {A}, {B}, {Cc}", pre=pre0 if gi == 0 else (), dss=[reads[gi]] if have_next else [])
    e.flush_streams()
    e.raw(f"""
    s_nop 7
    s_nop 7
    s_lshl_b32 s34, s24, 4
    s_add_u32 s34, s34, s21
    s_lshl_b32 s34, s34, 2
    s_add_u32 s34, s34, s25
    s_lshl_b32 s34, s34, 2
    s_add_u32 s34, s34, s20
    s_mul_i32 s34, s34, {18*1024}
    s_add_u32 s34, s34, {P_OFF}
    v_lshlrev_b32 v{V_PS}, 4, v1
    """)
    for k in range(18):
        if k % 4 == 0 and k: e.raw(f"s_add_u32 s34, s34, 4096")
        r = ACC2 + 4 * k
        e.vmem(f"buffer_store_dwordx4 v[{r}:{r+3}], v{V_PS}, s[{S_WS}:{S_WS+3}], s34 offen offset:{(k%4)*1024} sc1")
    e.wait_vm_all()
    e.raw(f"L_{name}_end:\ns_endpgm")
    print(name, e.stats, file=sys.stderr)
    return khead(name) + e.text() + kd(name, 512, 256)

def gen_k3(name):
    e = Emitter()
    e.raw(f"""
    s_cmp_ge_u32 s2, 256
    s_cbranch_scc1 L_{name}_end
    s_load_dwordx4 s[36:39], s[0:1], 32      ; b2, out
    s_load_dwordx2 s[42:43], s[0:1], 56
    s_lshr_b32 s21, s2, 4       ; m
    s_lshr_b32 s25, s2, 2
    s_and_b32 s25, s25, 3       ; j
    s_and_b32 s20, s2, 3        ; w
    v_lshlrev_b32 v2, 4, v0
    s_waitcnt lgkmcnt(0)
    """)
    srd(e, 4, 36, B2_BYTES); srd(e, 8, 38, OUT_BYTES); srd(e, S_WS, 42, WS_BYTES)
    e.raw(f"""
    s_lshl_b32 s34, s21, 2
    s_add_u32 s34, s34, s25
    s_lshl_b32 s34, s34, 2
    s_add_u32 s34, s34, s20
    s_mul_i32 s34, s34, {18*1024}
    s_add_u32 s34, s34, {P_OFF}
    v_lshrrev_b32 v3, 4, v0
    v_lshlrev_b32 v3, 3, v3     ; 8 g
    s_mul_i32 s35, s25, 288
    """)
    for nt in range(9):
        e.vmem(f"buffer_load_dwordx2 v[{4+2*nt}:{5+2*nt}], v3, s[4:7], s35 offen offset:{32*nt}", 'b')
    for kq in range(4):
        base = 32 if kq == 0 else 104
        e.raw(f"s_add_u32 s33, s34, {kq*16*4*4*18*1024}")
        for k in range(18):
            if k % 4 == 0 and k: e.raw("s_add_u32 s33, s33, 4096")
            e.vmem(f"buffer_load_dwordx4 v[{base+4*k}:{base+4*k+3}], v2, s[{S_WS}:{S_WS+3}], s33 offen offset:{(k%4)*1024} sc1", (kq, k))
        if kq:
            e.wait_vm_all()
            for r in range(72): e.raw(f"v_add_f32 v{32+r}, v{32+r}, v{104+r}")
    e.raw(f"""
    s_lshl_b32 s33, s21, 7
    s_lshl_b32 s34, s20, 5
    s_add_u32 s33, s33, s34
    s_mul_i32 s33, s33, 1152
    s_add_u32 s33, s33, s35
    v_and_b32 v22, 15, v0
    v_mul_u32_u24 v22, 1152, v22
    v_add_u32 v22, v22, v3
    v_add_u32 v23, {16*1152}, v22
    """)
    for nt in range(9):
        b = 4 + 2 * nt
        for t in range(2):
            r = 32 + 8 * nt + 4 * t
            e.raw(f"""
            v_lshlrev_b32 v24, 16, v{b}
            v_and_b32 v25, 0xffff0000, v{b}
            v_lshlrev_b32 v26, 16, v{b+1}
            v_and_b32 v27, 0xffff0000, v{b+1}
            v_add_f32 v24, v24, v{r}
            v_add_f32 v25, v25, v{r+1}
            v_add_f32 v26, v26, v{r+2}
            v_add_f32 v27, v27, v{r+3}
            v_cvt_pk_bf16_f32 v{r}, v24, v25
            v_cvt_pk_bf16_f32 v{r+1}, v26, v27
            """)
            e.vmem(f"buffer_store_dwordx2 v[{r}:{r+1}], v{22+t}, s[8:11], s33 offen offset:{32*nt}")
    e.wait_vm_all()
    e.raw(f"L_{name}_end:\ns_endpgm")
    return khead(name) + e.text() + kd(name, 184, 184)

def main(path):
    hdr = f"""; MLP: out = relu(x@w1+b1)^2 @ w2 + b2   (checkpoint 1: three launches)
; @launch kernel=mlp_p1_kernel grid=(256,1,1) block=(256,1,1) lds={LDS_BYTES}
; @launch kernel=mlp_p2_kernel grid=(256,1,1) block=(256,1,1) lds={NS*SLOT}
; @launch kernel=mlp_red_kernel grid=(256,1,1) block=(64,1,1) lds=0
.amdgcn_target "amdgcn-amd-amdhsa--gfx950"
.text
"""
    txt = hdr + gen_k1("mlp_p1_kernel") + gen_k2("mlp_p2_kernel") + gen_k3("mlp_red_kernel")
    open(path, "w").write(txt)

if __name__ == "__main__":
    if len(sys.argv) > 2 and sys.argv[2] == "stamp": STAMP = True
    main(sys.argv[1] if len(sys.argv) > 1 else "cp1.s")
```

```python
import heapq

class Item:
    __slots__ = ("text", "kind", "tag", "early", "late", "stream", "seq")
    def __init__(self, text, kind, tag=None, early=0, late=None, stream=None):
        self.text, self.kind, self.tag, self.early, self.late, self.stream = text, kind, tag, early, late, stream
        self.seq = 0

class Emitter:
    def __init__(self):
        self.lines = []
        self.vm = []
        self.vm_gap = []
        self.log = []
        self.vm_done = 0
        self.lg = []
        self.lg_done = 0
        self.streams = {}
        self.gap = 0
        self.seq = 0
        self.stats = {"mfma": 0, "fill": 0, "over": 0}

    def raw(self, s):
        for line in s.strip("\n").split("\n"):
            t = line.strip()
            if not t: continue
            self.lines.append(t if t.endswith(":") else "    " + t)
    def comment(self, s): self.lines.append("    ; " + s)
    def vmem(self, s, tag=None):
        if s.rstrip().endswith(" lds") and self.lines and " m0," in self.lines[-1]:
            self.lines.append("    s_nop 0")
        self.lines.append("    " + s); self.vm.append(tag); self.vm_gap.append(self.gap)
    def ds(self, s, tag=None):
        self.lines.append("    " + s); self.lg.append(tag)

    def _need(self, ops, tags):
        last = -1
        for i in range(len(ops) - 1, -1, -1):
            if ops[i] in tags:
                last = i; break
        return last
    def vm_wait_text(self, tags):
        if not isinstance(tags, list): tags = [tags]
        for q in self.streams.values():
            for it in q:
                assert not (it.kind == 'm' and it.tag in set(tags)), f"vm wait on {tags} while an op with that tag is still queued"
        last = self._need(self.vm, set(tags))
        assert last >= 0, f"vm wait on tags never issued: {tags}"
        if last < self.vm_done: return None
        n = len(self.vm) - 1 - last
        n = min(n, 63)
        newly = list(range(self.vm_done, len(self.vm) - n))
        self.log.append((self.gap, tags, n, [(self.vm[i], self.vm_gap[i]) for i in newly]))
        self.vm_done = len(self.vm) - n
        return f"s_waitcnt vmcnt({n})"
    def lg_wait_text(self, tags):
        if not isinstance(tags, list): tags = [tags]
        last = self._need(self.lg, set(tags))
        assert last >= 0, f"lgkm wait on tags never issued: {tags}"
        if last < self.lg_done: return None
        n = len(self.lg) - 1 - last
        n = min(n, 15)
        self.lg_done = len(self.lg) - n
        return f"s_waitcnt lgkmcnt({n})"
    def wait_vm(self, tags):
        t = self.vm_wait_text(tags)
        if t: self.lines.append("    " + t)
    def wait_lg(self, tags):
        t = self.lg_wait_text(tags)
        if t: self.lines.append("    " + t)
    def wait_all(self):
        self.lines.append("    s_waitcnt vmcnt(0) lgkmcnt(0)")
        self.vm_done = len(self.vm); self.lg_done = len(self.lg)
    def wait_vm_all(self):
        self.lines.append("    s_waitcnt vmcnt(0)")
        self.vm_done = len(self.vm)
    def wait_lg_all(self):
        self.lines.append("    s_waitcnt lgkmcnt(0)")
        self.lg_done = len(self.lg)

    def push(self, stream, text, kind, tag=None, early=0, late=None):
        it = Item(text, kind, tag, early, late, stream)
        self.seq += 1; it.seq = self.seq
        self.streams.setdefault(stream, []).append(it)
        return it
    def _emit_item(self, it):
        t = it.text() if callable(it.text) else it.text
        if t is None: return False
        if it.kind == 'm': self.vmem(t, it.tag)
        elif it.kind == 'd': self.ds(t, it.tag)
        else: self.lines.append("    " + t)
        return True
    def _candidates(self):
        c = []
        for name, q in self.streams.items():
            if q and q[0].early <= self.gap:
                c.append(q[0])
        return c
    def fill(self, budget):
        n = 0
        while True:
            c = self._candidates()
            if not c: break
            due = [i for i in c if i.late is not None and i.late <= self.gap]
            if due:
                it = min(due, key=lambda i: (i.late, i.seq))
            elif n < budget:
                it = min(c, key=lambda i: (i.late if i.late is not None else 1 << 30, i.seq))
            else:
                break
            self.streams[it.stream].pop(0)
            if self._emit_item(it):
                n += 1
        if n > budget: self.stats["over"] += n - budget
        self.stats["fill"] += n
        return n
    def flush_streams(self, names=None):
        while True:
            c = [q[0] for nme, q in self.streams.items() if q and (names is None or nme in names)]
            if not c: break
            it = min(c, key=lambda i: i.seq)
            self.streams[it.stream].pop(0)
            self._emit_item(it)
    def pending(self):
        return sum(len(q) for q in self.streams.values())

    def mfma_gap(self, mfma, pre=(), dss=(), budget=None):
        self.lines.append("    " + mfma)
        self.stats["mfma"] += 1
        used = 0
        for p in pre:
            t = p() if callable(p) else p
            if t: self.lines.append("    " + t); used += 1
        for (t, tag) in dss:
            self.ds(t, tag); used += 1
        b = max(0, 2 - used) if budget is None else budget
        self.fill(b)
        self.gap += 1

    def text(self):
        return "\n".join(self.lines) + "\n"
```

```python
import sys, os
from emit import Emitter

OPT = dict(kv.split("=") if "=" in kv else (kv, 1) for kv in os.environ.get("GOPT", "").split(",") if kv)
def opt(k, d=None): return OPT.get(k, d)

KNAME = "standalone__dense_activation_squared_relu__prompt_kernel"
X_BYTES, W1_BYTES, B1_BYTES, W2_BYTES, B2_BYTES, OUT_BYTES = 2359296, 5308416, 9216, 5308416, 1152, 2359296
WS_BYTES = 268435456
H_OFF = 0
P_OFF = 20 << 20
FL_OFF = 40 << 20
EP_OFF = 41 << 20
STAMP_OFF = 128 << 20
OOB = 0x40000000
SLOT = 20480
NSLOT = 8
LDS_BYTES = NSLOT * SLOT
SPIN_LIMIT = 1 << 16

S_X, S_W1, S_B1, S_WS, S_W2, S_OUT = 4, 8, 12, 16, 20, 24
S_W, S_M, S_S, S_PAR, S_KQ, S_J = 28, 29, 30, 31, 32, 33
S_CBA, S_CBB, S_WSO, S_MW, S_MX = 34, 35, 36, 38, 39
S_HSO, S_T, S_T2, S_N = 40, 41, 42, 43
S_TW, S_TX = 44, 53
S_SO2 = 62
S_HB = 80
S_U = 84
S_DBG = 92
S_B2P = 96
S_MODE, S_XCC = 98, 99
V_ST = 62
KA = 64
V_WA, V_WB, V_X, V_W2 = 2, 6, 11, 15
V_TA, V_TB, V_T2, V_XR = 20, 36, 42, 45
V_HS, V_BI, V_FL, V_FS, V_P, V_NP = 47, 48, 49, 50, 51, 52
V_T = 53
ACC_A, ACC_B, BIASB = 64, 128, 208
AX, AW, AH = 0, 144, 0
HD = int(opt("HD", 16))
STAMP = bool(opt("stamp"))

def acc2(nt, t):
    return (BIASB + 8 * nt + 4 * t) if nt < 5 else (ACC_A + 16 * (nt - 5) + 8 + 4 * t)

def srd(e, dst, ptr, nbytes):
    e.raw(f"s_mov_b32 s{dst}, s{ptr}\ns_mov_b32 s{dst+1}, s{ptr+1}\ns_mov_b32 s{dst+2}, {nbytes}\ns_mov_b32 s{dst+3}, 0x20000")

def stamp(e, idx):
    if not STAMP: return
    ins = "s_memtime" if opt("cyc") else "s_memrealtime"
    e.raw(f"{ins} s[90:91]\ns_waitcnt lgkmcnt(0)\nv_writelane_b32 v{V_ST}, s90, {idx}")

def ksteps2():
    seq = [(0, i) for i in range(9)]
    seq += [(d, i) for d in (1, 2, 3) for i in range(4)]
    seq += [(d, i) for d in (1, 2, 3) for i in range(4, 9)]
    return seq
SEQ2 = ksteps2()
STEPS = [('A', k) for k in range(18)] + [('B', k) for k in range(18)] + [('P', q) for q in range(36)]
def nfrag(kind): return {'A': 8, 'B': 10, 'P': 9}[kind]

class Gen:
    def __init__(self):
        self.e = Emitter()
        self.wslot = {}
        self.free = []
        self.slow = []
        self.nlabel = 0

    def setup_early(self):
        e = self.e
        e.raw(f"""
        s_and_b32 s84, s2, 7
        s_lshr_b32 s85, s2, 3
        v_lshrrev_b32 v{V_T}, 6, v0
        v_and_b32 v1, 63, v0
        s_and_b32 s{S_KQ}, s84, 3
        v_readfirstlane_b32 s{S_W}, v{V_T}
        s_lshr_b32 s86, s84, 2
        s_lshr_b32 s87, s85, 2
        s_and_b32 s{S_J}, s85, 3
        s_lshl_b32 s86, s86, 3
        s_add_u32 s{S_M}, s86, s87
        s_lshl_b32 s{S_S}, s{S_KQ}, 2
        s_add_u32 s{S_S}, s{S_S}, s{S_J}
        s_and_b32 s{S_PAR}, s{S_J}, 1
        """)
        rot = opt("rot", "0")
        if rot == "0": e.raw("s_mov_b32 s84, 0")
        elif rot == "j": e.raw(f"s_mul_i32 s84, s{S_J}, 9\ns_lshr_b32 s84, s84, 2")
        elif rot == "j2": e.raw(f"s_and_b32 s84, s{S_J}, 1\ns_mul_i32 s84, s84, 4")
        elif rot == "jm": e.raw(f"s_lshl_b32 s84, s{S_J}, 1\ns_add_u32 s84, s84, s87\ns_cmp_ge_u32 s84, 9\ns_cselect_b32 s85, 9, 0\ns_sub_u32 s84, s84, s85")
        e.raw(f"s_mul_i32 s85, s{S_M}, 147456")
        for c in range(9):
            e.raw(f"""
            s_mul_i32 s{S_TW+c}, s84, 589824
            s_lshl_b32 s86, s84, 7
            s_add_u32 s{S_TX+c}, s85, s86""")
            if c < 8: e.raw("s_add_u32 s84, s84, 1\ns_cmp_eq_u32 s84, 9\ns_cselect_b32 s84, 0, s84")
        e.raw(f"""
        s_mul_i32 s{S_CBA}, s{S_S}, 576
        s_mul_i32 s{S_T}, s{S_PAR}, 320
        s_add_u32 s{S_CBB}, s{S_CBA}, 256
        s_add_u32 s{S_CBA}, s{S_CBA}, s{S_T}
        s_lshl_b32 s{S_T}, s{S_PAR}, 8
        s_sub_u32 s{S_CBB}, s{S_CBB}, s{S_T}
        s_lshl_b32 s{S_MX}, s{S_W}, 12
        s_mul_i32 s{S_MW}, s{S_W}, 5120
        """)
        t = V_T
        e.raw(f"""
        s_mul_i32 s{S_T}, s{S_W}, {32*1152}
        v_lshrrev_b32 v{t}, 3, v1
        v_lshrrev_b32 v{t+1}, 4, v1
        v_and_b32 v{t+2}, 7, v1
        v_mul_u32_u24 v{t}, 1152, v{t}
        v_add_u32 v{t}, s{S_T}, v{t}
        """)
        for q in range(4):
            e.raw(f"""
            v_add_u32 v{t+3}, {4*q}, v{t+1}
            v_and_b32 v{t+3}, 7, v{t+3}
            v_xor_b32 v{t+3}, v{t+2}, v{t+3}
            v_lshl_add_u32 v{t+3}, v{t+3}, 4, v{t}
            v_add_u32 v{V_X+q}, {q*(8*1152-1024)}, v{t+3}""")
        e.raw(f"""
        s_mul_i32 s{S_T}, s{S_W}, {16*9216}
        v_and_b32 v{t+2}, 15, v1
        v_mul_u32_u24 v{t}, 9216, v{t+1}
        v_add_u32 v{t}, s{S_T}, v{t}
        v_lshlrev_b32 v{t+3}, 1, v{t+1}
        v_xor_b32 v{t+3}, v{t+2}, v{t+3}
        v_xor_b32 v{t+4}, 8, v{t+3}
        v_lshl_add_u32 v{t+3}, v{t+3}, 4, v{t}
        v_lshl_add_u32 v{t+4}, v{t+4}, 4, v{t}
        v_mov_b32 v{V_WA}, v{t+3}
        v_add_u32 v{V_WA+1}, {4*9216-1024}, v{t+3}
        v_add_u32 v{V_WA+2}, {8*9216-2048}, v{t+4}
        v_add_u32 v{V_WA+3}, {12*9216-3072}, v{t+4}
        v_lshlrev_b32 v{V_BI}, 3, v{t+1}
        """)

    def setup_reads_A(self):
        t = V_T
        L = f"""
        v_lshrrev_b32 v{t}, 4, v1
        v_and_b32 v{t+1}, 1, v{t}
        v_lshrrev_b32 v{t+2}, 1, v{t}
        v_and_b32 v{t+3}, 15, v1
        v_lshrrev_b32 v{t+4}, 2, v{t+3}
        v_and_b32 v{t+3}, 3, v{t+3}
        v_lshl_add_u32 v{t+5}, v{t+1}, 3, v{t+4}
        v_lshlrev_b32 v{t+5}, 8, v{t+5}
        v_lshl_add_u32 v{t+5}, v{t+2}, 12, v{t+5}
        v_lshl_add_u32 v{t+5}, v{t+3}, 3, v{t+5}
        v_lshl_add_u32 v{t+4}, v{t+1}, 2, v{t+4}
        v_lshl_add_u32 v{t+5}, v{t+4}, 5, v{t+5}
        """.strip().split("\n")
        L = [x.strip() for x in L]
        for ft in range(8):
            L.append(f"v_xor_b32 v{V_TA+ft}, {ft*32}, v{t+5}")
        for ft in range(8):
            L.append(f"v_add_u32 v{V_TA+8+ft}, {3*SLOT}, v{V_TA+ft}")
        L += [x.strip() for x in f"""
        v_and_b32 v{t}, 15, v1
        v_lshrrev_b32 v{t+1}, 4, v1
        v_lshrrev_b32 v{t+2}, 1, v{t}
        v_xor_b32 v{t+1}, v{t+1}, v{t+2}
        v_lshlrev_b32 v{t+1}, 4, v{t+1}
        v_lshl_add_u32 v{t+1}, v{t}, 7, v{t+1}
        v_add_u32 v{t+1}, {5*SLOT}, v{t+1}
        v_add_u32 v{V_XR}, s{S_MX}, v{t+1}
        v_xor_b32 v{t+1}, 64, v{t+1}
        v_add_u32 v{V_XR+1}, s{S_MX}, v{t+1}
        """.strip().split("\n")]
        return L

    def setup_late(self):
        t = 56
        L = []
        def v(s): L.extend([(x.strip(), 'v') for x in s.strip().split("\n")])
        def s(s_): L.extend([(x.strip(), 's') for x in s_.strip().split("\n")])
        s(f"s_mul_i32 s84, s{S_W}, {16*9216}")
        for q in range(5):
            v(f"""
            v_add_u32 v{t}, {64*q}, v1
            v_mul_u32_u24 v{t+1}, 205, v{t}
            v_lshrrev_b32 v{t+1}, 12, v{t+1}
            v_mul_u32_u24 v{t+2}, 20, v{t+1}
            v_sub_u32 v{t+2}, v{t}, v{t+2}
            v_lshrrev_b32 v{t+3}, 2, v{t+1}
            v_and_b32 v{t+3}, 2, v{t+3}
            v_xor_b32 v{t+2}, v{t+2}, v{t+3}
            v_mul_u32_u24 v{t+3}, 9216, v{t+1}
            v_lshl_add_u32 v{t+3}, v{t+2}, 4, v{t+3}
            v_add_u32 v{V_WB+q}, s84, v{t+3}""")
            if q & 3: v(f"v_subrev_u32 v{V_WB+q}, {(q&3)*1024}, v{V_WB+q}")
        v(f"""
        v_lshrrev_b32 v{t}, 4, v1
        v_and_b32 v{t+1}, 1, v{t}
        v_lshrrev_b32 v{t+2}, 1, v{t}
        v_and_b32 v{t+3}, 15, v1
        v_lshrrev_b32 v{t+4}, 2, v{t+3}
        v_and_b32 v{t+3}, 3, v{t+3}
        v_lshl_add_u32 v{t+4}, v{t+1}, 3, v{t+4}
        v_mul_u32_u24 v{t+4}, 320, v{t+4}
        v_mul_u32_u24 v{t+2}, 5120, v{t+2}
        v_add_u32 v{t+4}, v{t+4}, v{t+2}
        v_lshl_add_u32 v{t+4}, v{t+3}, 3, v{t+4}
        v_lshlrev_b32 v{t+1}, 5, v{t+1}
        v_add_u32 v{V_TB}, v{t+4}, v{t+1}
        v_sub_u32 v{V_TB+1}, v{t+4}, v{t+1}
        v_add_u32 v{V_TB+2}, {3*SLOT}, v{V_TB}
        v_add_u32 v{V_TB+3}, {3*SLOT}, v{V_TB+1}
        v_add_u32 v{V_TB+4}, {6*SLOT}, v{V_TB}
        v_add_u32 v{V_TB+5}, {6*SLOT}, v{V_TB+1}""")
        s(f"""
        s_lshl_b32 s84, s{S_W}, 11
        s_lshl_b32 s85, s{S_M}, 4
        s_add_u32 s85, s85, s{S_S}
        s_mul_i32 s{S_HSO}, s85, 73728""")
        v(f"v_lshl_add_u32 v{V_HS}, v1, 4, s84")
        s(f"s_lshl_b32 s85, s85, 7\ns_add_u32 s85, s85, {FL_OFF}")
        v(f"""
        v_mov_b32 v{t}, s85
        v_mov_b32 v{t+1}, {OOB}
        v_cmp_eq_u32 vcc, 0, v1
        v_nop
        v_nop
        v_cndmask_b32 v{V_FS}, v{t+1}, v{t}, vcc""")
        s(f"""
        s_lshl_b32 s85, s{S_M}, 2
        s_add_u32 s85, s85, s{S_KQ}
        s_lshl_b32 s85, s85, 9
        s_add_u32 s85, s85, {FL_OFF}""")
        v(f"""
        v_and_b32 v{t}, 3, v1
        v_min_u32 v{t}, 2, v{t}
        v_add_u32 v{t}, 1, v{t}
        v_add_u32 v{t}, s{S_J}, v{t}
        v_and_b32 v{t}, 3, v{t}
        v_lshlrev_b32 v{t}, 7, v{t}
        v_add_u32 v{V_FL}, s85, v{t}""")
        L.append(("@P2", 'mark'))
        s(f"s_and_b32 s84, s{S_W}, 1\ns_mul_i32 s84, s84, {16*1152}")
        for q in range(5):
            v(f"""
            v_add_u32 v{t}, {64*q}, v1
            v_mul_u32_u24 v{t+1}, 57, v{t}
            v_lshrrev_b32 v{t+1}, 10, v{t+1}
            v_mul_u32_u24 v{t+2}, 18, v{t+1}
            v_sub_u32 v{t+2}, v{t}, v{t+2}
            v_mul_u32_u24 v{t+3}, 1152, v{t+1}
            v_lshl_add_u32 v{t+3}, v{t+2}, 4, v{t+3}
            v_add_u32 v{V_W2+q}, s84, v{t+3}""")
            if q & 3: v(f"v_subrev_u32 v{V_W2+q}, {(q&3)*1024}, v{V_W2+q}")
        v(f"""
        v_mov_b32 v{t}, {OOB}
        v_cmp_gt_u32 vcc, 32, v1
        v_nop
        v_nop
        v_cndmask_b32 v{V_W2+4}, v{t}, v{V_W2+4}, vcc""")
        v(f"""
        v_lshrrev_b32 v{t}, 4, v1
        v_and_b32 v{t+3}, 15, v1
        v_lshrrev_b32 v{t+4}, 2, v{t+3}
        v_and_b32 v{t+3}, 3, v{t+3}
        v_lshl_add_u32 v{t+4}, v{t}, 2, v{t+4}
        v_mul_u32_u24 v{t+4}, 288, v{t+4}
        v_lshl_add_u32 v{V_T2}, v{t+3}, 3, v{t+4}
        v_add_u32 v{V_T2+1}, {3*SLOT}, v{V_T2}
        v_add_u32 v{V_T2+2}, {6*SLOT}, v{V_T2}""")
        s(f"""
        s_mul_i32 s0, s{S_PAR}, {160*1152}
        s_sub_u32 s1, {160*1152}, s0
        s_mul_i32 s3, s{S_PAR}, {-128*1152}
        s_sub_u32 s37, {-128*1152}, s3
        s_mul_i32 s88, s{S_J}, 288""")
        for d in range(4):
            s(f"""
            s_add_u32 s{84+d}, s{S_J}, {d}
            s_and_b32 s{84+d}, s{84+d}, 3
            s_lshl_b32 s89, s{S_KQ}, 2
            s_add_u32 s{84+d}, s{84+d}, s89
            s_lshl_b32 s89, s{S_M}, 4
            s_add_u32 s89, s89, s{84+d}
            s_mul_i32 s{S_HB+d}, s89, 73728
            s_mul_i32 s{84+d}, s{84+d}, {288*1152}
            s_add_u32 s{84+d}, s{84+d}, s88""")
        for c in range(18):
            (d0, i0), (d1, i1) = SEQ2[2 * c], SEQ2[2 * c + 1]
            def corr(d, i): return (0 if d % 2 == 0 else 1) if i < 4 else (3 if d % 2 == 0 else 37)
            s(f"""
            s_add_u32 s88, s{84+d0}, s{corr(d0,i0)}
            s_add_u32 s88, s88, {32*i0*1152}
            s_add_u32 s89, s{84+d1}, s{corr(d1,i1)}
            s_add_u32 s89, s89, {32*i1*1152}
""")
            L.append((f"s_cmp_lt_u32 s{S_W}, 2\n    s_cselect_b32 s{S_SO2+c}, s88, s89", 's'))
        return L

    def w_items(self, C):
        slot = self.wslot[C]
        if C < 9:
            it = [(f"s_add_u32 s{S_WSO}, s{S_CBA}, s{S_TW+C}", 's', None),
                  (f"s_add_u32 m0, s{S_MX}, {slot*SLOT}", 's', None)]
            for q in range(4):
                it.append((f"buffer_load_dwordx4 v{V_WA+q}, s[{S_W1}:{S_W1+3}], s{S_WSO} offen offset:{q*1024} lds", 'm', ('W', C)))
            return it
        if C < 18:
            vb, sr, so = V_WB, S_W1, S_WSO
            it = [(f"s_add_u32 s{S_WSO}, s{S_CBB}, s{S_TW+C-9}", 's', None)]
        else:
            vb, sr, so = V_W2, S_W2, S_SO2 + C - 18
            it = []
        it.append((f"s_add_u32 m0, s{S_MW}, {slot*SLOT}", 's', None))
        for q in range(4):
            it.append((f"buffer_load_dwordx4 v{vb+q}, s[{sr}:{sr+3}], s{so} offen offset:{q*1024} lds", 'm', ('W', C)))
        it.append((f"s_add_u32 m0, s{S_MW}, {slot*SLOT+4096}", 's', None))
        it.append((f"buffer_load_dwordx4 v{vb+4}, s[{sr}:{sr+3}], s{so} offen lds", 'm', ('W', C)))
        return it
    def x_items(self, c):
        slot = 5 + c % 3
        it = [(f"s_add_u32 m0, s{S_MX}, {slot*SLOT}", 's', None)]
        for q in range(4):
            it.append((f"buffer_load_dwordx4 v{V_X+q}, s[{S_X}:{S_X+3}], s{S_TX+c} offen offset:{q*1024} lds", 'm', ('X', c)))
        return it
    def emit_now(self, items):
        e = self.e; prev = False
        for (t, k, tag) in items:
            if k == 'm':
                if prev: e.raw("s_nop 0")
                e.vmem(t, tag)
            else: e.raw(t)
            prev = (k == 's' and " m0," in t)
    def push_dma(self, items, g0, span, late=None):
        e = self.e
        q = e.streams.get('dma', [])
        if q: g0 = max(g0, q[-1].early + 1)
        nm = sum(1 for it in items if it[1] == 'm')
        step = max(1, span // max(1, nm))
        g = g0
        for (t, kind, tag) in items:
            if kind == 'm':
                e.push('dma', t, kind, tag, early=g, late=g + 2)
                g += step
            else:
                e.push('dma', t, kind, tag, early=max(g0, g - 2), late=max(g0, g - 1) + 1)
                if " m0," in t and g == g0: g += 1
        return g
    def frag_reads(self, si):
        kind, k = STEPS[si]
        C, ks = si // 2, si % 2
        slot = self.wslot[C]
        dst0 = AW + 40 * (si % 2)
        out = []
        for f in range(nfrag(kind)):
            for h in range(2):
                d = dst0 + 4 * f + 2 * h
                if kind == 'A':
                    vb = V_TA + f + (8 if slot >= 3 else 0)
                    off = (slot % 3) * SLOT + ks * 8192 + h * 1024
                elif kind == 'B':
                    vb = V_TB + (f & 1) + 2 * (slot // 3)
                    off = (slot % 3) * SLOT + ks * 10240 + h * 1280 + f * 32
                else:
                    vb = V_T2 + slot // 3
                    off = (slot % 3) * SLOT + ks * 10240 + h * 5120 + f * 32
                out.append((f"ds_read_b64_tr_b16 a[{d}:{d+1}], v{vb} offset:{off}", ('WF', si, f)))
        return out
    def x_reads(self, kt):
        c, p = kt // 2, kt % 2
        return [(f"ds_read_b128 a[{AX+8*kt+4*t}:{AX+8*kt+4*t+3}], v{V_XR+p} offset:{(c%3)*SLOT + t*2048}", ('XF', kt)) for t in range(2)]

    def bias_load(self, part, base):
        e = self.e
        cb = S_CBA if part == 'A' else S_CBB
        for ft in range(8 if part == 'A' else 10):
            q = base + 4 * ft
            e.vmem(f"buffer_load_dwordx2 v[{q+2}:{q+3}], v{V_BI}, s[{S_B1}:{S_B1+3}], s{cb} offen offset:{32*ft}", ('BI', part))
    def bias_cvt(self, part, base):
        out = []
        for ft in range(8 if part == 'A' else 10):
            q = base + 4 * ft
            out += [f"v_lshlrev_b32 v{q}, 16, v{q+2}", f"v_and_b32 v{q+1}, 0xffff0000, v{q+2}",
                    f"v_lshlrev_b32 v{q+2}, 16, v{q+3}", f"v_and_b32 v{q+3}, 0xffff0000, v{q+3}"]
        return out
    def epi_items(self, acc, il, istore, t):
        P = acc + 16 * il + 4 * t; Q = P + 8
        it = []
        for r in range(4): it.append((f"v_mul_f32 v{P+r}, v{P+r}, |v{P+r}|", 'v', None))
        for r in range(4): it.append((f"v_mul_f32 v{Q+r}, v{Q+r}, |v{Q+r}|", 'v', None))
        it += [(f"v_cvt_pk_bf16_f32 v{P}, v{P}, v{P+1}", 'v', None), (f"v_cvt_pk_bf16_f32 v{P+1}, v{P+2}, v{P+3}", 'v', None),
               (f"v_cvt_pk_bf16_f32 v{P+2}, v{Q}, v{Q+1}", 'v', None), (f"v_cvt_pk_bf16_f32 v{P+3}, v{Q+2}, v{Q+3}", 'v', None)]
        for r in range(4): it.append((f"v_pk_max_i16 v{P+r}, v{P+r}, 0", 'v', None))
        if t == 0: it.append((f"s_add_u32 s{S_T2}, s{S_HSO}, {istore*8192}", 's', None))
        it.append((f"buffer_store_dwordx4 v[{P}:{P+3}], v{V_HS}, s[{S_WS}:{S_WS+3}], s{S_T2} offen offset:{t*1024}" + (" sc1" if opt("hsc1") else ""), 'm', ('HS', 'A' if istore < 4 else 'B')))
        return it

    def poll_check(self, reg, load_text, cond_bad, name):
        self.nlabel += 1
        lb = f"L_{name}_{self.nlabel}"
        self.slow.append(f"""
        {lb}_slow:
        s_mov_b32 s88, {SPIN_LIMIT}
        {lb}_spin:
        {load_text}
        s_waitcnt vmcnt(0)
        {cond_bad}
        s_nop 1
        s_cbranch_vccz {lb}_back
        s_sub_u32 s88, s88, 1
        s_cmp_lg_u32 s88, 0
        s_cbranch_scc1 {lb}_spin
        s_branch {lb}_back
        """)
        return [cond_bad, "s_nop 1", f"s_cbranch_vccnz {lb}_slow", f"{lb}_back:"]

    def build(self):
        e = self.e
        stamp(e, 0)
        e.raw(f"""
        s_cmp_ge_u32 s2, 256
        s_cbranch_scc1 L_end
        s_load_dwordx16 s[{KA}:{KA+15}], s[0:1], 0
        """)
        self.setup_early()
        e.raw("s_waitcnt lgkmcnt(0)")
        srd(e, S_X, KA, X_BYTES); srd(e, S_W1, KA + 2, W1_BYTES); srd(e, S_B1, KA + 4, B1_BYTES)
        self.bias_load('A', ACC_B)
        self.wslot = {0: 0, 1: 1, 2: 2, 3: 3, 4: 4}
        self.emit_now(self.x_items(0)); self.emit_now(self.w_items(0))
        srd(e, S_WS, KA + 14, WS_BYTES); srd(e, S_W2, KA + 6, W2_BYTES); srd(e, S_OUT, KA + 10, OUT_BYTES)
        srd(e, S_DBG, KA + 12, 256)
        e.raw(f"s_mov_b32 s{S_B2P}, s{KA+8}\ns_mov_b32 s{S_B2P+1}, s{KA+9}\ns_getreg_b32 s{S_XCC}, hwreg(HW_REG_XCC_ID, 0, 4)")
        self.emit_now(self.x_items(1)); self.emit_now(self.w_items(1))
        e.raw(f"""
        s_or_b32 s84, s2, s{S_W}
        v_mov_b32 v{V_T}, {OOB}
        v_mov_b32 v{V_T+1}, {EP_OFF}
        v_or_b32 v{V_T+2}, s84, v1
        v_cmp_eq_u32 vcc, 0, v{V_T+2}
        s_nop 1
        v_cndmask_b32 v{V_NP}, v{V_T}, v{V_T+1}, vcc
        """)
        e.vmem(f"buffer_load_dword v{V_P}, v{V_NP}, s[{S_WS}:{S_WS+3}], 0 offen sc1", 'EP')
        for t in self.setup_reads_A(): e.raw(t)
        pro = [self.x_items(2), self.w_items(2), self.w_items(3), self.w_items(4)]
        npro = int(opt("npro", 2))
        for g in pro[:npro]: self.emit_now(g)
        e.wait_vm(('BI', 'A'))
        for t in self.bias_cvt('A', ACC_B): e.raw(t)
        stamp(e, 1)
        e.wait_vm([('W', 0), ('X', 0)])
        e.raw("s_barrier")
        stamp(e, 2)
        for (t, tag) in self.frag_reads(0): e.ds(t, tag)
        for (t, tag) in self.x_reads(0): e.ds(t, tag)
        g = 0
        for grp in pro[npro:]:
            g = self.push_dma(grp, g, 10)
        parts = [[], []]; pi = 0
        for (t, k) in self.setup_late():
            if k == 'mark': pi = 1; continue
            parts[pi].append((t, k))
        d0 = int(opt("setup_late", 150)); d1 = 16 * 18 + 20 * int(opt("setup_late2", 3))
        for (lst, start, end) in ((parts[0], 4, d0), (parts[1], d0, d1)):
            for i_, (t, k) in enumerate(lst):
                e.push('setup', t, k, early=0, late=start + ((i_ + 1) * (end - start)) // len(lst))
        nextW = 5
        self.free = []
        freed_x = set()
        gap_of_step = {}
        g_acc = 0
        for si, (kind, k) in enumerate(STEPS):
            gap_of_step[si] = g_acc; g_acc += 2 * nfrag(kind)
        LOOK = int(opt("look", 6))
        for si, (kind, k) in enumerate(STEPS):
            nf = nfrag(kind); ngap = 2 * nf
            C, ks = si // 2, si % 2
            g0 = e.gap
            assert g0 == gap_of_step[si]
            cur = AW + 40 * (si % 2)
            if (kind, k) == ('B', 0): stamp(e, 3)
            if (kind, k) == ('P', 0): stamp(e, 4)
            if (kind, k) == ('P', 9): stamp(e, 5)
            have_next = si + 1 < len(STEPS)
            reads = []
            if have_next:
                reads = self.frag_reads(si + 1)
                nkind, nk = STEPS[si + 1]
                if nkind == 'A':
                    xr = self.x_reads(nk)
                    reads = reads[:2] + xr[:1] + reads[2:4] + xr[1:] + reads[4:]
            per = [[] for _ in range(ngap)]
            nr = len(reads)
            for i_, r in enumerate(reads):
                per[(i_ * ngap) // nr if nr > ngap else i_].append(r)
            pre0 = []
            if have_next and ks == 1:
                nC = C + 1
                pre0 = ["s_barrier"]
                if opt("chunkstamp"):
                    pre0 = pre0 + ["s_memtime s[90:91]", "s_waitcnt lgkmcnt(0)", f"v_writelane_b32 v63, s90, {nC}"]
                if nC - 2 >= 0: self.free.append(self.wslot[nC - 2])
                span = ngap + 2 * nfrag(STEPS[min(si + 1, len(STEPS) - 1)][0])
                late = g0 + span + 6
                cursor = g0 + 1
                if kind == 'A' and C + 3 < 9 and C >= 0:
                    cursor = self.push_dma(self.x_items(C + 3), cursor, span // 2 - 2)
                if kind == 'A' and C >= 6:
                    self.free.append(5 + C % 3)
                nissue = 0
                while self.free and nextW < 36 and nextW <= nC + LOOK and nissue < 2:
                    cand = [s_ for s_ in self.free if (nextW >= 9 or s_ < 5)]
                    if not cand: break
                    sl = cand[0]; self.free.remove(sl)
                    self.wslot[nextW] = sl
                    more = len(self.free) > 0 and nextW + 1 < 36 and nextW + 1 <= nC + LOOK and nissue == 0
                    rem = max(8, g0 + span - cursor - 2)
                    cursor = self.push_dma(self.w_items(nextW), cursor, rem // 2 if more else rem)
                    nextW += 1; nissue += 1
                self.after_barrier_hooks(si, g0)
            if have_next and ks == 0 and si + 2 < len(STEPS):
                nC = C + 1
                tags = [('W', nC)]
                if kind == 'A' and nC < 9: tags.append(('X', nC))
                tags += self.extra_barrier_tags(si + 1)
                e.push('wait', (lambda tags=tags: e.vm_wait_text(tags)), 'w', early=g0 + ngap - 1, late=g0 + ngap - 1)
            self.step_hooks(si, kind, k, g0, ngap, gap_of_step)
            for f in range(nf):
                for t in range(2):
                    gi = 2 * f + t
                    A = f"a[{cur+4*f}:{cur+4*f+3}]"
                    if kind in 'AB':
                        B = f"a[{AX+8*k+4*t}:{AX+8*k+4*t+3}]"
                        acc = (ACC_A if kind == 'A' else ACC_B) + 8 * f + 4 * t
                        D = f"v[{acc}:{acc+3}]"
                        if k == 0:
                            bq = (ACC_B if kind == 'A' else BIASB) + 4 * f
                            Cc = f"v[{bq}:{bq+3}]"
                        else: Cc = D
                    else:
                        d, i = SEQ2[k]
                        if d == 0:
                            hb = (ACC_A + 16 * i if i < 4 else ACC_B + 16 * (i - 4)) + 4 * t
                            B = f"v[{hb}:{hb+3}]"
                        else:
                            hb = AH + 8 * ((k - 9) % HD) + 4 * t
                            B = f"a[{hb}:{hb+3}]"
                        acc = acc2(f, t)
                        D = f"v[{acc}:{acc+3}]"
                        Cc = "0" if k == 0 else D
                    if gi == 0 and kind == 'P' and SEQ2[k][0] != 0:
                        w = e.vm_wait_text([('H', k)])
                        if w: e.raw(w)
                    if t == 0 and f % 4 == 0:
                        tags = [('WF', si, min(f + 3, nf - 1))]
                        if f == 0 and kind == 'A': tags.append(('XF', k))
                        w = e.lg_wait_text(tags)
                        if w: e.raw(w)
                    e.mfma_gap(f"v_mfma_f32_16x16x32_bf16 {D}, {A}, {B}, {Cc}", pre=pre0 if gi == 0 else (), dss=per[gi])
        e.flush_streams()
        stamp(e, 6)
        self.tail()
        e.raw("L_end:\ns_endpgm")
        for s_ in self.slow: e.raw(s_)
        print(e.stats, "slots:", self.wslot, file=sys.stderr)
        if opt("vmlog"):
            for (g, tags, n, newly) in e.log:
                y = newly[-1] if newly else None
                summary = {}
                for (t, gg) in newly: summary.setdefault(str(t), []).append(gg)
                print(f"gap {g:5d} wait {tags} vmcnt({n}) youngest {y} dist {g - y[1] if y else 0}  covers " + ", ".join(f"{k}@{v[0]}-{v[-1]}" for k, v in summary.items()), file=sys.stderr)
        return e.text()

    PUB_A = int(opt("pubA", 18 + 13))
    PUB_B = int(opt("pubB", 36 + 11))
    def extra_barrier_tags(self, si):
        if si == self.PUB_A: return [('HS', 'A')]
        if si == self.PUB_B: return [('HS', 'B')]
        return []
    def after_barrier_hooks(self, si, g0):
        e = self.e
        if si in (self.PUB_A, self.PUB_B):
            part = 0 if si == self.PUB_A else 1
            self.nlabel += 1
            lb = f"L_rel_{self.nlabel}"
            self.slow.append(f"""
            {lb}_slow:
            buffer_wbl2 sc1
            s_waitcnt vmcnt(0)
            s_branch {lb}_back
            """)
            e.push('flag', f"s_cmp_eq_u32 s{S_MODE}, 0\n    s_cbranch_scc1 {lb}_slow\n{lb}_back:", 's', early=g0 + 1, late=g0 + 1)
            e.push('flag', f"v_mov_b32 v{V_P}, s{S_N}", 'v', early=g0 + 1, late=g0 + 2)
            e.push('flag', f"buffer_store_dword v{V_P}, v{V_FS}, s[{S_WS}:{S_WS+3}], 0 offen offset:{4*part} sc1", 'm', ('FS', part), early=g0 + 2, late=g0 + 3)
    def step_hooks(self, si, kind, k, g0, ngap, gos):
        e = self.e
        if (kind, k) == ('A', int(opt("biasB_at", 9))):
            for ft in range(10):
                q = BIASB + 4 * ft
                e.push('bias', f"buffer_load_dwordx2 v[{q+2}:{q+3}], v{V_BI}, s[{S_B1}:{S_B1+3}], s{S_CBB} offen offset:{32*ft}", 'm', ('BI', 'B'), early=g0 + 3 * ft, late=g0 + 3 * ft + 6)
        if (kind, k) == ('A', 14):
            e.push('bias', lambda: e.vm_wait_text(('BI', 'B')), 'w', early=g0, late=g0 + 4)
            for t in self.bias_cvt('B', BIASB): e.push('bias', t, 'v', early=g0, late=gos[17] + 8)
        if (kind, k) == ('A', 4):
            e.push('nonce', lambda: e.vm_wait_text('EP'), 'w', early=g0, late=g0 + 2)
            for t in [f"v_add_u32 v{V_P}, 1, v{V_P}", f"v_or_b32 v{V_P}, 0x80000000, v{V_P}"]:
                e.push('nonce', t, 'v', early=g0, late=g0 + 4)
            e.push('nonce', f"buffer_store_dword v{V_P}, v{V_NP}, s[{S_WS}:{S_WS+3}], 0 offen sc1", 'm', 'EPW', early=g0, late=g0 + 6)
            e.push('nonce', f"v_subrev_u32 v{V_NP}, {EP_OFF}, v{V_NP}", 'v', early=g0, late=g0 + 8)
            e.push('nonce', f"buffer_store_dword v{V_P}, v{V_NP}, s[{S_DBG}:{S_DBG+3}], 0 offen sc1", 'm', 'NW', early=g0, late=g0 + 10)
        NR = int(opt("nr_at", 12)); NC = int(opt("nc_at", 16))
        if (kind, k) == ('A', NR):
            e.push('nonce', f"v_mov_b32 v{V_NP}, 0", 'v', early=g0, late=g0 + 2)
            e.push('nonce', f"buffer_load_dword v{V_P}, v{V_NP}, s[{S_DBG}:{S_DBG+3}], 0 offen sc1", 'm', 'NR', early=g0 + 1, late=g0 + 4)
        if (kind, k) == ('A', NC):
            ld = f"buffer_load_dword v{V_P}, v{V_NP}, s[{S_DBG}:{S_DBG+3}], 0 offen sc1"
            e.push('nonce', lambda: e.vm_wait_text('NR'), 'w', early=g0, late=g0 + 2)
            for t in self.poll_check(V_P, ld, f"v_cmp_eq_u32 vcc, 0, v{V_P}", "nonce"):
                e.push('nonce', t, 's', early=g0, late=g0 + 5)
            e.push('nonce', f"v_readfirstlane_b32 s{S_N}, v{V_P}", 'v', early=g0, late=g0 + 8)
            e.push('nonce', "s_nop 3", 's', early=g0, late=g0 + 9)
            e.push('nonce', f"s_lshl_b32 s88, s{S_N}, 4\n    s_or_b32 s88, s88, s{S_XCC}", 's', early=g0, late=g0 + 10)
            e.push('nonce', f"v_mov_b32 v{V_P}, s88", 'v', early=g0, late=g0 + 11)
            e.push('nonce', f"buffer_store_dword v{V_P}, v{V_FS}, s[{S_WS}:{S_WS+3}], 0 offen offset:8 sc1", 'm', 'XW', early=g0, late=g0 + 12)
        XR = int(opt("xr_at", 5)); XC = int(opt("xc_at", 9))
        ldx = f"buffer_load_dword v{V_P}, v{V_FL}, s[{S_WS}:{S_WS+3}], 0 offen offset:8 sc1"
        if (kind, k) == ('B', XR):
            e.push('nonce', ldx, 'm', 'XR', early=g0, late=g0 + 3)
        if (kind, k) == ('B', XC):
            e.push('nonce', lambda: e.vm_wait_text('XR'), 'w', early=g0, late=g0 + 2)
            e.push('nonce', f"s_and_b32 s89, s{S_N}, 0x0fffffff", 's', early=g0, late=g0 + 3)
            cond = f"v_lshrrev_b32 v{V_NP}, 4, v{V_P}\n    v_cmp_ne_u32 vcc, s89, v{V_NP}"
            for t in self.poll_check(V_P, ldx, cond, "xcc"):
                e.push('nonce', t, 's', early=g0, late=g0 + 6)
            e.push('nonce', f"v_and_b32 v{V_NP}, 15, v{V_P}", 'v', early=g0, late=g0 + 8)
            e.push('nonce', f"v_cmp_ne_u32 vcc, s{S_XCC}, v{V_NP}", 'v', early=g0, late=g0 + 9)
            e.push('nonce', "s_nop 3", 's', early=g0, late=g0 + 10)
            e.push('nonce', f"s_cmp_eq_u64 vcc, 0\n    s_cselect_b32 s{S_MODE}, 1, 0", 's', early=g0, late=g0 + 11)
            if opt("forcesafe"): e.push('nonce', f"s_mov_b32 s{S_MODE}, 0", 's', early=g0, late=g0 + 12)
        if (kind, k) == ('B', int(opt("pf2_at", 0))) and opt("pf2", "1") == "1":
            t = V_T
            for tx in [f"s_and_b32 s88, s{S_M}, 7", f"s_lshl_b32 s88, s88, 2", f"s_add_u32 s88, s88, s{S_J}", f"s_mul_i32 s88, s88, {36*1152}",
                       f"s_mul_i32 s89, s{S_KQ}, {1152*1152}", f"s_add_u32 s88, s88, s89", f"s_mul_i32 s89, s{S_W}, {81*128}", f"s_add_u32 s88, s88, s89"]:
                e.push('pf', tx, 's', early=g0, late=g0 + 12)
            e.push('pf', f"v_lshlrev_b32 v{t}, 7, v1", 'v', early=g0, late=g0 + 13)
            e.push('pf', f"v_add_u32 v{t+1}, {64*128}, v{t}", 'v', early=g0, late=g0 + 14)
            e.push('pf', f"v_cmp_gt_u32 vcc, 17, v1", 'v', early=g0, late=g0 + 15)
            e.push('pf', f"v_mov_b32 v{t+2}, {OOB}", 'v', early=g0, late=g0 + 16)
            e.push('pf', "s_nop 0", 's', early=g0, late=g0 + 17)
            e.push('pf', f"v_cndmask_b32 v{t+1}, v{t+2}, v{t+1}, vcc", 'v', early=g0, late=g0 + 18)
            e.push('pf', f"buffer_load_dword v{t+2}, v{t}, s[{S_W2}:{S_W2+3}], s88 offen", 'm', 'PF', early=g0, late=g0 + 19)
            e.push('pf', f"buffer_load_dword v{t+2}, v{t+1}, s[{S_W2}:{S_W2+3}], s88 offen", 'm', 'PF', early=g0, late=g0 + 22)
        if (kind, k) == ('B', 1):
            for i in range(4):
                for t in range(2):
                    for (tx, kk, tag) in self.epi_items(ACC_A, i, i, t):
                        e.push('epi', tx, kk, tag, early=g0, late=gos[18 + int(opt("epiA_late", 9))])
        if (kind, k) == ('P', 0):
            for i in range(5):
                for t in range(2):
                    for (tx, kk, tag) in self.epi_items(ACC_B, i, 4 + i, t):
                        e.push('epi', tx, kk, tag, early=g0 + 2, late=min(gos[36 + 4 + i] - 4, gos[36 + int(opt("epiB_late", 8))]))
        if kind == 'P':
            PA = int(opt("pollA", 0)); CA = int(opt("chkA", 2)); PB = int(opt("pollB", 14)); CB = int(opt("chkB", 16))
            for part, (pq, cq) in enumerate(((PA, CA), (PB, CB))):
                ld = f"buffer_load_dword v{V_P}, v{V_FL}, s[{S_WS}:{S_WS+3}], 0 offen offset:{4*part} sc1"
                if k == pq:
                    e.push('poll', ld, 'm', ('FP', part), early=g0 + 1, late=g0 + 3)
                if k == cq:
                    e.push('poll', (lambda part=part: e.vm_wait_text(('FP', part))), 'w', early=g0, late=g0)
                    items = self.poll_check(V_P, ld, f"v_cmp_ne_u32 vcc, s{S_N}, v{V_P}", f"flag{part}")
                    for t in items: e.push('poll', t, 's', early=g0, late=g0 + 1)
                    self.nlabel += 1
                    lb = f"L_acq_{self.nlabel}"
                    self.slow.append(f"""
                    {lb}_slow:
                    buffer_inv sc1
                    s_waitcnt vmcnt(0)
                    s_branch {lb}_back
                    """)
                    e.push('poll', f"s_cmp_eq_u32 s{S_MODE}, 0\n    s_cbranch_scc1 {lb}_slow\n{lb}_back:", 's', early=g0, late=g0 + 2)
            for qn in range(9, 36):
                first = CA if qn < 21 else CB
                base = 9 if qn < 21 else 21
                rate = int(opt("hrate", 2))
                want = first + (qn - base) // rate
                want = max(want, qn - (HD - 1))
                if want == k:
                    d, i = SEQ2[qn]
                    dst = AH + 8 * ((qn - 9) % HD)
                    sub = (qn - base) % rate
                    e0 = g0 + 3 + sub * (ngap // rate)
                    e.push('hld', f"s_add_u32 s{S_T}, s{S_HB+d}, {i*8192}", 's', early=e0, late=g0 + ngap + 4)
                    for t in range(2):
                        e.push('hld', f"buffer_load_dwordx4 a[{dst+4*t}:{dst+4*t+3}], v{V_HS}, s[{S_WS}:{S_WS+3}], s{S_T} offen offset:{t*1024} sc1", 'm', ('H', qn), early=e0 + 1 + 3 * t, late=g0 + ngap + 6 + t)

    def tail(self):
        e = self.e
        e.raw("s_nop 7\ns_nop 7")
        e.raw(f"""
        s_lshl_b32 s84, s{S_M}, 2
        s_add_u32 s84, s84, s{S_J}
        s_lshl_b32 s84, s84, 2
        v_lshlrev_b32 v{V_T}, 4, v1
        s_cmp_eq_u32 s{S_W}, s{S_KQ}
        s_cbranch_scc1 L_recv
        s_add_u32 s85, s84, s{S_W}
        s_lshl_b32 s85, s85, 2
        s_add_u32 s85, s85, s{S_KQ}
        s_mul_i32 s85, s85, 18432
        s_add_u32 s85, s85, {P_OFF}
        """)
        k = 0
        for nt in range(9):
            for t in range(2):
                r = acc2(nt, t)
                if k % 4 == 0 and k: e.raw("s_add_u32 s85, s85, 4096")
                e.raw(f"buffer_store_dwordx4 v[{r}:{r+3}], v{V_T}, s[{S_WS}:{S_WS+3}], s85 offen offset:{(k%4)*1024} sc1")
                k += 1
        e.raw(f"""
        s_add_u32 s85, s84, s{S_W}
        s_lshl_b32 s85, s85, 7
        s_lshl_b32 s86, s{S_KQ}, 2
        s_add_u32 s85, s85, s86
        s_add_u32 s85, s85, {FL_OFF + 0x10000}
        v_mov_b32 v{V_T+1}, {OOB}
        v_mov_b32 v{V_T+2}, 0
        v_cmp_eq_u32 vcc, 0, v1
        v_mov_b32 v{V_P}, s{S_N}
        s_nop 0
        v_cndmask_b32 v{V_T+1}, v{V_T+1}, v{V_T+2}, vcc
        s_waitcnt vmcnt(0)
        buffer_store_dword v{V_P}, v{V_T+1}, s[{S_WS}:{S_WS+3}], s85 offen sc1
        s_branch L_end
        L_recv:
        """)
        e.raw(f"""
        s_mov_b32 s{S_B1}, s{S_B2P}
        s_mov_b32 s{S_B1+1}, s{S_B2P+1}
        s_mov_b32 s{S_B1+2}, {B2_BYTES}
        s_mul_i32 s86, s{S_J}, 288
        s_add_u32 s85, s84, s{S_KQ}
        s_lshl_b32 s87, s85, 7
        s_add_u32 s87, s87, {FL_OFF + 0x10000}
        v_and_b32 v{V_T+1}, 3, v1
        v_min_u32 v{V_T+1}, 2, v{V_T+1}
        v_add_u32 v{V_T+1}, 1, v{V_T+1}
        v_add_u32 v{V_T+1}, s{S_KQ}, v{V_T+1}
        v_and_b32 v{V_T+1}, 3, v{V_T+1}
        v_lshlrev_b32 v{V_T+1}, 2, v{V_T+1}
        """)
        BI = ACC_B
        for nt in range(9):
            e.raw(f"buffer_load_dwordx2 v[{BI+2*nt}:{BI+2*nt+1}], v{V_BI}, s[{S_B1}:{S_B1+3}], s86 offen offset:{32*nt}")
        e.raw(f"""
        s_mov_b32 s88, {SPIN_LIMIT}
        L_tpoll:
        buffer_load_dword v{V_P}, v{V_T+1}, s[{S_WS}:{S_WS+3}], s87 offen sc1
        s_waitcnt vmcnt(0)
        v_cmp_ne_u32 vcc, s{S_N}, v{V_P}
        s_nop 1
        s_cbranch_vccz L_tgo
        s_sub_u32 s88, s88, 1
        s_cmp_lg_u32 s88, 0
        s_cbranch_scc1 L_tpoll
        L_tgo:
        """)
        stamp(e, 7) if opt("stamp7", "poll") == "poll" else None
        for d in range(1, 4):
            e.raw(f"""
            s_add_u32 s86, s{S_KQ}, {d}
            s_and_b32 s86, s86, 3
            s_lshl_b32 s87, s85, 2
            s_add_u32 s86, s86, s87
            s_mul_i32 s86, s86, 18432
            s_add_u32 s{S_TW+d}, s86, {P_OFF}""")
        BUF = ACC_B + 20
        bufs = [ACC_B + 20 + 4 * i for i in range(15)] + [ACC_A + 16 * i + 4 * t for i in range(4) for t in range(2)] + [248, 252]
        bufs = bufs[:24]
        assert all(b % 2 == 0 for b in bufs)
        NT = 18; WIN = len(bufs) // 3
        vm = []
        def issue(k):
            for d in range(1, 4):
                b = bufs[(k % WIN) * 3 + d - 1]
                so = S_TW + 4 + d
                if k % 4 == 0:
                    e.raw(f"s_add_u32 s{so}, s{S_TW+d}, {(k//4)*4096}")
                e.raw(f"buffer_load_dwordx4 v[{b}:{b+3}], v{V_T}, s[{S_WS}:{S_WS+3}], s{so} offen offset:{(k%4)*1024} sc1")
                vm.append(('L', k))
        for k in range(WIN): issue(k)
        e.raw(f"""
        s_lshl_b32 s86, s{S_M}, 7
        s_lshl_b32 s87, s{S_W}, 5
        s_add_u32 s86, s86, s87
        s_mul_i32 s86, s86, 1152
        s_mul_i32 s87, s{S_J}, 288
        s_add_u32 s86, s86, s87
        v_and_b32 v{V_T+2}, 15, v1
        v_mul_u32_u24 v{V_T+2}, 1152, v{V_T+2}
        v_add_u32 v{V_T+2}, v{V_T+2}, v{V_BI}
        v_add_u32 v{V_T+3}, {16*1152}, v{V_T+2}
        """)
        for nt in range(9):
            b = BI + 2 * nt
            e.raw(f"""
            v_lshlrev_b32 v{V_T+4}, 16, v{b}
            v_and_b32 v{V_T+5}, 0xffff0000, v{b}
            v_lshlrev_b32 v{V_T+6}, 16, v{b+1}
            v_and_b32 v{V_T+7}, 0xffff0000, v{b+1}""")
            for t in range(2):
                r = acc2(nt, t)
                for x in range(4): e.raw(f"v_add_f32 v{r+x}, v{r+x}, v{V_T+4+x}")
        for k in range(NT):
            nt, t = k // 2, k % 2
            r = acc2(nt, t)
            last = max(i for i, v in enumerate(vm) if v == ('L', k))
            n = len(vm) - 1 - last
            e.raw(f"s_waitcnt vmcnt({min(n,63)})")
            for d in range(3):
                b = bufs[(k % WIN) * 3 + d]
                for x in range(4): e.raw(f"v_add_f32 v{r+x}, v{r+x}, v{b+x}")
            if k + WIN < NT: issue(k + WIN)
            e.raw(f"v_cvt_pk_bf16_f32 v{r}, v{r}, v{r+1}\nv_cvt_pk_bf16_f32 v{r+1}, v{r+2}, v{r+3}")
            e.raw(f"buffer_store_dwordx2 v[{r}:{r+1}], v{V_T+2+t}, s[{S_OUT}:{S_OUT+3}], s86 offen offset:{32*nt}" + (" sc1" if opt("outsc1") else ""))
            vm.append(('S', k))
        if STAMP:
            e.raw("s_waitcnt vmcnt(0)")
            if opt("stamp7") == "end": stamp(e, 7)
            e.raw(f"""
            s_lshl_b32 s84, s2, 5
            s_add_u32 s84, s84, {STAMP_OFF}
            v_mov_b32 v{V_T+1}, {OOB}
            v_mov_b32 v{V_T+2}, 0
            v_cmp_eq_u32 vcc, 0, v1
            s_nop 1
            v_cndmask_b32 v{V_T+1}, v{V_T+1}, v{V_T+2}, vcc""")
            e.raw(f"v_lshlrev_b32 v{V_T+1}, 2, v1\nv_mov_b32 v{V_T+2}, {OOB}\nv_cmp_gt_u32 vcc, 8, v1\ns_nop 1\nv_cndmask_b32 v{V_T+1}, v{V_T+2}, v{V_T+1}, vcc")
            e.raw(f"buffer_store_dword v{V_ST}, v{V_T+1}, s[{S_WS}:{S_WS+3}], s84 offen sc1")
            if opt("chunkstamp"):
                e.raw(f"s_lshl_b32 s84, s2, 8\ns_add_u32 s84, s84, {STAMP_OFF + 65536}\nv_lshlrev_b32 v{V_T+1}, 2, v1\nbuffer_store_dword v63, v{V_T+1}, s[{S_WS}:{S_WS+3}], s84 offen sc1")
            e.raw("s_waitcnt vmcnt(0)")

def kd(name, vgpr, accum, sgpr=102):
    return f""".section .rodata,"a"
.p2align 6
.amdhsa_kernel {name}
  .amdhsa_next_free_vgpr {vgpr}
  .amdhsa_next_free_sgpr {sgpr}
  .amdhsa_accum_offset {accum}
  .amdhsa_group_segment_fixed_size 0
  .amdhsa_kernarg_size 64
  .amdhsa_user_sgpr_count 2
  .amdhsa_user_sgpr_kernarg_segment_ptr 1
  .amdhsa_system_sgpr_workgroup_id_x 1
.end_amdhsa_kernel
"""

def main(path):
    g = Gen()
    body = g.build()
    txt = f"""; Fused MLP  out = relu(x@w1+b1)^2 @ w2 + b2  (generated by gen2.py; one workgroup per CU)
; @launch grid=(256,1,1) block=(256,1,1) lds={LDS_BYTES}
.amdgcn_target "amdgcn-amd-amdhsa--gfx950"
.text
.globl {KNAME}
.p2align 8
.type {KNAME},@function
{KNAME}:
""" + body + kd(KNAME, 512, 256)
    open(path, "w").write(txt)

if __name__ == "__main__":
    main(sys.argv[1] if len(sys.argv) > 1 else "f2.s")
```

```python
import heapq

class Item:
    __slots__ = ("text", "kind", "tag", "early", "late", "stream", "seq")
    def __init__(self, text, kind, tag=None, early=0, late=None, stream=None):
        self.text, self.kind, self.tag, self.early, self.late, self.stream = text, kind, tag, early, late, stream
        self.seq = 0

class Emitter:
    def __init__(self):
        self.lines = []
        self.vm = []
        self.vm_gap = []
        self.log = []
        self.vm_done = 0
        self.lg = []
        self.lg_done = 0
        self.streams = {}
        self.gap = 0
        self.seq = 0
        self.stats = {"mfma": 0, "fill": 0, "over": 0}

    def raw(self, s):
        for line in s.strip("\n").split("\n"):
            t = line.strip()
            if not t: continue
            self.lines.append(t if t.endswith(":") else "    " + t)
    def comment(self, s): self.lines.append("    ; " + s)
    def vmem(self, s, tag=None):
        if s.rstrip().endswith(" lds") and self.lines and " m0," in self.lines[-1]:
            self.lines.append("    s_nop 0")
        self.lines.append("    " + s); self.vm.append(tag); self.vm_gap.append(self.gap)
    def ds(self, s, tag=None):
        self.lines.append("    " + s); self.lg.append(tag)

    def _need(self, ops, tags):
        last = -1
        for i in range(len(ops) - 1, -1, -1):
            if ops[i] in tags:
                last = i; break
        return last
    def vm_wait_text(self, tags):
        if not isinstance(tags, list): tags = [tags]
        for q in self.streams.values():
            for it in q:
                assert not (it.kind == 'm' and it.tag in set(tags)), f"vm wait on {tags} while an op with that tag is still queued"
        last = self._need(self.vm, set(tags))
        assert last >= 0, f"vm wait on tags never issued: {tags}"
        if last < self.vm_done: return None
        n = len(self.vm) - 1 - last
        n = min(n, 63)
        newly = list(range(self.vm_done, len(self.vm) - n))
        self.log.append((self.gap, tags, n, [(self.vm[i], self.vm_gap[i]) for i in newly]))
        self.vm_done = len(self.vm) - n
        return f"s_waitcnt vmcnt({n})"
    def lg_wait_text(self, tags):
        if not isinstance(tags, list): tags = [tags]
        last = self._need(self.lg, set(tags))
        assert last >= 0, f"lgkm wait on tags never issued: {tags}"
        if last < self.lg_done: return None
        n = len(self.lg) - 1 - last
        n = min(n, 15)
        self.lg_done = len(self.lg) - n
        return f"s_waitcnt lgkmcnt({n})"
    def vm_needed(self, tags):
        if not isinstance(tags, list): tags = [tags]
        return self._need(self.vm, set(tags)) >= self.vm_done
    def lg_needed(self, tags):
        if not isinstance(tags, list): tags = [tags]
        return self._need(self.lg, set(tags)) >= self.lg_done
    def wait_vm(self, tags):
        t = self.vm_wait_text(tags)
        if t: self.lines.append("    " + t)
    def wait_lg(self, tags):
        t = self.lg_wait_text(tags)
        if t: self.lines.append("    " + t)
    def wait_all(self):
        self.lines.append("    s_waitcnt vmcnt(0) lgkmcnt(0)")
        self.vm_done = len(self.vm); self.lg_done = len(self.lg)
    def wait_vm_all(self):
        self.lines.append("    s_waitcnt vmcnt(0)")
        self.vm_done = len(self.vm)
    def wait_lg_all(self):
        self.lines.append("    s_waitcnt lgkmcnt(0)")
        self.lg_done = len(self.lg)

    def push(self, stream, text, kind, tag=None, early=0, late=None):
        it = Item(text, kind, tag, early, late, stream)
        self.seq += 1; it.seq = self.seq
        self.streams.setdefault(stream, []).append(it)
        return it
    def _emit_item(self, it):
        t = it.text() if callable(it.text) else it.text
        if t is None: return False
        if it.kind == 'm': self.vmem(t, it.tag)
        elif it.kind == 'd': self.ds(t, it.tag)
        else: self.lines.append("    " + t)
        return True
    def _candidates(self):
        c = []
        for name, q in self.streams.items():
            if q and q[0].early <= self.gap:
                c.append(q[0])
        return c
    def fill(self, budget):
        n = 0
        while True:
            c = self._candidates()
            if not c: break
            due = [i for i in c if i.late is not None and i.late <= self.gap]
            if due:
                it = min(due, key=lambda i: (i.late, i.seq))
            elif n < budget:
                it = min(c, key=lambda i: (i.late if i.late is not None else 1 << 30, i.seq))
            else:
                break
            self.streams[it.stream].pop(0)
            if self._emit_item(it):
                n += 1
        if n > budget: self.stats["over"] += n - budget
        self.stats["fill"] += n
        return n
    def flush_streams(self, names=None):
        while True:
            c = [q[0] for nme, q in self.streams.items() if q and (names is None or nme in names)]
            if not c: break
            it = min(c, key=lambda i: i.seq)
            self.streams[it.stream].pop(0)
            self._emit_item(it)
    def pending(self):
        return sum(len(q) for q in self.streams.values())

    def mfma_gap(self, mfma, pre=(), dss=(), post=(), budget=None):
        self.lines.append("    " + mfma)
        self.stats["mfma"] += 1
        used = 0
        for p in pre:
            t = p() if callable(p) else p
            if t: self.lines.append("    " + t); used += 1
        for (t, tag) in dss:
            self.ds(t, tag); used += 1
        posts = []
        for (cnt, tags) in post:
            if (self.vm_needed(tags) if cnt == 'vm' else self.lg_needed(tags)):
                posts.append((lambda tags=tags: self.vm_wait_text(tags)) if cnt == 'vm' else (lambda tags=tags: self.lg_wait_text(tags)))
        nres = len(posts)
        b = max(0, 2 - used - nres) if budget is None else budget
        self.fill(b)
        for p in posts:
            t = p() if callable(p) else p
            if t: self.lines.append("    " + t); self.stats["waits"] = self.stats.get("waits", 0) + 1
        self.gap += 1

    def text(self):
        return "\n".join(self.lines) + "\n"
```

```python
import sys, os
from emit import Emitter

OPT = dict(kv.split("=") if "=" in kv else (kv, 1) for kv in os.environ.get("GOPT", "").split(",") if kv)
def opt(k, d=None): return OPT.get(k, d)
def iopt(k, d): return int(OPT.get(k, d))

KNAME = "standalone__dense_activation_squared_relu__prompt_kernel"
X_BYTES, W1_BYTES, B1_BYTES, W2_BYTES, B2_BYTES, OUT_BYTES = 2359296, 5308416, 9216, 5308416, 1152, 2359296
WS_BYTES = 268435456
H_OFF = 0
P_OFF = 20 << 20
FL_OFF = 40 << 20
EP_OFF = 41 << 20
STAMP_OFF = 128 << 20
OOB = 0x40000000
SLOT = 20480
NSLOT = 8
LDS_BYTES = NSLOT * SLOT
BIAS_LDS = 4 * SLOT + 16384
SPIN_LIMIT = 1 << 16
TAGMASK = 0xFFF

S_X, S_W1, S_B1, S_WS, S_W2, S_OUT = 4, 8, 12, 16, 20, 24
S_W, S_M, S_S, S_PAR, S_KQ, S_J = 28, 29, 30, 31, 32, 33
S_CBA, S_CBB, S_WSO, S_MW, S_MX = 34, 35, 36, 38, 39
S_HSO, S_T, S_T2, S_N = 40, 41, 42, 43
S_TW, S_TX = 44, 53
S_SO2 = 62
S_HB = 80
S_DBG = 92
S_MODE, S_XCC = 98, 99
KA = 64
V_WA, V_WB, V_X, V_W2 = 2, 6, 11, 15
V_TA, V_TB, V_T2, V_XR = 20, 36, 42, 45
V_HS, V_BI, V_FL, V_FS, V_P, V_NP = 47, 48, 49, 50, 51, 52
V_T = 53
V_ST = 62
ACC_A, ACC_B, BIASB = 64, 128, 208
AX, AW, AH, AB2 = 0, 144, 0, 224
HD = iopt("HD", 8)
STAMP = bool(opt("stamp"))

def acc2(nt, t):
    return (BIASB + 8 * nt + 4 * t) if nt < 5 else (ACC_A + 16 * (nt - 5) + 8 + 4 * t)
def srd(dst, ptr, nbytes):
    return [f"s_mov_b32 s{dst}, s{ptr}", f"s_mov_b32 s{dst+1}, s{ptr+1}", f"s_mov_b32 s{dst+2}, {nbytes}", f"s_mov_b32 s{dst+3}, 0x20000"]
def lines(s): return [x.strip() for x in s.strip().split("\n") if x.strip()]
def stamp(e, idx, pro=False):
    if not STAMP or (opt("chunkstamp") and idx != 0): return
    if opt("pstamp") and (pro != (idx >= 3)) and idx not in (0,):
        if not (pro and idx < 3): return
    ins = "s_memtime" if opt("cyc") else "s_memrealtime"
    e.raw(f"{ins} s[90:91]\ns_waitcnt lgkmcnt(0)\nv_writelane_b32 v{V_ST}, s90, {idx}")

def ksteps2():
    ownA = [(0, i) for i in range(4)]; ownB = [(0, i) for i in range(4, 9)]
    peerA = [(d, i) for d in (1, 2, 3) for i in range(4)]
    peerB = [(d, i) for d in (1, 2, 3) for i in range(4, 9)]
    if opt("order", "X") == "X": return ownA + ownB + peerA + peerB
    return ownA + peerA + ownB + peerB
SEQ2 = ksteps2()
PEERS = [q for q, (d, i) in enumerate(SEQ2) if d != 0]
RING = {q: n % HD for n, q in enumerate(PEERS)}
QA0 = min(q for q in PEERS if SEQ2[q][1] < 4)
QB0 = min(q for q in PEERS if SEQ2[q][1] >= 4)
OWNB = {SEQ2[q][1]: q for q in range(36) if SEQ2[q][0] == 0 and SEQ2[q][1] >= 4}
STEPS = [('A', k) for k in range(18)] + [('B', k) for k in range(18)] + [('P', q) for q in range(36)]
def nfrag(kind): return {'A': 8, 'B': 10, 'P': 9}[kind]
GOS = []
_g = 0
for (_k, _) in STEPS:
    GOS.append(_g); _g += 2 * nfrag(_k)
GOS.append(_g)

class Gen:
    def __init__(self):
        self.e = Emitter()
        self.wslot = {}
        self.free = []
        self.slow = []
        self.nlabel = 0

    def setup_first(self):
        t = V_T
        L = lines(f"""
        s_and_b32 s84, s2, 7
        s_lshr_b32 s85, s2, 3
        v_lshrrev_b32 v{t}, 6, v0
        v_and_b32 v1, 63, v0
        s_and_b32 s{S_KQ}, s84, 3
        v_readfirstlane_b32 s{S_W}, v{t}
        s_lshr_b32 s86, s84, 2
        s_lshr_b32 s87, s85, 2
        s_and_b32 s{S_J}, s85, 3
        s_lshl_b32 s86, s86, 3
        s_add_u32 s{S_M}, s86, s87
        s_lshl_b32 s{S_S}, s{S_KQ}, 2
        s_add_u32 s{S_S}, s{S_S}, s{S_J}
        s_and_b32 s{S_PAR}, s{S_J}, 1
        """)
        rot = opt("rot", "jm")
        if rot == "0": L += ["s_mov_b32 s84, 0"]
        elif rot == "j": L += lines(f"s_mul_i32 s84, s{S_J}, 9\ns_lshr_b32 s84, s84, 2")
        elif rot == "jm": L += lines(f"s_lshl_b32 s84, s{S_J}, 1\ns_add_u32 s84, s84, s87\ns_cmp_ge_u32 s84, 9\ns_cselect_b32 s85, 9, 0\ns_sub_u32 s84, s84, s85")
        elif rot == "jm2": L += lines(f"s_lshl_b32 s84, s{S_J}, 1\ns_and_b32 s85, s87, 1\ns_mul_i32 s85, s85, 5\ns_add_u32 s84, s84, s85\ns_cmp_ge_u32 s84, 9\ns_cselect_b32 s85, 9, 0\ns_sub_u32 s84, s84, s85")
        L += [f"s_mul_i32 s85, s{S_M}, 147456"]
        for c in range(9):
            L += lines(f"""
            s_mul_i32 s{S_TW+c}, s84, 589824
            s_lshl_b32 s86, s84, 7
            s_add_u32 s{S_TX+c}, s85, s86""")
            if c < 8: L += ["s_add_u32 s84, s84, 1", "s_cmp_eq_u32 s84, 9", "s_cselect_b32 s84, 0, s84"]
        L += lines(f"""
        s_mul_i32 s{S_CBA}, s{S_S}, 576
        s_mul_i32 s{S_T}, s{S_PAR}, 320
        s_add_u32 s{S_CBB}, s{S_CBA}, 256
        s_add_u32 s{S_CBA}, s{S_CBA}, s{S_T}
        s_lshl_b32 s{S_T}, s{S_PAR}, 8
        s_sub_u32 s{S_CBB}, s{S_CBB}, s{S_T}
        s_lshl_b32 s{S_MX}, s{S_W}, 12
        s_mul_i32 s{S_MW}, s{S_W}, 5120
        s_mul_i32 s{S_T}, s{S_W}, {32*1152}
        v_lshrrev_b32 v{t}, 3, v1
        v_lshrrev_b32 v{t+1}, 4, v1
        v_and_b32 v{t+2}, 7, v1
        v_mul_u32_u24 v{t}, 1152, v{t}
        v_add_u32 v{t}, s{S_T}, v{t}
        """)
        for q in range(4):
            L += lines(f"""
            v_add_u32 v{t+3}, {4*q}, v{t+1}
            v_and_b32 v{t+3}, 7, v{t+3}
            v_xor_b32 v{t+3}, v{t+2}, v{t+3}
            v_lshl_add_u32 v{t+3}, v{t+3}, 4, v{t}
            v_add_u32 v{V_X+q}, {q*(8*1152-1024)}, v{t+3}""")
        L += lines(f"""
        s_mul_i32 s{S_T}, s{S_W}, {16*9216}
        v_and_b32 v{t+2}, 15, v1
        v_mul_u32_u24 v{t}, 9216, v{t+1}
        v_add_u32 v{t}, s{S_T}, v{t}
        v_lshlrev_b32 v{t+3}, 1, v{t+1}
        v_xor_b32 v{t+3}, v{t+2}, v{t+3}
        v_xor_b32 v{t+4}, 8, v{t+3}
        v_lshl_add_u32 v{V_WA}, v{t+3}, 4, v{t}
        v_lshl_add_u32 v{t+4}, v{t+4}, 4, v{t}
        v_add_u32 v{V_WA+1}, {4*9216-1024}, v{V_WA}
        v_add_u32 v{V_WA+2}, {8*9216-2048}, v{t+4}
        v_add_u32 v{V_WA+3}, {12*9216-3072}, v{t+4}
        v_lshlrev_b32 v{V_BI}, 3, v{t+1}
        """)
        L += lines(f"""
        v_lshlrev_b32 v{t+4}, 4, v1
        v_mov_b32 v{t+3}, {OOB}
        v_cmp_gt_u32 vcc, 36, v1
        s_mul_i32 s86, s{S_S}, 576
        s_mul_i32 s87, s{S_J}, 288
        v_cndmask_b32 v{t+5}, v{t+3}, v{t+4}, vcc
        v_cmp_gt_u32 vcc, 18, v1
        s_nop 1
        v_cndmask_b32 v{t+6}, v{t+3}, v{t+4}, vcc
        """)
        return L

    def setup_reads_A(self):
        t = V_T
        L = lines(f"""
        v_lshrrev_b32 v{t}, 4, v1
        v_and_b32 v{t+1}, 1, v{t}
        v_lshrrev_b32 v{t+2}, 1, v{t}
        v_and_b32 v{t+3}, 15, v1
        v_lshrrev_b32 v{t+4}, 2, v{t+3}
        v_and_b32 v{t+3}, 3, v{t+3}
        v_lshl_add_u32 v{V_TB+4}, v{t+1}, 3, v{t+4}
        v_lshlrev_b32 v{V_TB+5}, 8, v{V_TB+4}
        v_lshl_add_u32 v{V_TB+5}, v{t+2}, 12, v{V_TB+5}
        v_lshl_add_u32 v{V_TB+5}, v{t+3}, 3, v{V_TB+5}
        v_lshl_add_u32 v{V_TA}, v{t+1}, 2, v{t+4}
        v_lshl_add_u32 v{V_TB+5}, v{V_TA}, 5, v{V_TB+5}
        """)
        for ft in range(8): L.append(f"v_xor_b32 v{V_TA+ft}, {ft*32}, v{V_TB+5}")
        for ft in range(8): L.append(f"v_add_u32 v{V_TA+8+ft}, {3*SLOT}, v{V_TA+ft}")
        L += lines(f"""
        v_and_b32 v{t}, 15, v1
        v_lshrrev_b32 v{t+1}, 4, v1
        v_lshrrev_b32 v{t+2}, 1, v{t}
        v_xor_b32 v{t+1}, v{t+1}, v{t+2}
        v_lshlrev_b32 v{t+1}, 4, v{t+1}
        v_lshl_add_u32 v{t+1}, v{t}, 7, v{t+1}
        v_add_u32 v{t+1}, {5*SLOT}, v{t+1}
        v_add_u32 v{V_XR}, s{S_MX}, v{t+1}
        v_xor_b32 v{t+1}, 64, v{t+1}
        v_add_u32 v{V_XR+1}, s{S_MX}, v{t+1}
        """)
        return L

    def setup_late(self):
        t = V_T + 3
        L = lines(f"s_mul_i32 s84, s{S_W}, {16*9216}")
        for q in range(5):
            L += lines(f"""
            v_add_u32 v{t}, {64*q}, v1
            v_mul_u32_u24 v{t+1}, 205, v{t}
            v_lshrrev_b32 v{t+1}, 12, v{t+1}
            v_mul_u32_u24 v{t+2}, 20, v{t+1}
            v_sub_u32 v{t+2}, v{t}, v{t+2}
            v_lshrrev_b32 v{t+3}, 2, v{t+1}
            v_and_b32 v{t+3}, 2, v{t+3}
            v_xor_b32 v{t+2}, v{t+2}, v{t+3}
            v_mul_u32_u24 v{t+3}, 9216, v{t+1}
            v_lshl_add_u32 v{t+3}, v{t+2}, 4, v{t+3}
            v_add_u32 v{V_WB+q}, s84, v{t+3}""")
            if q & 3: L.append(f"v_subrev_u32 v{V_WB+q}, {(q&3)*1024}, v{V_WB+q}")
        L += lines(f"""
        s_lshl_b32 s84, s{S_W}, 11
        s_lshl_b32 s85, s{S_M}, 4
        s_add_u32 s85, s85, s{S_S}
        s_mul_i32 s{S_HSO}, s85, 73728
        v_lshl_add_u32 v{V_HS}, v1, 4, s84
        s_lshl_b32 s85, s85, 7
        s_add_u32 s85, s85, {FL_OFF}
        v_mov_b32 v{t}, s85
        v_mov_b32 v{t+1}, {OOB}""")
        L.append(f"v_cmp_eq_u32 vcc, 0, v1\n    s_nop 1\n    v_cndmask_b32 v{V_FS}, v{t+1}, v{t}, vcc")
        L += lines(f"""
        v_lshrrev_b32 v{t}, 4, v1
        v_and_b32 v{t+1}, 1, v{t}
        v_lshrrev_b32 v{t+2}, 1, v{t}
        v_and_b32 v{t+3}, 15, v1
        v_lshrrev_b32 v{t+4}, 2, v{t+3}
        v_and_b32 v{t+3}, 3, v{t+3}
        v_lshl_add_u32 v{V_TB+4}, v{t+1}, 3, v{t+4}
        v_mul_u32_u24 v{V_TB+4}, 320, v{V_TB+4}
        v_mul_u32_u24 v{V_TB+5}, 5120, v{t+2}
        v_add_u32 v{V_TB+4}, v{V_TB+4}, v{V_TB+5}
        v_lshl_add_u32 v{V_TB+4}, v{t+3}, 3, v{V_TB+4}
        v_lshlrev_b32 v{t+1}, 5, v{t+1}
        v_add_u32 v{V_TB}, v{V_TB+4}, v{t+1}
        v_sub_u32 v{V_TB+1}, v{V_TB+4}, v{t+1}
        v_add_u32 v{V_TB+2}, {3*SLOT}, v{V_TB}
        v_add_u32 v{V_TB+3}, {3*SLOT}, v{V_TB+1}
        v_add_u32 v{V_TB+4}, {6*SLOT}, v{V_TB}
        v_add_u32 v{V_TB+5}, {6*SLOT}, v{V_TB+1}
        v_lshl_add_u32 v{t+4}, v{t}, 2, v{t+4}
        v_mul_u32_u24 v{t+4}, 288, v{t+4}
        v_lshl_add_u32 v{V_T2}, v{t+3}, 3, v{t+4}
        v_add_u32 v{V_T2+1}, {3*SLOT}, v{V_T2}
        v_add_u32 v{V_T2+2}, {6*SLOT}, v{V_T2}""")
        L.append("@P2")
        L += lines(f"""
        s_lshl_b32 s85, s{S_M}, 2
        s_add_u32 s85, s85, s{S_KQ}
        s_lshl_b32 s85, s85, 9
        s_add_u32 s85, s85, {FL_OFF}
        v_and_b32 v{t}, 3, v1
        v_min_u32 v{t}, 2, v{t}
        v_add_u32 v{t}, 1, v{t}
        v_add_u32 v{t}, s{S_J}, v{t}
        v_and_b32 v{t}, 3, v{t}
        v_lshlrev_b32 v{t}, 7, v{t}
        v_add_u32 v{V_FL}, s85, v{t}
        s_and_b32 s84, s{S_W}, 1
        s_mul_i32 s84, s84, {16*1152}
        """)
        for q in range(5):
            L += lines(f"""
            v_add_u32 v{t}, {64*q}, v1
            v_mul_u32_u24 v{t+1}, 57, v{t}
            v_lshrrev_b32 v{t+1}, 10, v{t+1}
            v_mul_u32_u24 v{t+2}, 18, v{t+1}
            v_sub_u32 v{t+2}, v{t}, v{t+2}
            v_mul_u32_u24 v{t+3}, 1152, v{t+1}
            v_lshl_add_u32 v{t+3}, v{t+2}, 4, v{t+3}
            v_add_u32 v{V_W2+q}, s84, v{t+3}""")
            if q & 3: L.append(f"v_subrev_u32 v{V_W2+q}, {(q&3)*1024}, v{V_W2+q}")
        L.append(f"v_mov_b32 v{t}, {OOB}")
        L.append(f"v_cmp_gt_u32 vcc, 32, v1\n    s_nop 1\n    v_cndmask_b32 v{V_W2+4}, v{t}, v{V_W2+4}, vcc")
        L += lines(f"""
        s_mul_i32 s0, s{S_PAR}, {160*1152}
        s_sub_u32 s1, {160*1152}, s0
        s_mul_i32 s3, s{S_PAR}, {-128*1152}
        s_sub_u32 s37, {-128*1152}, s3
        s_mul_i32 s88, s{S_J}, 288
        """)
        for d in range(4):
            L += lines(f"""
            s_add_u32 s{84+d}, s{S_J}, {d}
            s_and_b32 s{84+d}, s{84+d}, 3
            s_lshl_b32 s89, s{S_KQ}, 2
            s_add_u32 s{84+d}, s{84+d}, s89
            s_lshl_b32 s89, s{S_M}, 4
            s_add_u32 s89, s89, s{84+d}
            s_mul_i32 s{S_HB+d}, s89, 73728
            s_mul_i32 s{84+d}, s{84+d}, {288*1152}
            s_add_u32 s{84+d}, s{84+d}, s88""")
        for c in range(18):
            (d0, i0), (d1, i1) = SEQ2[2 * c], SEQ2[2 * c + 1]
            def corr(d, i): return (0 if d % 2 == 0 else 1) if i < 4 else (3 if d % 2 == 0 else 37)
            L += lines(f"""
            s_add_u32 s88, s{84+d0}, s{corr(d0,i0)}
            s_add_u32 s88, s88, {32*i0*1152}
            s_add_u32 s89, s{84+d1}, s{corr(d1,i1)}
            s_add_u32 s89, s89, {32*i1*1152}""")
            L.append(f"s_cmp_lt_u32 s{S_W}, 2\n    s_cselect_b32 s{S_SO2+c}, s88, s89")
        return L

    def pf1_setup(self):
        t = V_T
        return lines(f"""
        s_and_b32 s84, s{S_M}, 7
        s_lshl_b32 s84, s84, 2
        s_add_u32 s84, s84, s{S_J}
        s_lshl_b32 s84, s84, 2
        s_add_u32 s84, s84, s{S_W}
        s_lshr_b32 s85, s{S_M}, 3
        s_lshl_b32 s85, s85, 10
        s_lshl_b32 s86, s84, 3
        s_add_u32 s85, s85, s86
        s_mul_i32 s85, s85, 1152
        v_lshrrev_b32 v{t+2}, 3, v1
        v_and_b32 v{t+3}, 7, v1
        v_mul_u32_u24 v{t+3}, 1152, v{t+3}
        v_lshl_add_u32 v{t+3}, v{t+2}, 7, v{t+3}
        v_add_u32 v{t+3}, 256, v{t+3}
        v_add_u32 v{t+3}, s85, v{t+3}
        v_mov_b32 v{t+4}, {OOB}
        v_cmp_gt_u32 vcc, 56, v1
        s_lshl_b32 s84, s84, 2
        s_mul_i32 s85, s{S_KQ}, {4*576}
        v_cndmask_b32 v{t}, v{t+4}, v{t+3}, vcc
        v_and_b32 v{t+2}, 3, v1
        v_add_u32 v{t+2}, s84, v{t+2}
        v_lshrrev_b32 v{t+3}, 3, v{t+2}
        v_lshrrev_b32 v{t+1}, 2, v1
        v_lshl_add_u32 v{t+3}, v{t+1}, 6, v{t+3}
        v_add_u32 v{t+3}, 128, v{t+3}
        v_mul_u32_u24 v{t+3}, 9216, v{t+3}
        v_and_b32 v{t+2}, 7, v{t+2}
        v_lshrrev_b32 v{t+1}, 1, v{t+2}
        v_mul_u32_u24 v{t+5}, 576, v{t+1}
        v_add_u32 v{t+3}, v{t+3}, v{t+5}
        v_and_b32 v{t+1}, 1, v{t+1}
        v_mul_u32_u24 v{t+1}, 320, v{t+1}
        v_add_u32 v{t+3}, v{t+3}, v{t+1}
        v_and_b32 v{t+2}, 1, v{t+2}
        v_lshl_add_u32 v{t+3}, v{t+2}, 7, v{t+3}
        v_add_u32 v{t+3}, s85, v{t+3}
        v_cmp_gt_u32 vcc, 28, v1
        s_nop 1
        v_cndmask_b32 v{t+1}, v{t+4}, v{t+3}, vcc
        """)
    def w_items(self, C):
        slot = self.wslot[C]
        if C < 9:
            it = [(f"s_add_u32 s{S_WSO}, s{S_CBA}, s{S_TW+C}", 's', None),
                  (f"s_add_u32 m0, s{S_MX}, {slot*SLOT}", 's', None)]
            for q in range(4):
                it.append((f"buffer_load_dwordx4 v{V_WA+q}, s[{S_W1}:{S_W1+3}], s{S_WSO} offen offset:{q*1024} lds", 'm', ('W', C)))
            return it
        if C < 18:
            vb, sr, so = V_WB, S_W1, S_WSO
            it = [(f"s_add_u32 s{S_WSO}, s{S_CBB}, s{S_TW+C-9}", 's', None)]
        else:
            vb, sr, so = V_W2, S_W2, S_SO2 + C - 18
            it = []
        it.append((f"s_add_u32 m0, s{S_MW}, {slot*SLOT}", 's', None))
        for q in range(4):
            it.append((f"buffer_load_dwordx4 v{vb+q}, s[{sr}:{sr+3}], s{so} offen offset:{q*1024} lds", 'm', ('W', C)))
        it.append((f"s_add_u32 m0, s{S_MW}, {slot*SLOT+4096}", 's', None))
        it.append((f"buffer_load_dwordx4 v{vb+4}, s[{sr}:{sr+3}], s{so} offen lds", 'm', ('W', C)))
        return it
    def x_items(self, c):
        slot = 5 + c % 3
        it = [(f"s_add_u32 m0, s{S_MX}, {slot*SLOT}", 's', None)]
        for q in range(4):
            it.append((f"buffer_load_dwordx4 v{V_X+q}, s[{S_X}:{S_X+3}], s{S_TX+c} offen offset:{q*1024} lds", 'm', ('X', c)))
        return it
    def push_dma(self, items, g0, span):
        e = self.e
        q = e.streams.get('dma', [])
        if q: g0 = max(g0, q[-1].early + 1)
        nm = sum(1 for it in items if it[1] == 'm')
        step = max(1, span // max(1, nm))
        g = g0
        for (t, kind, tag) in items:
            if kind == 'm':
                e.push('dma', t, kind, tag, early=g, late=g + 2)
                g += step
            else:
                e.push('dma', t, kind, tag, early=max(g0, g - 2), late=max(g0, g - 1) + 1)
                if " m0," in t and g == g0: g += 1
        return g

    def frag_reads(self, si):
        kind, k = STEPS[si]
        C, ks = si // 2, si % 2
        slot = self.wslot[C]
        dst0 = AW + 40 * (si % 2)
        out = []
        for f in range(nfrag(kind)):
            for h in range(2):
                d = dst0 + 4 * f + 2 * h
                if kind == 'A':
                    vb = V_TA + f + (8 if slot >= 3 else 0)
                    off = (slot % 3) * SLOT + ks * 8192 + h * 1024
                elif kind == 'B':
                    vb = V_TB + (f & 1) + 2 * (slot // 3)
                    off = (slot % 3) * SLOT + ks * 10240 + h * 1280 + f * 32
                else:
                    vb = V_T2 + slot // 3
                    off = (slot % 3) * SLOT + ks * 10240 + h * 5120 + f * 32
                out.append((f"ds_read_b64_tr_b16 a[{d}:{d+1}], v{vb} offset:{off}", ('WF', si, f)))
        return out
    def x_reads(self, kt):
        c, p = kt // 2, kt % 2
        return [(f"ds_read_b128 a[{AX+8*kt+4*t}:{AX+8*kt+4*t+3}], v{V_XR+p} offset:{(c%3)*SLOT + t*2048}", ('XF', kt)) for t in range(2)]

    def bias_cvt(self, n, base):
        out = []
        for ft in range(n):
            q = base + 4 * ft
            out += [f"v_lshlrev_b32 v{q}, 16, v{q+2}", f"v_and_b32 v{q+1}, 0xffff0000, v{q+2}",
                    f"v_lshlrev_b32 v{q+2}, 16, v{q+3}", f"v_and_b32 v{q+3}, 0xffff0000, v{q+3}"]
        return out
    def epi_items(self, acc, il, istore, t):
        P = acc + 16 * il + 4 * t; Q = P + 8
        it = []
        for r in range(4): it.append((f"v_mul_f32 v{P+r}, v{P+r}, |v{P+r}|", 'v', None))
        for r in range(4): it.append((f"v_mul_f32 v{Q+r}, v{Q+r}, |v{Q+r}|", 'v', None))
        it += [(f"v_cvt_pk_bf16_f32 v{P}, v{P}, v{P+1}", 'v', None), (f"v_cvt_pk_bf16_f32 v{P+1}, v{P+2}, v{P+3}", 'v', None),
               (f"v_cvt_pk_bf16_f32 v{P+2}, v{Q}, v{Q+1}", 'v', None), (f"v_cvt_pk_bf16_f32 v{P+3}, v{Q+2}, v{Q+3}", 'v', None)]
        for r in range(4): it.append((f"v_pk_max_i16 v{P+r}, v{P+r}, 0", 'v', None))
        if t == 0: it.append((f"s_add_u32 s{S_T2}, s{S_HSO}, {istore*8192}", 's', None))
        it.append((f"buffer_store_dwordx4 v[{P}:{P+3}], v{V_HS}, s[{S_WS}:{S_WS+3}], s{S_T2} offen offset:{t*1024}" + (" sc1" if opt("hsc1") else ""), 'm', ('HS', 'A' if istore < 4 else 'B')))
        return it

    def poll_check(self, load_text, cond_bad, name):
        self.nlabel += 1
        lb = f"L_{name}_{self.nlabel}"
        self.slow.append(f"""
        {lb}_slow:
        s_mov_b32 s91, {SPIN_LIMIT}
        {lb}_spin:
        {load_text}
        s_waitcnt vmcnt(0)
        {cond_bad}
        s_nop 1
        s_cbranch_vccz {lb}_back
        s_sub_u32 s91, s91, 1
        s_cmp_lg_u32 s91, 0
        s_cbranch_scc1 {lb}_spin
        s_branch {lb}_back
        """)
        return f"{cond_bad}\n    s_nop 1\n    s_cbranch_vccnz {lb}_slow\n{lb}_back:"

    def prologue(self):
        e = self.e
        t = V_T
        stamp(e, 0)
        e.raw(f"""
        s_cmp_ge_u32 s2, 256
        s_cbranch_scc1 L_end
        s_load_dwordx16 s[{KA}:{KA+15}], s[0:1], 0
        """)
        if opt("icpf", "1") == "1":
            e.raw(f"""
            s_getpc_b64 s[90:91]
            L_pc:
            v_lshlrev_b32 v{t}, 7, v0
            v_min_u32 v{t+1}, L_code_end-L_pc-4, v{t}""")
            e.vmem(f"global_load_dword v255, v{t+1}, s[90:91]", 'IC')
            e.raw(f"v_add_u32 v{t}, 32768, v{t}\nv_min_u32 v{t+1}, L_code_end-L_pc-4, v{t}")
            e.vmem(f"global_load_dword v255, v{t+1}, s[90:91]", 'IC')
        for x in self.setup_first(): e.raw(x)
        stamp(e, 3, True) if opt("pstamp") else None
        e.raw("s_waitcnt lgkmcnt(0)")
        stamp(e, 4, True) if opt("pstamp") else None
        for x in srd(S_X, KA, X_BYTES) + srd(S_W1, KA + 2, W1_BYTES) + srd(S_B1, KA + 4, B1_BYTES) + srd(S_DBG, KA + 8, B2_BYTES): e.raw(x)
        self.wslot = {0: 0, 1: 1, 2: 2, 3: 3, 4: 4}
        def emit_items(items):
            for (tx, k, tag) in items:
                if k == 'm': e.vmem(tx, tag)
                else: e.raw(tx)
        emit_items([(f"s_mov_b32 m0, {BIAS_LDS}", 's', None),
                    (f"buffer_load_dwordx4 v{t+5}, s[{S_B1}:{S_B1+3}], s86 offen lds", 'm', 'BI'),
                    (f"s_mov_b32 m0, {BIAS_LDS+1024}", 's', None),
                    (f"buffer_load_dwordx4 v{t+6}, s[{S_DBG}:{S_DBG+3}], s87 offen lds", 'm', 'BI')])
        emit_items(self.x_items(0) + self.w_items(0))
        stamp(e, 5, True) if opt("pstamp") else None
        for x in srd(S_WS, KA + 14, WS_BYTES) + srd(S_W2, KA + 6, W2_BYTES) + srd(S_OUT, KA + 10, OUT_BYTES): e.raw(x)
        e.raw(f"s_mov_b32 s100, s{KA+12}\ns_mov_b32 s101, s{KA+13}\ns_getreg_b32 s{S_XCC}, hwreg(HW_REG_XCC_ID, 0, 4)")
        for x in self.setup_reads_A(): e.raw(x)
        for x in self.setup_late():
            if x != "@P2": e.raw(x)
        e.raw(f"""
        s_or_b32 s88, s2, s{S_W}
        v_mov_b32 v{t}, {OOB}
        v_mov_b32 v{t+1}, {EP_OFF}
        v_or_b32 v{t+2}, s88, v1
        v_cmp_eq_u32 vcc, 0, v{t+2}
        s_nop 1
        v_cndmask_b32 v{V_NP}, v{t}, v{t+1}, vcc""")
        e.raw(f"""
        s_mul_i32 s84, s{S_S}, 576
        s_sub_u32 s85, s{S_CBA}, s84
        s_sub_u32 s86, s{S_CBB}, s84
        s_add_u32 s85, s85, {BIAS_LDS}
        s_add_u32 s86, s86, {BIAS_LDS}
        v_add_u32 v{t}, s85, v{V_BI}
        v_add_u32 v{t+1}, s86, v{V_BI}
        v_add_u32 v{t+2}, {BIAS_LDS+1024}, v{V_BI}
        """)
        stamp(e, 6, True) if opt("pstamp") else None
        e.wait_vm('BI')
        stamp(e, 7, True) if opt("pstamp") else None
        for ft in range(8): e.ds(f"ds_read_b64 v[{ACC_B+4*ft+2}:{ACC_B+4*ft+3}], v{t} offset:{32*ft}", 'BR')
        for ft in range(10): e.ds(f"ds_read_b64 v[{BIASB+4*ft+2}:{BIASB+4*ft+3}], v{t+1} offset:{32*ft}", 'BR')
        for nt in range(9): e.ds(f"ds_read_b64 a[{AB2+2*nt}:{AB2+2*nt+1}], v{t+2} offset:{32*nt}", 'BR')
        e.raw(f"s_mov_b32 s{S_DBG}, s100\ns_mov_b32 s{S_DBG+1}, s101\ns_mov_b32 s{S_DBG+2}, 256")
        e.wait_lg_all()
        for x in self.bias_cvt(8, ACC_B) + self.bias_cvt(10, BIASB): e.raw(x)
        emit_items(self.x_items(1) + self.w_items(1))
        stamp(e, 1, bool(opt("pstamp")))
        e.wait_vm([('W', 0), ('X', 0)])
        e.raw("s_barrier")
        stamp(e, 2, bool(opt("pstamp")))
        self.pro_rest = [self.x_items(2), self.w_items(2),
                         [(f"buffer_load_dword v{V_P}, v{V_NP}, s[{S_WS}:{S_WS+3}], 0 offen sc1", 'm', 'EP')], self.w_items(3), self.w_items(4)]
        for (tx, tag) in self.frag_reads(0): e.ds(tx, tag)
        for (tx, tag) in self.x_reads(0): e.ds(tx, tag)
    @staticmethod
    def _glued(prev):
        return prev.startswith("s_cmp") or prev.startswith("v_cmp") or prev.startswith("s_nop")

    def build(self):
        e = self.e
        self.prologue()
        g = 0
        for grp in self.pro_rest: g = self.push_dma(grp, g, iopt("pro_span", 8))
        nextW = 5
        LOOK = iopt("look", 8)
        for si, (kind, k) in enumerate(STEPS):
            nf = nfrag(kind); ngap = 2 * nf
            C, ks = si // 2, si % 2
            g0 = e.gap
            assert g0 == GOS[si]
            cur = AW + 40 * (si % 2)
            if (kind, k) == ('B', 0): stamp(e, 3)
            if (kind, k) == ('P', 0): stamp(e, 4)
            if (kind, k) == ('P', 9): stamp(e, 5)
            have_next = si + 1 < len(STEPS)
            reads = []
            if have_next:
                reads = self.frag_reads(si + 1)
                nkind, nk = STEPS[si + 1]
                if nkind == 'A':
                    xr = self.x_reads(nk)
                    reads = reads[:2] + xr[:1] + reads[2:4] + xr[1:] + reads[4:]
            per = [[] for _ in range(ngap)]
            nr = len(reads)
            for i_, r in enumerate(reads):
                per[(i_ * ngap) // nr if nr > ngap else i_].append(r)
            pre0 = []
            if have_next and ks == 1:
                nC = C + 1
                pre0 = ["s_barrier"]
                if opt("chunkstamp"):
                    pre0 = pre0 + [f"v_writelane_b32 v63, s90, {nC-1}", "s_memtime s[90:91]"]
                if nC - 2 >= 0: self.free.append(self.wslot[nC - 2])
                span = ngap + 2 * nfrag(STEPS[min(si + 1, len(STEPS) - 1)][0])
                cursor = g0 + 1
                if kind == 'A' and C + 3 < 9:
                    cursor = self.push_dma(self.x_items(C + 3), cursor, span // 2 - 2)
                if kind == 'A' and C >= 6:
                    self.free.append(5 + C % 3)
                nissue = 0
                maxissue = iopt("wA", 1) if kind == 'A' else (iopt("wB", 2) if kind == 'B' else iopt("wP", 1))
                while self.free and nextW < 36 and nextW <= nC + LOOK and (nissue < maxissue or nextW <= nC + 2):
                    if nextW >= 18 and si < iopt("w2_resume", 31): break
                    cand = [s_ for s_ in self.free if (nextW >= 9 or s_ < 5)]
                    if not cand: break
                    sl = cand[0]; self.free.remove(sl)
                    self.wslot[nextW] = sl
                    more = len(self.free) > 0 and nextW + 1 < 36 and nextW + 1 <= nC + LOOK and nissue + 1 < maxissue
                    rem = max(8, g0 + span - cursor - 2)
                    cursor = self.push_dma(self.w_items(nextW), cursor, rem // 2 if more else rem)
                    nextW += 1; nissue += 1
                    if nextW == 18 and opt("pf2", "1") == "1": self.push_pf2(cursor + 1)
                self.after_barrier_hooks(si, g0)
            self.step_hooks(si, kind, k, g0, ngap)
            def waits_for(sj, gi):
                kj, kk = STEPS[sj]; nfj = nfrag(kj)
                w = []
                f, t = gi // 2, gi % 2
                G = 4 if kj == 'A' else 5
                if t == 0 and f % G == 0:
                    tags = [('WF', sj, min(f + G - 1, nfj - 1))]
                    if f == 0 and kj == 'A': tags.append(('XF', kk))
                    w.append(('lg', tags))
                if gi == 0 and kj == 'P' and SEQ2[kk][0] != 0:
                    w.append(('vm', [('H', kk)]))
                return w
            for f in range(nf):
                for t in range(2):
                    gi = 2 * f + t
                    A = f"a[{cur+4*f}:{cur+4*f+3}]"
                    if kind in 'AB':
                        B = f"a[{AX+8*k+4*t}:{AX+8*k+4*t+3}]"
                        acc = (ACC_A if kind == 'A' else ACC_B) + 8 * f + 4 * t
                        D = f"v[{acc}:{acc+3}]"
                        if k == 0:
                            bq = (ACC_B if kind == 'A' else BIASB) + 4 * f
                            Cc = f"v[{bq}:{bq+3}]"
                        else: Cc = D
                    else:
                        d, i = SEQ2[k]
                        if d == 0:
                            hb = (ACC_A + 16 * i if i < 4 else ACC_B + 16 * (i - 4)) + 4 * t
                            B = f"v[{hb}:{hb+3}]"
                        else:
                            hb = AH + 8 * RING[k] + 4 * t
                            B = f"a[{hb}:{hb+3}]"
                        acc = acc2(f, t)
                        D = f"v[{acc}:{acc+3}]"
                        Cc = "0" if k == 0 else D
                    if si == 0 and gi == 0:
                        e.wait_lg([('WF', 0, 3), ('XF', 0)])
                    post = []
                    if gi + 1 < ngap: post += waits_for(si, gi + 1)
                    elif have_next:
                        post += waits_for(si + 1, 0)
                        if ks == 0 and si + 2 < len(STEPS):
                            nC = C + 1
                            tags = [('W', nC)]
                            if kind == 'A' and nC < 9: tags.append(('X', nC))
                            tags += self.extra_barrier_tags(si + 1)
                            post.append(('vm', tags))
                    e.mfma_gap(f"v_mfma_f32_16x16x32_bf16 {D}, {A}, {B}, {Cc}", pre=pre0 if gi == 0 else (), dss=per[gi], post=post)
        e.flush_streams()
        if opt("chunkstamp"):
            e.raw("s_waitcnt lgkmcnt(0)\nv_writelane_b32 v63, s90, 35\ns_memtime s[90:91]\ns_waitcnt lgkmcnt(0)\nv_writelane_b32 v63, s90, 36")
        stamp(e, 6)
        self.tail()
        e.raw("L_end:\ns_endpgm")
        for s_ in self.slow: e.raw(s_)
        e.raw("L_code_end:")
        print(e.stats, "slots:", self.wslot, file=sys.stderr)
        if opt("vmlog"):
            for (g, tags, n, newly) in e.log:
                y = newly[-1] if newly else None
                summary = {}
                for (t, gg) in newly: summary.setdefault(str(t), []).append(gg)
                print(f"gap {g:5d} wait {tags} vmcnt({n}) youngest {y} dist {g - y[1] if y else 0}  covers " + ", ".join(f"{k}@{v[0]}-{v[-1]}" for k, v in summary.items()), file=sys.stderr)
        return e.text()

    PUB_A = iopt("pubA", 18 + 17)
    PUB_B = iopt("pubB", 36 + 11)
    def extra_barrier_tags(self, si):
        if si == self.PUB_A: return [('HS', 'A')]
        if si == self.PUB_B: return [('HS', 'B')]
        return []
    def after_barrier_hooks(self, si, g0):
        e = self.e
        if si in (self.PUB_A, self.PUB_B):
            part = 0 if si == self.PUB_A else 1
            self.nlabel += 1
            lb = f"L_rel_{self.nlabel}"
            st = f"buffer_store_dword v{V_P}, v{V_FS}, s[{S_WS}:{S_WS+3}], 0 offen offset:{4*part}"
            self.slow.append(f"""
            {lb}_slow:
            buffer_wbl2 sc1
            s_waitcnt vmcnt(0)
            {st} sc1
            s_branch {lb}_back
            """)
            e.push('flag', f"v_mov_b32 v{V_P}, s{S_N}", 'v', early=g0 + 1, late=g0 + 1)
            e.push('flag', f"s_cmp_eq_u32 s{S_MODE}, 0\n    s_cbranch_scc1 {lb}_slow\n    {st}" + (" sc1" if opt("flagsc1") else "") + f"\n{lb}_back:", 'm', ('FS', part), early=g0 + 2, late=g0 + 2)

    def push_pf2(self, g):
        e = self.e; t = V_T
        for n_, tx in enumerate([f"s_and_b32 s100, s{S_M}, 7", f"s_lshl_b32 s100, s100, 2", f"s_add_u32 s100, s100, s{S_J}", f"s_mul_i32 s100, s100, {36*1152}",
                   f"s_mul_i32 s101, s{S_KQ}, {1152*1152}", f"s_add_u32 s100, s100, s101", f"s_mul_i32 s101, s{S_W}, {81*128}", f"s_add_u32 s100, s100, s101",
                   f"v_lshlrev_b32 v{t}, 7, v1", f"v_mov_b32 v{t+2}, {OOB}", f"v_add_u32 v{t+1}, {64*128}, v{t}",
                   f"v_cmp_gt_u32 vcc, 17, v1\n    s_nop 1\n    v_cndmask_b32 v{t+1}, v{t+2}, v{t+1}, vcc"]):
            e.push('pf', tx, 's', early=max(0, g - 30), late=max(0, g - 14) + n_)
        e.push('dma', f"buffer_load_dword v255, v{t}, s[{S_W2}:{S_W2+3}], s100 offen", 'm', 'PF', early=g, late=g + 2)
        e.push('dma', f"buffer_load_dword v255, v{t+1}, s[{S_W2}:{S_W2+3}], s100 offen", 'm', 'PF', early=g + 1, late=g + 3)

    def step_hooks(self, si, kind, k, g0, ngap):
        e = self.e
        if (kind, k) == ('A', iopt("ep_at", 4)):
            e.push('nonce', lambda: e.vm_wait_text('EP'), 'w', early=g0, late=g0 + 2)
            for t in [f"v_add_u32 v{V_P}, 1, v{V_P}", f"v_or_b32 v{V_P}, 0x80000000, v{V_P}"]:
                e.push('nonce', t, 'v', early=g0, late=g0 + 4)
            e.push('nonce', f"buffer_store_dword v{V_P}, v{V_NP}, s[{S_WS}:{S_WS+3}], 0 offen sc1", 'm', 'EPW', early=g0, late=g0 + 6)
            e.push('nonce', f"v_subrev_u32 v{V_NP}, {EP_OFF}, v{V_NP}", 'v', early=g0, late=g0 + 8)
            e.push('nonce', f"buffer_store_dword v{V_P}, v{V_NP}, s[{S_DBG}:{S_DBG+3}], 0 offen sc1", 'm', 'NW', early=g0, late=g0 + 10)
        NR = iopt("nr_at", 12); NC = iopt("nc_at", 16)
        ldn = f"buffer_load_dword v{V_P}, v{V_NP}, s[{S_DBG}:{S_DBG+3}], 0 offen sc1"
        if (kind, k) == ('A', NR):
            e.push('nonce', f"v_mov_b32 v{V_NP}, 0", 'v', early=g0, late=g0 + 2)
            e.push('nonce', ldn, 'm', 'NR', early=g0 + 1, late=g0 + 4)
        if (kind, k) == ('A', NC):
            e.push('nonce', lambda: e.vm_wait_text('NR'), 'w', early=g0, late=g0 + 2)
            e.push('nonce', self.poll_check(ldn, f"v_cmp_eq_u32 vcc, 0, v{V_P}", "nonce"), 's', early=g0, late=g0 + 5)
            e.push('nonce', f"v_readfirstlane_b32 s{S_N}, v{V_P}\n    s_nop 3", 'v', early=g0, late=g0 + 8)
            e.push('nonce', f"s_lshl_b32 s100, s{S_N}, 4\n    s_or_b32 s100, s100, s{S_XCC}", 's', early=g0, late=g0 + 10)
            e.push('nonce', f"v_mov_b32 v{V_P}, s100", 'v', early=g0, late=g0 + 11)
            e.push('nonce', f"buffer_store_dword v{V_P}, v{V_FS}, s[{S_WS}:{S_WS+3}], 0 offen offset:8 sc1", 'm', 'XW', early=g0, late=g0 + 12)
        XR = iopt("xr_at", 2); XC = iopt("xc_at", 5)
        ldx = f"buffer_load_dword v{V_P}, v{V_FL}, s[{S_WS}:{S_WS+3}], 0 offen offset:8 sc1"
        if (kind, k) == ('B', XR):
            e.push('nonce', ldx, 'm', 'XR', early=g0, late=g0 + 3)
        if (kind, k) == ('B', XC):
            e.push('nonce', lambda: e.vm_wait_text('XR'), 'w', early=g0, late=g0 + 2)
            e.push('nonce', f"s_and_b32 s101, s{S_N}, 0x0fffffff", 's', early=g0, late=g0 + 3)
            cond = f"v_lshrrev_b32 v{V_NP}, 4, v{V_P}\n    v_cmp_ne_u32 vcc, s101, v{V_NP}"
            e.push('nonce', self.poll_check(ldx, cond, "xcc"), 's', early=g0, late=g0 + 6)
            e.push('nonce', f"v_and_b32 v{V_NP}, 15, v{V_P}", 'v', early=g0, late=g0 + 8)
            e.push('nonce', f"v_cmp_ne_u32 vcc, s{S_XCC}, v{V_NP}\n    s_nop 3\n    s_cmp_eq_u64 vcc, 0\n    s_cselect_b32 s{S_MODE}, 1, 0", 'v', early=g0, late=g0 + 9)
            if opt("forcesafe"): e.push('nonce', f"s_mov_b32 s{S_MODE}, 0", 's', early=g0, late=g0 + 12)
        if (kind, k) == ('B', 1):
            its = [x for i in range(4) for t in range(2) for x in self.epi_items(ACC_A, i, i, t)]
            valu = [x for x in its if x[1] == 'v']
            self.storesA = [x for x in its if x[1] != 'v']
            end = GOS[18 + iopt("epiA_late", 12)]
            if opt("deferA", "1") != "1":
                valu = its; self.storesA = []
            for n, (tx, kk, tag) in enumerate(valu):
                e.push('epi', tx, kk, tag, early=g0, late=g0 + ((n + 1) * (end - g0)) // len(valu))
        if si == iopt("storesA_at", 31) and self.storesA:
            for n, (tx, kk, tag) in enumerate(self.storesA):
                e.push('epi', tx, kk, tag, early=g0 + 2 * n, late=g0 + 2 * n + 3)
        if (kind, k) == ('P', 0):
            its = [(i, x) for i in range(5) for t in range(2) for x in self.epi_items(ACC_B, i, 4 + i, t)]
            end = GOS[36 + iopt("epiB_late", 8)]
            for n, (i, (tx, kk, tag)) in enumerate(its):
                late = g0 + 2 + ((n + 1) * (end - g0 - 2)) // len(its)
                e.push('epi', tx, kk, tag, early=g0 + 2, late=min(late, GOS[36 + OWNB[4 + i]] - 4))
        if kind == 'P' or (kind == 'B' and k >= 14):
            LA = iopt("LA", 4)
            q = k if kind == 'P' else k - 18
            for part, q0 in enumerate((QA0, QB0)):
                ld = f"buffer_load_dword v{V_P}, v{V_FL}, s[{S_WS}:{S_WS+3}], 0 offen offset:{4*part} sc1"
                chk = q0 - LA; pol = chk - iopt("polld", 2)
                if q == pol:
                    e.push('poll', ld, 'm', ('FP', part), early=g0 + 4, late=g0 + 5)
                if q == chk:
                    e.push('poll', (lambda part=part: e.vm_wait_text(('FP', part))), 'w', early=g0, late=g0)
                    e.push('poll', self.poll_check(ld, f"v_cmp_ne_u32 vcc, s{S_N}, v{V_P}", f"flag{part}"), 's', early=g0, late=g0 + 1)
                    self.nlabel += 1
                    lb = f"L_acq_{self.nlabel}"
                    self.slow.append(f"""
                    {lb}_slow:
                    buffer_inv sc1
                    s_waitcnt vmcnt(0)
                    s_branch {lb}_back
                    """)
                    e.push('poll', f"s_cmp_eq_u32 s{S_MODE}, 0\n    s_cbranch_scc1 {lb}_slow\n{lb}_back:", 's', early=g0, late=g0 + 2)
            assert LA < HD
            qn = q + LA
            if qn in RING:
                d, i = SEQ2[qn]
                dst = AH + 8 * RING[qn]
                e.push('hld', f"s_add_u32 s{S_T}, s{S_HB+d}, {i*8192}", 's', early=g0 + 3, late=g0 + 4)
                for t in range(2):
                    e.push('hld', f"buffer_load_dwordx4 a[{dst+4*t}:{dst+4*t+3}], v{V_HS}, s[{S_WS}:{S_WS+3}], s{S_T} offen offset:{t*1024} sc1", 'm', ('H', qn), early=g0 + 5 + 7 * t, late=g0 + 7 + 7 * t)

    def tail(self):
        e = self.e
        t = V_T
        V_TAG, V_BAD, V_PA, V_O = t + 4, t + 5, t + 6, t + 1
        e.raw(f"""
        s_lshl_b32 s84, s{S_M}, 2
        s_add_u32 s84, s84, s{S_J}
        s_lshl_b32 s84, s84, 2
        v_lshlrev_b32 v{t}, 4, v1
        s_and_b32 s89, s{S_N}, {TAGMASK}
        v_mov_b32 v{V_TAG}, s89
        s_mov_b32 s89, {TAGMASK}
        s_cmp_eq_u32 s{S_W}, s{S_KQ}
        s_cbranch_scc1 L_recv
        s_add_u32 s85, s84, s{S_W}
        s_lshl_b32 s85, s85, 2
        s_add_u32 s85, s85, s{S_KQ}
        s_mul_i32 s85, s85, 18432
        s_add_u32 s85, s85, {P_OFF}
        """)
        k = 0
        for nt in range(9):
            for tt in range(2):
                r = acc2(nt, tt)
                if k % 4 == 0 and k: e.raw("s_add_u32 s85, s85, 4096")
                for x in range(4): e.raw(f"v_bfi_b32 v{r+x}, s89, v{V_TAG}, v{r+x}")
                e.raw(f"buffer_store_dwordx4 v[{r}:{r+3}], v{t}, s[{S_WS}:{S_WS+3}], s85 offen offset:{(k%4)*1024} sc1")
                k += 1
        e.raw("s_branch L_end\nL_recv:")
        e.raw(f"s_add_u32 s85, s84, s{S_KQ}\ns_lshl_b32 s85, s85, 2")
        for d in range(1, 4):
            e.raw(f"""
            s_add_u32 s86, s{S_KQ}, {d}
            s_and_b32 s86, s86, 3
            s_add_u32 s86, s86, s85
            s_mul_i32 s86, s86, 18432
            s_add_u32 s{S_TW+d}, s86, {P_OFF}""")
        e.raw(f"""
        v_mul_u32_u24 v{V_PA}, 43, v1
        v_lshrrev_b32 v{V_PA}, 7, v{V_PA}
        v_mul_u32_u24 v{t+7}, 3, v{V_PA}
        v_sub_u32 v{t+7}, v1, v{t+7}
        v_mul_u32_u24 v{V_PA}, {6*1024}, v{V_PA}
        v_add_u32 v{V_PA}, {5*1024+1008}, v{V_PA}
        v_mov_b32 v{t+8}, s{S_TW+1}
        v_mov_b32 v{V_BAD}, s{S_TW+2}
        v_cmp_eq_u32 vcc, 1, v{t+7}
        s_nop 1
        v_cndmask_b32 v{t+8}, v{t+8}, v{V_BAD}, vcc
        v_mov_b32 v{V_BAD}, s{S_TW+3}
        v_cmp_eq_u32 vcc, 2, v{t+7}
        s_nop 1
        v_cndmask_b32 v{t+8}, v{t+8}, v{V_BAD}, vcc
        v_add_u32 v{V_PA}, v{V_PA}, v{t+8}
        v_mov_b32 v{V_BAD}, {OOB}
        v_cmp_gt_u32 vcc, 9, v1
        s_nop 1
        v_cndmask_b32 v{V_PA}, v{V_BAD}, v{V_PA}, vcc
        s_lshl_b32 s86, s{S_M}, 7
        s_lshl_b32 s87, s{S_W}, 5
        s_add_u32 s86, s86, s87
        s_mul_i32 s86, s86, 1152
        s_mul_i32 s87, s{S_J}, 288
        s_add_u32 s86, s86, s87
        v_and_b32 v{V_O}, 15, v1
        v_mul_u32_u24 v{V_O}, 1152, v{V_O}
        v_add_u32 v{V_O}, v{V_O}, v{V_BI}
        v_add_u32 v{V_O+1}, {16*1152}, v{V_O}
        """)
        POLL = f"buffer_load_dword v{V_P}, v{V_PA}, s[{S_WS}:{S_WS+3}], 0 offen sc1"
        e.raw(POLL)
        for nt in range(9):
            e.raw(f"""
            v_accvgpr_read_b32 v{t+7}, a{AB2+2*nt}
            v_accvgpr_read_b32 v{t+8}, a{AB2+2*nt+1}
            v_lshlrev_b32 v{V_NP}, 16, v{t+7}
            v_and_b32 v{t+7}, 0xffff0000, v{t+7}
            v_lshlrev_b32 v{V_FS}, 16, v{t+8}
            v_and_b32 v{t+8}, 0xffff0000, v{t+8}""")
            for tt in range(2):
                r = acc2(nt, tt)
                e.raw(f"v_add_f32 v{r}, v{r}, v{V_NP}\nv_add_f32 v{r+1}, v{r+1}, v{t+7}\nv_add_f32 v{r+2}, v{r+2}, v{V_FS}\nv_add_f32 v{r+3}, v{r+3}, v{t+8}")
        vz = [ACC_B + 4 * i for i in range(20)] + [ACC_A + 16 * i + 4 * tt for i in range(4) for tt in range(2)]
        zones = [('v', r) for r in vz[:27]] + [('a', 4 * i) for i in range(27)]
        def zone(k, d): return zones[3 * k + d]
        TMP = [V_X, V_X + 1, V_X + 2, V_X + 3]
        vm = []
        def issue(k):
            for d in range(3):
                kind, r = zone(k, d)
                so = S_TW + 5 + d
                if k % 4 == 0 or k % 6 == 0: e.raw(f"s_add_u32 s{so}, s{S_TW+1+d}, {(k//4)*4096}")
                e.raw(f"buffer_load_dwordx4 {kind}[{r}:{r+3}], v{t}, s[{S_WS}:{S_WS+3}], s{so} offen offset:{(k%4)*1024} sc1")
                vm.append(('L', k))
        def ready_mask(third): return 7 << (3 * third)
        def wait_ready(third, npend):
            lb = f"L_tw{third}"
            e.raw(f"""
            s_waitcnt vmcnt({npend})
            {lb}_chk:
            v_xor_b32 v{t+7}, v{V_TAG}, v{V_P}
            v_and_b32 v{t+7}, {TAGMASK}, v{t+7}
            v_cmp_eq_u32 vcc, 0, v{t+7}
            s_nop 3
            s_and_b32 s87, vcc_lo, {ready_mask(third)}
            s_cmp_eq_u32 s87, {ready_mask(third)}
            s_cbranch_scc1 {lb}_go
            s_sub_u32 s91, s91, 1
            s_cmp_eq_u32 s91, 0
            s_cbranch_scc1 {lb}_go
            {POLL}
            s_waitcnt vmcnt(0)
            s_branch {lb}_chk
            {lb}_go:""")
        def process(k):
            nt, tt = k // 2, k % 2
            r = acc2(nt, tt)
            last = max(i for i, v in enumerate(vm) if v == ('L', k))
            e.raw(f"s_waitcnt vmcnt({min(len(vm) - 1 - last, 63)})")
            src = []
            for d in range(3):
                kind, z = zone(k, d)
                if kind == 'a':
                    base = V_W2 + 0 if False else None
                src.append((kind, z))
            S = TMP
            for x in range(4):
                vals = []
                for d, (kind, z) in enumerate(src):
                    if kind == 'v': vals.append(z + x)
                    else:
                        tr = V_TA + 4 * d + x
                        e.raw(f"v_accvgpr_read_b32 v{tr}, a{z+x}")
                        vals.append(tr)
                e.raw(f"""
                v_add_f32 v{S[x]}, v{r+x}, v{vals[0]}
                v_xor_b32 v{V_TA+12}, v{V_TAG}, v{vals[0]}
                v_add_f32 v{S[x]}, v{S[x]}, v{vals[1]}
                v_xor_b32 v{V_TA+13}, v{V_TAG}, v{vals[1]}
                v_add_f32 v{S[x]}, v{S[x]}, v{vals[2]}
                v_or3_b32 v{V_BAD}, v{V_TA+12}, v{V_TA+13}, v{V_BAD}
                v_xor_b32 v{V_TA+12}, v{V_TAG}, v{vals[2]}
                v_or_b32 v{V_BAD}, v{V_TA+12}, v{V_BAD}""")
            o = V_TB + 2 * (k % 2)
            e.raw(f"v_cvt_pk_bf16_f32 v{o}, v{S[0]}, v{S[1]}\nv_cvt_pk_bf16_f32 v{o+1}, v{S[2]}, v{S[3]}")
            e.raw(f"buffer_store_dwordx2 v[{o}:{o+1}], v{V_O+tt}, s[{S_OUT}:{S_OUT+3}], s86 offen offset:{32*nt}" + (" sc1" if opt("outsc1") else ""))
            vm.append(('S', k))
        e.raw(f"s_mov_b32 s91, {SPIN_LIMIT}\ns_mov_b32 s88, 64\nL_redo:\nv_mov_b32 v{V_BAD}, 0")
        wait_ready(0, 0)
        stamp(e, 7) if opt("stamp7", "poll") == "poll" and not opt("pstamp") else None
        e.raw(POLL); vm.append('P')
        for k in range(0, 6): issue(k)
        wait_ready(1, 18)
        e.raw(POLL); vm.append('P')
        for k in range(6, 12): issue(k)
        for k in range(0, 6): process(k)
        idx = max(i for i, v in enumerate(vm) if v == 'P')
        wait_ready(2, min(len(vm) - 1 - idx, 63))
        for k in range(12, 18): issue(k)
        for k in range(6, 18): process(k)
        e.raw(f"""
        v_and_b32 v{V_BAD}, {TAGMASK}, v{V_BAD}
        v_cmp_ne_u32 vcc, 0, v{V_BAD}
        s_nop 3
        s_cmp_eq_u64 vcc, 0
        s_cbranch_scc1 L_tdone
        s_sub_u32 s88, s88, 1
        s_cmp_eq_u32 s88, 0
        s_cbranch_scc1 L_tdone
        s_waitcnt vmcnt(0)
        {POLL}
        s_waitcnt vmcnt(0)
        s_branch L_redo
        L_tdone:
        """)
        if STAMP:
            e.raw("s_waitcnt vmcnt(0)")
            if opt("stamp7") == "end" and not opt("pstamp"): stamp(e, 7)
            e.raw(f"""
            s_lshl_b32 s84, s2, 5
            s_add_u32 s84, s84, {STAMP_OFF}
            v_lshlrev_b32 v{t+1}, 2, v1
            v_mov_b32 v{t+2}, {OOB}
            v_cmp_gt_u32 vcc, 8, v1
            s_nop 1
            v_cndmask_b32 v{t+1}, v{t+2}, v{t+1}, vcc
            buffer_store_dword v{V_ST}, v{t+1}, s[{S_WS}:{S_WS+3}], s84 offen sc1""")
            if opt("chunkstamp"):
                e.raw(f"s_lshl_b32 s84, s2, 8\ns_add_u32 s84, s84, {STAMP_OFF + 65536}\nv_lshlrev_b32 v{t+1}, 2, v1\nbuffer_store_dword v63, v{t+1}, s[{S_WS}:{S_WS+3}], s84 offen sc1")
            e.raw("s_waitcnt vmcnt(0)")

def kd(name, vgpr, accum, sgpr=102):
    return f""".section .rodata,"a"
.p2align 6
.amdhsa_kernel {name}
  .amdhsa_next_free_vgpr {vgpr}
  .amdhsa_next_free_sgpr {sgpr}
  .amdhsa_accum_offset {accum}
  .amdhsa_group_segment_fixed_size 0
  .amdhsa_kernarg_size 64
  .amdhsa_user_sgpr_count 2
  .amdhsa_user_sgpr_kernarg_segment_ptr 1
  .amdhsa_system_sgpr_workgroup_id_x 1
.end_amdhsa_kernel
"""

def gen_amp(name, a, b, amp, wg):
    return f""".globl {name}
.p2align 8
.type {name},@function
{name}:
    s_cmp_ge_u32 s2, 1
    s_cbranch_scc1 L_{name}_end
    s_load_dwordx2 s[4:5], s[0:1], 56
    s_waitcnt lgkmcnt(0)
    s_mov_b32 s8, s4
    s_mov_b32 s9, s5
    s_mov_b32 s10, {WS_BYTES}
    s_mov_b32 s11, 0x20000
    v_mov_b32 v1, {STAMP_OFF + 32 * wg}
    buffer_load_dword v2, v1, s[8:11], 0 offen offset:{4*a} sc1
    buffer_load_dword v3, v1, s[8:11], 0 offen offset:{4*b} sc1
    s_waitcnt vmcnt(0)
    v_sub_u32 v2, v3, v2
    s_nop 1
    v_readfirstlane_b32 s12, v2
    s_nop 3
    s_min_u32 s12, s12, 20000
    s_mul_i32 s12, s12, {amp}
    s_memrealtime s[14:15]
    s_waitcnt lgkmcnt(0)
    s_mov_b32 s13, s14
L_{name}_spin:
    s_memrealtime s[14:15]
    s_waitcnt lgkmcnt(0)
    s_sub_u32 s16, s14, s13
    s_cmp_lt_u32 s16, s12
    s_cbranch_scc1 L_{name}_spin
L_{name}_end:
    s_endpgm
""" + kd(name, 8, 8, 32) + ".text\n"

def main(path):
    g = Gen()
    body = g.build()
    launch = f"; @launch grid=(256,1,1) block=(256,1,1) lds={LDS_BYTES}"
    if opt("amp"):
        launch = f"; @launch kernel={KNAME} grid=(256,1,1) block=(256,1,1) lds={LDS_BYTES}\n; @launch kernel=mlp_amp_kernel grid=(1,1,1) block=(64,1,1) lds=0"
    txt = f"""; Fused MLP  out = relu(x@w1+b1)^2 @ w2 + b2   (one workgroup per CU, split-K over 4, see generator notes)
{launch}
.amdgcn_target "amdgcn-amd-amdhsa--gfx950"
.text
.globl {KNAME}
.p2align 8
.type {KNAME},@function
{KNAME}:
""" + body + kd(KNAME, 512, 256)
    if opt("amp"):
        a, b = [int(v) for v in opt("amp").split("_")]
        txt += ".text\n" + gen_amp("mlp_amp_kernel", a, b, iopt("ampx", 20), iopt("ampwg", 37))
    open(path, "w").write(txt)

if __name__ == "__main__":
    main(sys.argv[1] if len(sys.argv) > 1 else "f4.s")
```

```python
import heapq

class Item:
    __slots__ = ("text", "kind", "tag", "early", "late", "stream", "seq", "cost")
    def __init__(self, text, kind, tag=None, early=0, late=None, stream=None):
        self.text, self.kind, self.tag, self.early, self.late, self.stream = text, kind, tag, early, late, stream
        self.seq = 0
        self.cost = 0.0

class Emitter:
    def __init__(self):
        self.lines = []
        self.vm = []
        self.vm_gap = []
        self.log = []
        self.vm_done = 0
        self.lg = []
        self.lg_done = 0
        self.streams = {}
        self.gap = 0
        self.seq = 0
        self.st_free = {}
        self.prio_streams = set()
        self.force_prio = False
        self.strict = False
        self.ta_slack = 1.0
        self.min_sp = 3
        self.ta_free = 0.0
        self.stats = {"mfma": 0, "fill": 0, "over": 0}

    def raw(self, s):
        for line in s.strip("\n").split("\n"):
            t = line.strip()
            if not t: continue
            self.lines.append(t if t.endswith(":") else "    " + t)
    def comment(self, s): self.lines.append("    ; " + s)
    def vmem(self, s, tag=None):
        if s.rstrip().endswith(" lds") and self.lines and " m0," in self.lines[-1]:
            self.lines.append("    s_nop 0")
        self.lines.append("    " + s); self.vm.append(tag); self.vm_gap.append(self.gap)
    def ds(self, s, tag=None):
        self.lines.append("    " + s); self.lg.append(tag)

    def _need(self, ops, tags):
        last = -1
        for i in range(len(ops) - 1, -1, -1):
            if ops[i] in tags:
                last = i; break
        return last
    def vm_wait_text(self, tags):
        if not isinstance(tags, list): tags = [tags]
        if self.strict: self.force_tags(tags)
        for q in self.streams.values():
            for it in q:
                assert not (it.kind == 'm' and it.tag in set(tags)), f"vm wait on {tags} while an op with that tag is still queued"
        last = self._need(self.vm, set(tags))
        assert last >= 0, f"vm wait on tags never issued: {tags}"
        if last < self.vm_done: return None
        n = len(self.vm) - 1 - last
        n = min(n, 63)
        newly = list(range(self.vm_done, len(self.vm) - n))
        self.log.append((self.gap, tags, n, [(self.vm[i], self.vm_gap[i]) for i in newly]))
        self.vm_done = len(self.vm) - n
        return f"s_waitcnt vmcnt({n})"
    def lg_wait_text(self, tags):
        if not isinstance(tags, list): tags = [tags]
        last = self._need(self.lg, set(tags))
        assert last >= 0, f"lgkm wait on tags never issued: {tags}"
        if last < self.lg_done: return None
        n = len(self.lg) - 1 - last
        n = min(n, 15)
        self.lg_done = len(self.lg) - n
        return f"s_waitcnt lgkmcnt({n})"
    def vm_needed(self, tags):
        if not isinstance(tags, list): tags = [tags]
        for q in self.streams.values():
            if any(it.kind == 'm' and it.tag in set(tags) for it in q): return True
        return self._need(self.vm, set(tags)) >= self.vm_done
    def lg_needed(self, tags):
        if not isinstance(tags, list): tags = [tags]
        return self._need(self.lg, set(tags)) >= self.lg_done
    def wait_vm(self, tags):
        t = self.vm_wait_text(tags)
        if t: self.lines.append("    " + t)
    def wait_lg(self, tags):
        t = self.lg_wait_text(tags)
        if t: self.lines.append("    " + t)
    def wait_all(self):
        self.lines.append("    s_waitcnt vmcnt(0) lgkmcnt(0)")
        self.vm_done = len(self.vm); self.lg_done = len(self.lg)
    def wait_vm_all(self):
        self.lines.append("    s_waitcnt vmcnt(0)")
        self.vm_done = len(self.vm)
    def wait_lg_all(self):
        self.lines.append("    s_waitcnt lgkmcnt(0)")
        self.lg_done = len(self.lg)

    def push(self, stream, text, kind, tag=None, early=0, late=None, cost=0.0):
        it = Item(text, kind, tag, early, late, stream)
        it.cost = cost
        self.seq += 1; it.seq = self.seq
        self.streams.setdefault(stream, []).append(it)
        return it
    def _emit_item(self, it):
        t = it.text() if callable(it.text) else it.text
        if t is None: return False
        if it.kind == 'm':
            self.vmem(t, it.tag)
            if self.strict:
                self.ta_free = max(self.ta_free, float(self.gap)) + it.cost
            else:
                self.ta_free = float(self.gap) + min(it.cost, self.min_sp); self.st_free[it.stream] = float(self.gap) + it.cost
        elif it.kind == 'd': self.ds(t, it.tag)
        else: self.lines.append("    " + t)
        return True
    def _candidates(self):
        c = []
        for name, q in self.streams.items():
            if q and q[0].early <= self.gap:
                c.append(q[0])
        return c
    def _paced_ok(self, i):
        return not (i.kind == 'm' and i.cost > 0 and (self.ta_free > self.gap or self.st_free.get(i.stream, 0) > self.gap))
    def _next_m(self, q):
        for it in q:
            if it.kind == 'm': return it
        return None
    def fill(self, budget):
        if self.strict: return self.fill_strict(budget)
        n = 0
        forced_m = False
        while True:
            c = self._candidates()
            if not c: break
            due = [i for i in c if i.late is not None and i.late <= self.gap]
            pm = [i for i in c if i.stream in self.prio_streams and self._paced_ok(i)]
            if due:
                it = min(due, key=lambda i: (i.late, i.seq))
            elif pm and not forced_m and (n < budget or self.force_prio):
                it = min(pm, key=lambda i: (i.late if i.late is not None else 1 << 30, i.seq))
                if it.kind == 'm' or n >= budget: forced_m = True
            elif n < budget:
                c = [i for i in c if self._paced_ok(i)]
                if not c: break
                it = min(c, key=lambda i: (i.late if i.late is not None else 1 << 30, i.seq))
            else:
                break
            self.streams[it.stream].pop(0)
            if self._emit_item(it):
                n += 1
        if n > budget: self.stats["over"] += n - budget
        self.stats["fill"] += n
        return n
    def fill_strict(self, budget):
        n = 0
        cand = []
        for name in sorted(self.prio_streams):
            q = self.streams.get(name)
            if q and q[0].kind == 'm' and q[0].early <= self.gap and self.st_free.get(name, 0) <= self.gap: cand.append(q[0])
        if cand and self.ta_free - self.ta_slack <= self.gap:
            it = min(cand, key=lambda i: (i.late if i.late is not None else 1 << 30, i.seq))
            self.streams[it.stream].pop(0)
            if self._emit_item(it): n += 1
        for name in sorted(self.prio_streams):
            q = self.streams.get(name)
            while q and q[0].kind != 'm' and q[0].early <= self.gap + 1:
                nm = self._next_m(q)
                if nm is not None and nm.early > self.gap + 3: break
                it = q.pop(0)
                if self._emit_item(it): n += 1
        while True:
            c = [i for i in self._candidates() if i.stream not in self.prio_streams]
            if not c: break
            due = [i for i in c if i.late is not None and i.late <= self.gap]
            if due: it = min(due, key=lambda i: (i.late, i.seq))
            elif n < budget: it = min(c, key=lambda i: (i.late if i.late is not None else 1 << 30, i.seq))
            else: break
            self.streams[it.stream].pop(0)
            if self._emit_item(it): n += 1
        if n > budget: self.stats["over"] += n - budget
        self.stats["fill"] += n
        return n
    def force_tags(self, tags):
        tags = set(tags)
        for name, q in self.streams.items():
            last = -1
            for i, it in enumerate(q):
                if it.kind == 'm' and it.tag in tags: last = i
            for _ in range(last + 1):
                it = q.pop(0); self._emit_item(it); self.stats["forced"] = self.stats.get("forced", 0) + 1
    def flush_streams(self, names=None):
        while True:
            c = [q[0] for nme, q in self.streams.items() if q and (names is None or nme in names)]
            if not c: break
            it = min(c, key=lambda i: i.seq)
            self.streams[it.stream].pop(0)
            self._emit_item(it)
    def pending(self):
        return sum(len(q) for q in self.streams.values())

    def mfma_gap(self, mfma, pre=(), dss=(), post=(), budget=None):
        self.lines.append("    " + mfma)
        self.stats["mfma"] += 1
        used = 0
        for p in pre:
            t = p() if callable(p) else p
            if t: self.lines.append("    " + t); used += 1
        for (t, tag) in dss:
            self.ds(t, tag); used += 1
        posts = []
        for (cnt, tags) in post:
            if (self.vm_needed(tags) if cnt == 'vm' else self.lg_needed(tags)):
                posts.append((lambda tags=tags: self.vm_wait_text(tags)) if cnt == 'vm' else (lambda tags=tags: self.lg_wait_text(tags)))
        nres = len(posts)
        b = max(0, 2 - used - nres) if budget is None else budget
        self.fill(b)
        for p in posts:
            t = p() if callable(p) else p
            if t: self.lines.append("    " + t); self.stats["waits"] = self.stats.get("waits", 0) + 1
        self.gap += 1

    def text(self):
        return "\n".join(self.lines) + "\n"
```

```python
import sys, os
from emit import Emitter

OPT = dict(kv.split("=") if "=" in kv else (kv, 1) for kv in os.environ.get("GOPT", "").split(",") if kv)
def opt(k, d=None): return OPT.get(k, d)
def iopt(k, d): return int(OPT.get(k, d))

KNAME = "standalone__dense_activation_squared_relu__prompt_kernel"
X_BYTES, W1_BYTES, B1_BYTES, W2_BYTES, B2_BYTES, OUT_BYTES = 2359296, 5308416, 9216, 5308416, 1152, 2359296
WS_BYTES = 268435456
H_OFF = 0
P_OFF = 20 << 20
FL_OFF = 40 << 20
EP_OFF = 41 << 20
STAMP_OFF = 128 << 20
OOB = 0x40000000
SLOT = 20480
NSLOT = 8
LDS_BYTES = NSLOT * SLOT
BIAS_LDS = 4 * SLOT + 16384
SPIN_LIMIT = 1 << 16
TAGMASK = 0xFFF

S_X, S_W1, S_B1, S_WS, S_W2, S_OUT = 4, 8, 12, 16, 20, 24
S_W, S_M, S_S, S_PAR, S_KQ, S_J = 28, 29, 30, 31, 32, 33
S_CBA, S_CBB, S_WSO, S_MW, S_MX = 34, 35, 36, 38, 39
S_HSO, S_T, S_T2, S_N = 40, 41, 42, 43
S_TW, S_TX = 44, 53
S_SO2 = 62
S_HB = 80
S_DBG = 92
KA = 64
V_WA, V_WB, V_X, V_W2 = 2, 6, 11, 15
V_TA, V_TB, V_T2, V_XR = 20, 36, 42, 45
V_HS, V_BI, V_FL, V_FS, V_P, V_NP = 47, 48, 49, 50, 51, 52
V_T = 53
V_ST = 62
ACC_A, ACC_B, BIASB = 64, 128, 208
AX, AW, AH, AB2 = 0, 144, 0, 224
HD = iopt("HD", 8)
STAMP = bool(opt("stamp"))
NT1 = " nt" if opt("ntw1", "0") == "1" else ""
NTX = " nt" if opt("ntx", "0") == "1" else ""

def acc2(nt, t):
    return (BIASB + 8 * nt + 4 * t) if nt < 5 else (ACC_A + 16 * (nt - 5) + 8 + 4 * t)
def srd(dst, ptr, nbytes):
    return [f"s_mov_b32 s{dst}, s{ptr}", f"s_mov_b32 s{dst+1}, s{ptr+1}", f"s_mov_b32 s{dst+2}, {nbytes}", f"s_mov_b32 s{dst+3}, 0x20000"]
def lines(s): return [x.strip() for x in s.strip().split("\n") if x.strip()]
def stamp(e, idx, pro=False):
    if not STAMP or (opt("chunkstamp") and idx != 0): return
    if opt("pstamp") and (pro != (idx >= 3)) and idx not in (0,):
        if not (pro and idx < 3): return
    ins = "s_memtime" if opt("cyc") else "s_memrealtime"
    e.raw(f"{ins} s[90:91]\ns_waitcnt lgkmcnt(0)\nv_writelane_b32 v{V_ST}, s90, {idx}")
    if opt("both"):
        e.raw(f"s_memtime s[90:91]\ns_waitcnt lgkmcnt(0)\nv_writelane_b32 v63, s90, {idx}")

def ksteps2():
    grp = lambda frs: [(d, i) for d in (1, 2, 3) for i in frs]
    seq = [(0, i) for i in range(9)] + grp((0, 1, 2, 3)) + grp((4, 5, 6)) + grp((7, 8))
    assert len(seq) == 36
    return seq
SEQ2 = ksteps2()
PEERS = [q for q, (d, i) in enumerate(SEQ2) if d != 0]
RING = {q: n % HD for n, q in enumerate(PEERS)}
PARTS = [((0, 1, 2, 3), iopt("pub0", 33), iopt("pol0", 0), iopt("chk0", 3)),
         ((4, 5, 6), iopt("pub1", 47), iopt("pol1", 15), iopt("chk1", 17)),
         ((7, 8), iopt("pub2", 49), iopt("pol2", 22), iopt("chk2", 24))]
def part_of(i): return [p for p, x in enumerate(PARTS) if i in x[0]][0]
OWNB = {SEQ2[q][1]: q for q in range(36) if SEQ2[q][0] == 0 and SEQ2[q][1] >= 4}
STEPS = [('A', k) for k in range(18)] + [('B', k) for k in range(18)] + [('P', q) for q in range(36)]
def nfrag(kind): return {'A': 8, 'B': 10, 'P': 9}[kind]
GOS = []
_g = 0
for (_k, _) in STEPS:
    GOS.append(_g); _g += 2 * nfrag(_k)
GOS.append(_g)

class Gen:
    def __init__(self):
        self.e = Emitter()
        self.wslot = {}
        self.free = []
        self.slow = []
        self.nlabel = 0

    def setup_first(self):
        t = V_T
        L = lines(f"""
        s_and_b32 s84, s2, 7
        s_lshr_b32 s85, s2, 3
        v_lshrrev_b32 v{t}, 6, v0
        v_and_b32 v1, 63, v0
        s_and_b32 s{S_KQ}, s84, 3
        v_readfirstlane_b32 s{S_W}, v{t}
        s_lshr_b32 s86, s84, 2
        s_lshr_b32 s87, s85, 2
        s_and_b32 s{S_J}, s85, 3
        s_lshl_b32 s86, s86, 3
        s_add_u32 s{S_M}, s86, s87
        s_lshl_b32 s{S_S}, s{S_KQ}, 2
        s_add_u32 s{S_S}, s{S_S}, s{S_J}
        s_and_b32 s{S_PAR}, s{S_J}, 1
        """)
        rot = opt("rot", "jm")
        if rot == "0": L += ["s_mov_b32 s84, 0"]
        elif rot == "j": L += lines(f"s_mul_i32 s84, s{S_J}, 9\ns_lshr_b32 s84, s84, 2")
        elif rot == "jm": L += lines(f"s_lshl_b32 s84, s{S_J}, 1\ns_add_u32 s84, s84, s87\ns_cmp_ge_u32 s84, 9\ns_cselect_b32 s85, 9, 0\ns_sub_u32 s84, s84, s85")
        elif rot == "jm2": L += lines(f"s_lshl_b32 s84, s{S_J}, 1\ns_and_b32 s85, s87, 1\ns_mul_i32 s85, s85, 5\ns_add_u32 s84, s84, s85\ns_cmp_ge_u32 s84, 9\ns_cselect_b32 s85, 9, 0\ns_sub_u32 s84, s84, s85")
        L += [f"s_mul_i32 s85, s{S_M}, 147456"]
        for c in range(9):
            L += lines(f"""
            s_mul_i32 s{S_TW+c}, s84, 589824
            s_lshl_b32 s86, s84, 7
            s_add_u32 s{S_TX+c}, s85, s86""")
            if c < 8: L += ["s_add_u32 s84, s84, 1", "s_cmp_eq_u32 s84, 9", "s_cselect_b32 s84, 0, s84"]
        L += lines(f"""
        s_mul_i32 s{S_CBA}, s{S_S}, 576
        s_mul_i32 s{S_T}, s{S_PAR}, 320
        s_add_u32 s{S_CBB}, s{S_CBA}, 256
        s_add_u32 s{S_CBA}, s{S_CBA}, s{S_T}
        s_lshl_b32 s{S_T}, s{S_PAR}, 8
        s_sub_u32 s{S_CBB}, s{S_CBB}, s{S_T}
        s_lshl_b32 s{S_MX}, s{S_W}, 12
        s_mul_i32 s{S_MW}, s{S_W}, 5120
        s_mul_i32 s{S_T}, s{S_W}, {32*1152}
        v_lshrrev_b32 v{t}, 3, v1
        v_lshrrev_b32 v{t+1}, 4, v1
        v_and_b32 v{t+2}, 7, v1
        v_mul_u32_u24 v{t}, 1152, v{t}
        v_add_u32 v{t}, s{S_T}, v{t}
        """)
        for q in range(4):
            L += lines(f"""
            v_add_u32 v{t+3}, {4*q}, v{t+1}
            v_and_b32 v{t+3}, 7, v{t+3}
            v_xor_b32 v{t+3}, v{t+2}, v{t+3}
            v_lshl_add_u32 v{t+3}, v{t+3}, 4, v{t}
            v_add_u32 v{V_X+q}, {q*(8*1152-1024)}, v{t+3}""")
        L += lines(f"""
        s_mul_i32 s{S_T}, s{S_W}, {16*9216}
        v_and_b32 v{t+2}, 15, v1
        v_mul_u32_u24 v{t}, 9216, v{t+1}
        v_add_u32 v{t}, s{S_T}, v{t}
        v_lshlrev_b32 v{t+3}, 1, v{t+1}
        v_xor_b32 v{t+3}, v{t+2}, v{t+3}
        v_xor_b32 v{t+4}, 8, v{t+3}
        v_lshl_add_u32 v{V_WA}, v{t+3}, 4, v{t}
        v_lshl_add_u32 v{t+4}, v{t+4}, 4, v{t}
        v_add_u32 v{V_WA+1}, {4*9216-1024}, v{V_WA}
        v_add_u32 v{V_WA+2}, {8*9216-2048}, v{t+4}
        v_add_u32 v{V_WA+3}, {12*9216-3072}, v{t+4}
        v_lshlrev_b32 v{V_BI}, 3, v{t+1}
        """)
        L += lines(f"""
        v_lshlrev_b32 v{t+4}, 4, v1
        v_mov_b32 v{t+3}, {OOB}
        v_cmp_gt_u32 vcc, 36, v1
        s_mul_i32 s86, s{S_S}, 576
        s_mul_i32 s87, s{S_J}, 288
        v_cndmask_b32 v{t+5}, v{t+3}, v{t+4}, vcc
        v_cmp_gt_u32 vcc, 18, v1
        s_nop 1
        v_cndmask_b32 v{t+6}, v{t+3}, v{t+4}, vcc
        """)
        return L

    def setup_reads_A(self):
        t = V_T
        L = lines(f"""
        v_lshrrev_b32 v{t}, 4, v1
        v_and_b32 v{t+1}, 1, v{t}
        v_lshrrev_b32 v{t+2}, 1, v{t}
        v_and_b32 v{t+3}, 15, v1
        v_lshrrev_b32 v{t+4}, 2, v{t+3}
        v_and_b32 v{t+3}, 3, v{t+3}
        v_lshl_add_u32 v{V_TB+4}, v{t+1}, 3, v{t+4}
        v_lshlrev_b32 v{V_TB+5}, 8, v{V_TB+4}
        v_lshl_add_u32 v{V_TB+5}, v{t+2}, 12, v{V_TB+5}
        v_lshl_add_u32 v{V_TB+5}, v{t+3}, 3, v{V_TB+5}
        v_lshl_add_u32 v{V_TA}, v{t+1}, 2, v{t+4}
        v_lshl_add_u32 v{V_TB+5}, v{V_TA}, 5, v{V_TB+5}
        """)
        for ft in range(8): L.append(f"v_xor_b32 v{V_TA+ft}, {ft*32}, v{V_TB+5}")
        for ft in range(8): L.append(f"v_add_u32 v{V_TA+8+ft}, {3*SLOT}, v{V_TA+ft}")
        L += lines(f"""
        v_and_b32 v{t}, 15, v1
        v_lshrrev_b32 v{t+1}, 4, v1
        v_lshrrev_b32 v{t+2}, 1, v{t}
        v_xor_b32 v{t+1}, v{t+1}, v{t+2}
        v_lshlrev_b32 v{t+1}, 4, v{t+1}
        v_lshl_add_u32 v{t+1}, v{t}, 7, v{t+1}
        v_add_u32 v{t+1}, {5*SLOT}, v{t+1}
        v_add_u32 v{V_XR}, s{S_MX}, v{t+1}
        v_xor_b32 v{t+1}, 64, v{t+1}
        v_add_u32 v{V_XR+1}, s{S_MX}, v{t+1}
        """)
        return L

    def setup_late(self):
        t = V_T + 3
        L = lines(f"s_mul_i32 s84, s{S_W}, {16*9216}")
        for q in range(5):
            L += lines(f"""
            v_add_u32 v{t}, {64*q}, v1
            v_mul_u32_u24 v{t+1}, 205, v{t}
            v_lshrrev_b32 v{t+1}, 12, v{t+1}
            v_mul_u32_u24 v{t+2}, 20, v{t+1}
            v_sub_u32 v{t+2}, v{t}, v{t+2}
            v_lshrrev_b32 v{t+3}, 2, v{t+1}
            v_and_b32 v{t+3}, 2, v{t+3}
            v_xor_b32 v{t+2}, v{t+2}, v{t+3}
            v_mul_u32_u24 v{t+3}, 9216, v{t+1}
            v_lshl_add_u32 v{t+3}, v{t+2}, 4, v{t+3}
            v_add_u32 v{V_WB+q}, s84, v{t+3}""")
            if q & 3: L.append(f"v_subrev_u32 v{V_WB+q}, {(q&3)*1024}, v{V_WB+q}")
        L += lines(f"""
        s_lshl_b32 s84, s{S_W}, 11
        s_lshl_b32 s85, s{S_M}, 4
        s_add_u32 s85, s85, s{S_S}
        s_mul_i32 s{S_HSO}, s85, 73728
        v_lshl_add_u32 v{V_HS}, v1, 4, s84
        s_lshl_b32 s85, s85, 7
        s_add_u32 s85, s85, {FL_OFF}
        v_mov_b32 v{t}, s85
        v_mov_b32 v{t+1}, {OOB}""")
        L.append(f"v_cmp_eq_u32 vcc, 0, v1\n    s_nop 1\n    v_cndmask_b32 v{V_FS}, v{t+1}, v{t}, vcc")
        L += lines(f"""
        v_lshrrev_b32 v{t}, 4, v1
        v_and_b32 v{t+1}, 1, v{t}
        v_lshrrev_b32 v{t+2}, 1, v{t}
        v_and_b32 v{t+3}, 15, v1
        v_lshrrev_b32 v{t+4}, 2, v{t+3}
        v_and_b32 v{t+3}, 3, v{t+3}
        v_lshl_add_u32 v{V_TB+4}, v{t+1}, 3, v{t+4}
        v_mul_u32_u24 v{V_TB+4}, 320, v{V_TB+4}
        v_mul_u32_u24 v{V_TB+5}, 5120, v{t+2}
        v_add_u32 v{V_TB+4}, v{V_TB+4}, v{V_TB+5}
        v_lshl_add_u32 v{V_TB+4}, v{t+3}, 3, v{V_TB+4}
        v_lshlrev_b32 v{t+1}, 5, v{t+1}
        v_add_u32 v{V_TB}, v{V_TB+4}, v{t+1}
        v_sub_u32 v{V_TB+1}, v{V_TB+4}, v{t+1}
        v_add_u32 v{V_TB+2}, {3*SLOT}, v{V_TB}
        v_add_u32 v{V_TB+3}, {3*SLOT}, v{V_TB+1}
        v_add_u32 v{V_TB+4}, {6*SLOT}, v{V_TB}
        v_add_u32 v{V_TB+5}, {6*SLOT}, v{V_TB+1}
        v_lshl_add_u32 v{t+4}, v{t}, 2, v{t+4}
        v_mul_u32_u24 v{t+4}, 288, v{t+4}
        v_lshl_add_u32 v{V_T2}, v{t+3}, 3, v{t+4}
        v_add_u32 v{V_T2+1}, {3*SLOT}, v{V_T2}
        v_add_u32 v{V_T2+2}, {6*SLOT}, v{V_T2}""")
        L.append("@P2")
        L += lines(f"""
        s_lshl_b32 s85, s{S_M}, 2
        s_add_u32 s85, s85, s{S_KQ}
        s_lshl_b32 s85, s85, 9
        s_add_u32 s85, s85, {FL_OFF}
        v_and_b32 v{t}, 3, v1
        v_min_u32 v{t}, 2, v{t}
        v_add_u32 v{t}, 1, v{t}
        v_add_u32 v{t}, s{S_J}, v{t}
        v_and_b32 v{t}, 3, v{t}
        v_lshlrev_b32 v{t}, 7, v{t}
        v_add_u32 v{V_FL}, s85, v{t}
        s_and_b32 s84, s{S_W}, 1
        s_mul_i32 s84, s84, {16*1152}
        """)
        for q in range(5):
            L += lines(f"""
            v_add_u32 v{t}, {64*q}, v1
            v_mul_u32_u24 v{t+1}, 57, v{t}
            v_lshrrev_b32 v{t+1}, 10, v{t+1}
            v_mul_u32_u24 v{t+2}, 18, v{t+1}
            v_sub_u32 v{t+2}, v{t}, v{t+2}
            v_mul_u32_u24 v{t+3}, 1152, v{t+1}
            v_lshl_add_u32 v{t+3}, v{t+2}, 4, v{t+3}
            v_add_u32 v{V_W2+q}, s84, v{t+3}""")
            if q & 3: L.append(f"v_subrev_u32 v{V_W2+q}, {(q&3)*1024}, v{V_W2+q}")
        L.append(f"v_mov_b32 v{t}, {OOB}")
        L.append(f"v_cmp_gt_u32 vcc, 32, v1\n    s_nop 1\n    v_cndmask_b32 v{V_W2+4}, v{t}, v{V_W2+4}, vcc")
        L += lines(f"""
        s_mul_i32 s0, s{S_PAR}, {160*1152}
        s_sub_u32 s1, {160*1152}, s0
        s_mul_i32 s3, s{S_PAR}, {-128*1152}
        s_sub_u32 s37, {-128*1152}, s3
        s_mul_i32 s88, s{S_J}, 288
        """)
        for d in range(4):
            L += lines(f"""
            s_add_u32 s{84+d}, s{S_J}, {d}
            s_and_b32 s{84+d}, s{84+d}, 3
            s_lshl_b32 s89, s{S_KQ}, 2
            s_add_u32 s{84+d}, s{84+d}, s89
            s_lshl_b32 s89, s{S_M}, 4
            s_add_u32 s89, s89, s{84+d}
            s_mul_i32 s{S_HB+d}, s89, 73728
            s_mul_i32 s{84+d}, s{84+d}, {288*1152}
            s_add_u32 s{84+d}, s{84+d}, s88""")
        for c in range(18):
            (d0, i0), (d1, i1) = SEQ2[2 * c], SEQ2[2 * c + 1]
            def corr(d, i): return (0 if d % 2 == 0 else 1) if i < 4 else (3 if d % 2 == 0 else 37)
            L += lines(f"""
            s_add_u32 s88, s{84+d0}, s{corr(d0,i0)}
            s_add_u32 s88, s88, {32*i0*1152}
            s_add_u32 s89, s{84+d1}, s{corr(d1,i1)}
            s_add_u32 s89, s89, {32*i1*1152}""")
            L.append(f"s_cmp_lt_u32 s{S_W}, 2\n    s_cselect_b32 s{S_SO2+c}, s88, s89")
        return L

    def pf1_setup(self):
        t = V_T
        return lines(f"""
        s_and_b32 s84, s{S_M}, 7
        s_lshl_b32 s84, s84, 2
        s_add_u32 s84, s84, s{S_J}
        s_lshl_b32 s84, s84, 2
        s_add_u32 s84, s84, s{S_W}
        s_lshr_b32 s85, s{S_M}, 3
        s_lshl_b32 s85, s85, 10
        s_lshl_b32 s86, s84, 3
        s_add_u32 s85, s85, s86
        s_mul_i32 s85, s85, 1152
        v_lshrrev_b32 v{t+2}, 3, v1
        v_and_b32 v{t+3}, 7, v1
        v_mul_u32_u24 v{t+3}, 1152, v{t+3}
        v_lshl_add_u32 v{t+3}, v{t+2}, 7, v{t+3}
        v_add_u32 v{t+3}, 256, v{t+3}
        v_add_u32 v{t+3}, s85, v{t+3}
        v_mov_b32 v{t+4}, {OOB}
        v_cmp_gt_u32 vcc, 56, v1
        s_lshl_b32 s84, s84, 2
        s_mul_i32 s85, s{S_KQ}, {4*576}
        v_cndmask_b32 v{t}, v{t+4}, v{t+3}, vcc
        v_and_b32 v{t+2}, 3, v1
        v_add_u32 v{t+2}, s84, v{t+2}
        v_lshrrev_b32 v{t+3}, 3, v{t+2}
        v_lshrrev_b32 v{t+1}, 2, v1
        v_lshl_add_u32 v{t+3}, v{t+1}, 6, v{t+3}
        v_add_u32 v{t+3}, 128, v{t+3}
        v_mul_u32_u24 v{t+3}, 9216, v{t+3}
        v_and_b32 v{t+2}, 7, v{t+2}
        v_lshrrev_b32 v{t+1}, 1, v{t+2}
        v_mul_u32_u24 v{t+5}, 576, v{t+1}
        v_add_u32 v{t+3}, v{t+3}, v{t+5}
        v_and_b32 v{t+1}, 1, v{t+1}
        v_mul_u32_u24 v{t+1}, 320, v{t+1}
        v_add_u32 v{t+3}, v{t+3}, v{t+1}
        v_and_b32 v{t+2}, 1, v{t+2}
        v_lshl_add_u32 v{t+3}, v{t+2}, 7, v{t+3}
        v_add_u32 v{t+3}, s85, v{t+3}
        v_cmp_gt_u32 vcc, 28, v1
        s_nop 1
        v_cndmask_b32 v{t+1}, v{t+4}, v{t+3}, vcc
        """)
    def w_items(self, C):
        slot = self.wslot[C]
        if C < 9:
            it = [(f"s_add_u32 s{S_WSO}, s{S_CBA}, s{S_TW+C}", 's', None),
                  (f"s_add_u32 m0, s{S_MX}, {slot*SLOT}", 's', None)]
            for q in range(4):
                it.append((f"buffer_load_dwordx4 v{V_WA+q}, s[{S_W1}:{S_W1+3}], s{S_WSO} offen offset:{q*1024}" + NT1 + " lds", 'm', ('W', C)))
            return it
        if C < 18:
            vb, sr, so = V_WB, S_W1, S_WSO
            it = [(f"s_add_u32 s{S_WSO}, s{S_CBB}, s{S_TW+C-9}", 's', None)]
        else:
            vb, sr, so = V_W2, S_W2, S_SO2 + C - 18
            it = []
        nt = NT1 if C < 18 else ""
        it.append((f"s_add_u32 m0, s{S_MW}, {slot*SLOT}", 's', None))
        for q in range(4):
            it.append((f"buffer_load_dwordx4 v{vb+q}, s[{sr}:{sr+3}], s{so} offen offset:{q*1024}{nt} lds", 'm', ('W', C)))
        it.append((f"s_add_u32 m0, s{S_MW}, {slot*SLOT+4096}", 's', None))
        it.append((f"buffer_load_dwordx4 v{vb+4}, s[{sr}:{sr+3}], s{so} offen{nt} lds", 'm', ('W', C)))
        return it
    def x_items(self, c):
        slot = 5 + c % 3
        it = [(f"s_add_u32 m0, s{S_MX}, {slot*SLOT}", 's', None)]
        for q in range(4):
            it.append((f"buffer_load_dwordx4 v{V_X+q}, s[{S_X}:{S_X+3}], s{S_TX+c} offen offset:{q*1024}" + NTX + " lds", 'm', ('X', c)))
        return it
    def push_dma(self, items, early, need, cost):
        e = self.e
        nm = sum(1 for it in items if it[1] == 'm')
        dmin = iopt("dmin", 40)
        k = 0
        for (t, kind, tag) in items:
            late = max(early + 1 + k, int(need - dmin - (nm - 1 - min(k, nm - 1)) * cost))
            if kind == 'm':
                e.push('dma', t, kind, tag, early=early, late=late, cost=cost)
                k += 1
            else:
                e.push('dma', t, kind, tag, early=early, late=max(early, late - 1))
        self.tighten('dma')
    def tighten(self, stream):
        q = self.e.streams.get(stream, [])
        for i in range(len(q) - 2, -1, -1):
            sp = q[i].cost if q[i].kind == 'm' else 1
            lim = q[i + 1].late - sp
            if q[i].late > lim: q[i].late = max(q[i].early, int(lim))

    def frag_reads(self, si):
        kind, k = STEPS[si]
        C, ks = si // 2, si % 2
        slot = self.wslot[C]
        dst0 = AW + 40 * (si % 2)
        out = []
        for f in range(nfrag(kind)):
            for h in range(2):
                d = dst0 + 4 * f + 2 * h
                if kind == 'A':
                    vb = V_TA + f + (8 if slot >= 3 else 0)
                    off = (slot % 3) * SLOT + ks * 8192 + h * 1024
                elif kind == 'B':
                    vb = V_TB + (f & 1) + 2 * (slot // 3)
                    off = (slot % 3) * SLOT + ks * 10240 + h * 1280 + f * 32
                else:
                    vb = V_T2 + slot // 3
                    off = (slot % 3) * SLOT + ks * 10240 + h * 5120 + f * 32
                out.append((f"ds_read_b64_tr_b16 a[{d}:{d+1}], v{vb} offset:{off}", ('WF', si, f)))
        return out
    def x_reads(self, kt):
        c, p = kt // 2, kt % 2
        return [(f"ds_read_b128 a[{AX+8*kt+4*t}:{AX+8*kt+4*t+3}], v{V_XR+p} offset:{(c%3)*SLOT + t*2048}", ('XF', kt)) for t in range(2)]

    def bias_cvt(self, n, base):
        out = []
        for ft in range(n):
            q = base + 4 * ft
            out += [f"v_lshlrev_b32 v{q}, 16, v{q+2}", f"v_and_b32 v{q+1}, 0xffff0000, v{q+2}",
                    f"v_lshlrev_b32 v{q+2}, 16, v{q+3}", f"v_and_b32 v{q+3}, 0xffff0000, v{q+3}"]
        return out
    def epi_items(self, acc, il, istore, t):
        P = acc + 16 * il + 4 * t; Q = P + 8
        it = []
        for r in range(4): it.append((f"v_mul_f32 v{P+r}, v{P+r}, |v{P+r}|", 'v', None))
        for r in range(4): it.append((f"v_mul_f32 v{Q+r}, v{Q+r}, |v{Q+r}|", 'v', None))
        it += [(f"v_cvt_pk_bf16_f32 v{P}, v{P}, v{P+1}", 'v', None), (f"v_cvt_pk_bf16_f32 v{P+1}, v{P+2}, v{P+3}", 'v', None),
               (f"v_cvt_pk_bf16_f32 v{P+2}, v{Q}, v{Q+1}", 'v', None), (f"v_cvt_pk_bf16_f32 v{P+3}, v{Q+2}, v{Q+3}", 'v', None)]
        for r in range(4): it.append((f"v_pk_max_i16 v{P+r}, v{P+r}, 0", 'v', None))
        if t == 0: it.append((f"s_add_u32 s{S_T2}, s{S_HSO}, {istore*8192}", 's', None))
        st = f"buffer_store_dwordx4 v[{P}:{P+3}], v{V_HS}, s[{S_WS}:{S_WS+3}], s{S_T2} offen offset:{t*1024}" + {"nt": " sc1 nt", "sc01": " sc0 sc1", "sc01nt": " sc0 sc1 nt"}.get(opt("hstf", ""), " sc1")
        if opt("x_nostB") and istore >= 4: st = f"buffer_load_dword v255, v{V_FS}, s[{S_WS}:{S_WS+3}], 0 offen offset:24"
        if opt("x_noepiB") and istore >= 4: it = [x for x in it if x[1] != 'v']
        it.append((st, 'm', ('HS', part_of(istore))))
        return it

    def poll_check(self, load_text, cond_bad, name):
        self.nlabel += 1
        lb = f"L_{name}_{self.nlabel}"
        self.slow.append(f"""
        {lb}_slow:
        s_mov_b32 s91, {SPIN_LIMIT}
        {lb}_spin:
        {load_text}
        s_waitcnt vmcnt(0)
        {cond_bad}
        s_nop 1
        s_cbranch_vccz {lb}_back
        s_sub_u32 s91, s91, 1
        s_cmp_lg_u32 s91, 0
        s_cbranch_scc1 {lb}_spin
        s_branch {lb}_back
        """)
        return f"{cond_bad}\n    s_nop 1\n    s_cbranch_vccnz {lb}_slow\n{lb}_back:"

    def prologue(self):
        e = self.e
        t = V_T
        stamp(e, 0)
        e.raw(f"""
        s_cmp_ge_u32 s2, 256
        s_cbranch_scc1 L_end
        s_load_dwordx16 s[{KA}:{KA+15}], s[0:1], 0
        """)
        if opt("icpf", "1") == "1":
            e.raw(f"""
            s_getpc_b64 s[90:91]
            L_pc:
            v_lshlrev_b32 v{t}, 7, v0
            v_min_u32 v{t+1}, L_code_end-L_pc-4, v{t}""")
            e.vmem(f"global_load_dword v255, v{t+1}, s[90:91]", 'IC')
            e.raw(f"v_add_u32 v{t}, 32768, v{t}\nv_min_u32 v{t+1}, L_code_end-L_pc-4, v{t}")
            e.vmem(f"global_load_dword v255, v{t+1}, s[90:91]", 'IC')
        for x in self.setup_first(): e.raw(x)
        stamp(e, 3, True) if opt("pstamp") else None
        e.raw("s_waitcnt lgkmcnt(0)")
        stamp(e, 4, True) if opt("pstamp") else None
        for x in srd(S_X, KA, X_BYTES) + srd(S_W1, KA + 2, W1_BYTES) + srd(S_B1, KA + 4, B1_BYTES) + srd(S_DBG, KA + 8, B2_BYTES): e.raw(x)
        self.wslot = {0: 0, 1: 1, 2: 2, 3: 3, 4: 4}
        def emit_items(items):
            for (tx, k, tag) in items:
                if k == 'm': e.vmem(tx, tag)
                else: e.raw(tx)
        emit_items([(f"s_mov_b32 m0, {BIAS_LDS}", 's', None),
                    (f"buffer_load_dwordx4 v{t+5}, s[{S_B1}:{S_B1+3}], s86 offen lds", 'm', 'BI'),
                    (f"s_mov_b32 m0, {BIAS_LDS+1024}", 's', None),
                    (f"buffer_load_dwordx4 v{t+6}, s[{S_DBG}:{S_DBG+3}], s87 offen lds", 'm', 'BI')])
        emit_items(self.x_items(0) + self.w_items(0))
        stamp(e, 5, True) if opt("pstamp") else None
        for x in srd(S_WS, KA + 14, WS_BYTES) + srd(S_W2, KA + 6, W2_BYTES) + srd(S_OUT, KA + 10, OUT_BYTES): e.raw(x)
        e.raw(f"s_mov_b32 s100, s{KA+12}\ns_mov_b32 s101, s{KA+13}\ns_nop 0")
        for x in self.setup_reads_A(): e.raw(x)
        for x in self.setup_late():
            if x != "@P2": e.raw(x)
        e.raw(f"""
        s_or_b32 s88, s2, s{S_W}
        v_mov_b32 v{t}, {OOB}
        v_mov_b32 v{t+1}, {EP_OFF}
        v_or_b32 v{t+2}, s88, v1
        v_cmp_eq_u32 vcc, 0, v{t+2}
        s_nop 1
        v_cndmask_b32 v{V_NP}, v{t}, v{t+1}, vcc""")
        e.raw(f"""
        s_mul_i32 s84, s{S_S}, 576
        s_sub_u32 s85, s{S_CBA}, s84
        s_sub_u32 s86, s{S_CBB}, s84
        s_add_u32 s85, s85, {BIAS_LDS}
        s_add_u32 s86, s86, {BIAS_LDS}
        v_add_u32 v{t}, s85, v{V_BI}
        v_add_u32 v{t+1}, s86, v{V_BI}
        v_add_u32 v{t+2}, {BIAS_LDS+1024}, v{V_BI}
        """)
        stamp(e, 6, True) if opt("pstamp") else None
        e.wait_vm('BI')
        stamp(e, 7, True) if opt("pstamp") else None
        for ft in range(8): e.ds(f"ds_read_b64 v[{ACC_B+4*ft+2}:{ACC_B+4*ft+3}], v{t} offset:{32*ft}", 'BR')
        for ft in range(10): e.ds(f"ds_read_b64 v[{BIASB+4*ft+2}:{BIASB+4*ft+3}], v{t+1} offset:{32*ft}", 'BR')
        for nt in range(9): e.ds(f"ds_read_b64 a[{AB2+2*nt}:{AB2+2*nt+1}], v{t+2} offset:{32*nt}", 'BR')
        e.raw(f"s_mov_b32 s{S_DBG}, s100\ns_mov_b32 s{S_DBG+1}, s101\ns_mov_b32 s{S_DBG+2}, 256")
        e.wait_lg_all()
        for x in self.bias_cvt(8, ACC_B) + self.bias_cvt(10, BIASB): e.raw(x)
        emit_items(self.x_items(1) + self.w_items(1))
        stamp(e, 1, bool(opt("pstamp")))
        e.wait_vm([('W', 0), ('X', 0)])
        e.raw("s_barrier")
        stamp(e, 2, bool(opt("pstamp")))
        self.pro_rest = [self.x_items(2), self.w_items(2),
                         [(f"buffer_load_dword v{V_P}, v{V_NP}, s[{S_WS}:{S_WS+3}], 0 offen sc1", 'm', 'EP')], self.w_items(3), self.w_items(4)]
        for (tx, tag) in self.frag_reads(0): e.ds(tx, tag)
        for (tx, tag) in self.x_reads(0): e.ds(tx, tag)
    @staticmethod
    def _glued(prev):
        return prev.startswith("s_cmp") or prev.startswith("v_cmp") or prev.startswith("s_nop")

    def build(self):
        e = self.e
        self.prologue()
        if opt("noAst"): e.raw(f"v_mov_b32 v255, {OOB}")
        e.prio_streams = {'dma', 'hld', 'stB'}
        e.force_prio = True
        e.strict = opt('strict', '1') == '1'
        e.ta_slack = float(opt('ta_slack', 1.0))
        if e.strict: e.prio_streams = {'dma', 'hld', 'stA', 'stB', 'poll', 'flag'}
        e.min_sp = iopt('min_sp', 3)
        self.pf_gap = None
        def need(C): return GOS[2 * C - 1] - 1
        CX = CA = float(opt("spA", 3.0)); CB_ = float(opt("spB", 4.0)); C2 = float(opt("sp2", 3.5))
        def wcost(C): return CA if C < 9 else (CB_ if C < 18 else C2)
        pr = self.pro_rest
        self.push_dma(pr[0], 0, need(2), CX); self.push_dma(pr[1], 0, need(2), CA)
        self.push_dma(pr[2], 0, GOS[3], 1.0)
        self.push_dma(pr[3], 0, need(3), CA); self.push_dma(pr[4], 0, need(4), CA)
        nextW = 5
        LOOK = iopt("look", 8)
        for si, (kind, k) in enumerate(STEPS):
            nf = nfrag(kind); ngap = 2 * nf
            C, ks = si // 2, si % 2
            g0 = e.gap
            assert g0 == GOS[si]
            cur = AW + 40 * (si % 2)
            if (kind, k) == ('B', 0): stamp(e, 3)
            if (kind, k) == ('P', 0): stamp(e, 4)
            if (kind, k) == ('P', 9): stamp(e, 5)
            have_next = si + 1 < len(STEPS)
            reads = []
            if have_next:
                reads = self.frag_reads(si + 1)
                nkind, nk = STEPS[si + 1]
                if nkind == 'A':
                    xr = self.x_reads(nk)
                    reads = reads[:2] + xr[:1] + reads[2:4] + xr[1:] + reads[4:]
            per = [[] for _ in range(ngap)]
            nr = len(reads)
            for i_, r in enumerate(reads):
                per[(i_ * ngap) // nr if nr > ngap else i_].append(r)
            pre0 = []
            if opt("stepstamp"):
                a_, b_ = [int(v) for v in opt("stepstamp").split("_")]
                if a_ <= si <= b_:
                    pre0 = [f"v_writelane_b32 v63, s90, {si - a_}", "s_memtime s[90:91]"]
            if have_next and ks == 1:
                nC = C + 1
                pre0 = ["s_barrier"] + pre0
                if opt("chunkstamp") and not opt("stepstamp"):
                    pre0 = pre0 + [f"v_writelane_b32 v63, s90, {nC-1}", "s_memtime s[90:91]"]
                if nC - 2 >= 0: self.free.append(self.wslot[nC - 2])
                if kind == 'A' and C + 3 < 9:
                    self.push_dma(self.x_items(C + 3), g0 + 1, need(C + 3), CX)
                if kind == 'A' and C >= 6:
                    self.free.append(5 + C % 3)
                nissue = 0
                while self.free and nextW < 36 and nextW <= nC + LOOK:
                    if kind == 'A' and nextW >= 9 and nissue >= iopt("wA", 1): break
                    nissue += 1
                    cand = [s_ for s_ in self.free if (nextW >= 9 or s_ < 5)]
                    if not cand: break
                    early = g0 + 1
                    if nextW >= 18 + iopt("w2_in_window", 0):
                        if self.pf_gap is None: break
                        early = max(early, self.pf_gap + iopt("pf_window", 140))
                    sl = cand[0]; self.free.remove(sl)
                    self.wslot[nextW] = sl
                    nd = need(nextW)
                    if 9 <= nextW < 18 + iopt("w2_in_window", 0):
                        asap = max(g0 + iopt("dmin", 40) + int(6 * wcost(nextW)), getattr(self, "last_asap", 0) + int(6 * wcost(nextW)))
                        nd = min(nd, asap); self.last_asap = nd
                    cost = wcost(nextW)
                    lin0 = iopt("lin0", 25)
                    if nextW >= lin0:
                        lper = iopt("linper", 49)
                        early = max(early, GOS[36] + (nextW - lin0) * lper)
                        pass
                        nd = min(nd, early + lper + iopt("dmin", 40))
                    self.push_dma(self.w_items(nextW), early, max(nd, early + iopt("dmin", 40) + 30), cost)
                    nextW += 1
                    if nextW == 18: self.push_pf2(g0 + 1)
                self.after_barrier_hooks(si, g0)
            self.step_hooks(si, kind, k, g0, ngap)
            def waits_for(sj, gi):
                kj, kk = STEPS[sj]; nfj = nfrag(kj)
                w = []
                f, t = gi // 2, gi % 2
                G = 4 if kj == 'A' else 5
                if t == 0 and f % G == 0:
                    tags = [('WF', sj, min(f + G - 1, nfj - 1))]
                    if f == 0 and kj == 'A': tags.append(('XF', kk))
                    w.append(('lg', tags))
                if gi == 0 and kj == 'P' and SEQ2[kk][0] != 0:
                    w.append(('vm', [('H', kk)]))
                return w
            for f in range(nf):
                for t in range(2):
                    gi = 2 * f + t
                    A = f"a[{cur+4*f}:{cur+4*f+3}]"
                    if kind in 'AB':
                        B = f"a[{AX+8*k+4*t}:{AX+8*k+4*t+3}]"
                        acc = (ACC_A if kind == 'A' else ACC_B) + 8 * f + 4 * t
                        D = f"v[{acc}:{acc+3}]"
                        if k == 0:
                            bq = (ACC_B if kind == 'A' else BIASB) + 4 * f
                            Cc = f"v[{bq}:{bq+3}]"
                        else: Cc = D
                    else:
                        d, i = SEQ2[k]
                        if d == 0:
                            hb = (ACC_A + 16 * i if i < 4 else ACC_B + 16 * (i - 4)) + 4 * t
                            B = f"v[{hb}:{hb+3}]"
                        else:
                            hb = AH + 8 * RING[k] + 4 * t
                            B = f"a[{hb}:{hb+3}]"
                        acc = acc2(f, t)
                        D = f"v[{acc}:{acc+3}]"
                        Cc = "0" if k == 0 else D
                    if si == 0 and gi == 0:
                        e.wait_lg([('WF', 0, 3), ('XF', 0)])
                    post = []
                    if gi + 1 < ngap: post += waits_for(si, gi + 1)
                    elif have_next:
                        post += waits_for(si + 1, 0)
                        if ks == 0 and si + 2 < len(STEPS):
                            nC = C + 1
                            tags = [('W', nC)]
                            if kind == 'A' and nC < 9: tags.append(('X', nC))
                            tags += self.extra_barrier_tags(si + 1)
                            post.append(('vm', tags))
                    e.mfma_gap(f"v_mfma_f32_16x16x32_bf16 {D}, {A}, {B}, {Cc}", pre=pre0 if gi == 0 else (), dss=per[gi], post=post)
        e.flush_streams()
        if opt("chunkstamp"):
            e.raw("s_waitcnt lgkmcnt(0)\nv_writelane_b32 v63, s90, 35\ns_memtime s[90:91]\ns_waitcnt lgkmcnt(0)\nv_writelane_b32 v63, s90, 36")
        stamp(e, 6)
        self.tail()
        e.raw("L_end:\ns_endpgm")
        for s_ in self.slow: e.raw(s_)
        e.raw("L_code_end:")
        print(e.stats, "slots:", self.wslot, file=sys.stderr)
        if opt("vmlog"):
            for (g, tags, n, newly) in e.log:
                y = newly[-1] if newly else None
                summary = {}
                for (t, gg) in newly: summary.setdefault(str(t), []).append(gg)
                print(f"gap {g:5d} wait {tags} vmcnt({n}) youngest {y} dist {g - y[1] if y else 0}  covers " + ", ".join(f"{k}@{v[0]}-{v[-1]}" for k, v in summary.items()), file=sys.stderr)
        return e.text()

    PUB = tuple(x[1] for x in PARTS)
    def extra_barrier_tags(self, si):
        return [('HS', p) for p in range(len(PARTS)) if self.PUB[p] == si]
    def after_barrier_hooks(self, si, g0):
        e = self.e
        if si in self.PUB:
            part = self.PUB.index(si)
            e.push('flag', f"buffer_store_dword v{V_NP}, v{V_FS}, s[{S_WS}:{S_WS+3}], 0 offen offset:{4*part} sc1", 'm', ('FS', part), early=g0 + 2, late=g0 + 2)

    def push_pf2(self, g):
        e = self.e; t = V_T
        for n_, tx in enumerate([f"s_and_b32 s0, s{S_M}, 7", f"s_lshl_b32 s0, s0, 2", f"s_add_u32 s0, s0, s{S_J}", f"s_mul_i32 s0, s0, {36*1152}",
                   f"s_mul_i32 s1, s{S_KQ}, {1152*1152}", f"s_add_u32 s0, s0, s1", f"s_mul_i32 s1, s{S_W}, {81*128}", f"s_add_u32 s0, s0, s1",
                   f"v_lshlrev_b32 v{t}, 7, v1", f"v_mov_b32 v{t+2}, {OOB}", f"v_add_u32 v{t+1}, {64*128}, v{t}",
                   f"v_cmp_gt_u32 vcc, 17, v1\n    s_nop 1\n    v_cndmask_b32 v{t+1}, v{t+2}, v{t+1}, vcc"]):
            e.push('pf', tx, 's', early=g, late=g + 2 + n_)
        burst0 = max(g, GOS[18 + iopt("pf_at", 5)], GOS[18 + iopt("epiA1_late", 6)] + 14)
        slack = max(0, (e.streams['dma'][-1].late if e.streams['dma'] else g) - burst0) + 2
        def rec():
            self.pf_gap = e.gap
            return f"buffer_load_dword v255, v{t}, s[{S_W2}:{S_W2+3}], s0 offen"
        e.push('dma', rec, 'm', 'PF', early=burst0, late=burst0 + slack + 2, cost=10)
        e.push('dma', f"buffer_load_dword v255, v{t+1}, s[{S_W2}:{S_W2+3}], s0 offen", 'm', 'PF', early=burst0, late=burst0 + slack + 8, cost=5)

    def step_hooks(self, si, kind, k, g0, ngap):
        e = self.e
        if (kind, k) == ('A', iopt("ep_at", 4)):
            e.push('nonce', lambda: e.vm_wait_text('EP'), 'w', early=g0, late=g0 + 2)
            for t in [f"v_add_u32 v{V_P}, 1, v{V_P}", f"v_or_b32 v{V_P}, 0x80000000, v{V_P}"]:
                e.push('nonce', t, 'v', early=g0, late=g0 + 4)
            e.push('nonce', f"buffer_store_dword v{V_P}, v{V_NP}, s[{S_WS}:{S_WS+3}], 0 offen sc1", 'm', 'EPW', early=g0, late=g0 + 6)
            e.push('nonce', f"v_subrev_u32 v{V_NP}, {EP_OFF}, v{V_NP}", 'v', early=g0, late=g0 + 8)
            e.push('nonce', f"buffer_store_dword v{V_P}, v{V_NP}, s[{S_DBG}:{S_DBG+3}], 0 offen sc1", 'm', 'NW', early=g0, late=g0 + 10)
        NR = iopt("nr_at", 12); NC = iopt("nc_at", 16)
        ldn = f"buffer_load_dword v{V_P}, v{V_NP}, s[{S_DBG}:{S_DBG+3}], 0 offen sc1"
        if (kind, k) == ('A', NR):
            e.push('nonce', f"v_mov_b32 v{V_NP}, 0", 'v', early=g0, late=g0 + 2)
            e.push('nonce', ldn, 'm', 'NR', early=g0 + 1, late=g0 + 4)
        if (kind, k) == ('A', NC):
            e.push('nonce', lambda: e.vm_wait_text('NR'), 'w', early=g0, late=g0 + 2)
            e.push('nonce', self.poll_check(ldn, f"v_cmp_eq_u32 vcc, 0, v{V_P}", "nonce"), 's', early=g0, late=g0 + 5)
            e.push('nonce', f"v_readfirstlane_b32 s{S_N}, v{V_P}\n    s_nop 3", 'v', early=g0, late=g0 + 8)
            e.push('nonce', f"v_mov_b32 v{V_NP}, s{S_N}", 'v', early=g0, late=g0 + 10)
        SPS = float(opt('spS', 3.5))
        if (kind, k) == ('B', 0):
            st = g0 + 8
            e1 = GOS[18 + iopt("epiA1_late", 6)] + 8; e2 = GOS[18 + iopt("epiA2_late", 11)]
            self.storesA2 = []
            nA1 = iopt("nA1", 4)
            for (frs, a, b) in ((tuple(range(nA1)), st, e1), (tuple(range(nA1, 4)), e1, e2)):
                its = [x for i in frs for t in range(2) for x in self.epi_items(ACC_A, i, i, t)]
                nv = sum(1 for x in its if x[1] == 'v'); n = 0; late = a
                for (tx, kk, tag) in its:
                    if kk == 'v':
                        n += 1; late = a + (n * (b - a)) // nv
                        e.push('epi', tx, kk, tag, early=st, late=late)
                    elif frs[0] == 0:
                        e.push('stA', tx, kk, tag, early=late + 1, late=late + 4, cost=SPS if kk == 'm' else 0)
                    else:
                        self.storesA2.append((tx, kk, tag, late))
        if getattr(self, "storesA2", None) and kind == 'B' and self.pf_gap is not None and k >= iopt("epiA2_late", 11) - 1:
            early = self.pf_gap + iopt("pf_window", 140); sp = iopt("stA2_sp", 10)
            for (tx, kk, tag, late) in self.storesA2:
                early = max(early, late + 1)
                e.push('stA', tx, kk, tag, early=early, late=early + 3, cost=SPS if kk == 'm' else 0)
                if kk == 'm': early += sp
            self.storesA2 = []
        if (kind, k) == ('P', 0):
            prev = g0 + 2
            for (frs, vend, burst) in (((4, 5, 6), iopt("vB1", 80), iopt("bB1", 84)), ((7, 8), iopt("vB2", 150), iopt("bB2", 156))):
                its = [(i, x) for i in frs for t in range(2) for x in self.epi_items(ACC_B, i - 4, i, t)]
                end = g0 + vend
                nv = sum(1 for (_, x) in its if x[1] == 'v'); n = 0; early = g0 + burst
                for (i, (tx, kk, tag)) in its:
                    if kk == 'v':
                        n += 1
                        late = min(prev + (n * (end - prev)) // nv, GOS[36 + OWNB[i]] - 4)
                        e.push('epi', tx, kk, tag, early=g0 + 2, late=late)
                    else:
                        e.push('stB', tx, kk, tag, early=early if kk == 'm' else early - 2, late=early - 30, cost=float(opt("spSB", 4.0)) if kk == 'm' else 0)
                prev = end
        if kind == 'P' or (kind == 'B' and k >= 14):
            LA = iopt("LA", 4)
            q = k if kind == 'P' else k - 18
            c0, c1, c2 = PARTS[0][3], PARTS[1][3], PARTS[2][3]
            FIRST = {9: c0, 10: c0, 11: c0 + 1, 12: c0 + 1, 21: c1, 22: c1, 23: c1 + 1, 30: c2, 31: c2 + 1}
            def issue_at(qn):
                if qn in FIRST: return FIRST[qn]
                return max(qn - LA, PARTS[part_of(SEQ2[qn][1])][3], qn - HD + 1)
            for part, (_, _, pol, chk) in enumerate(PARTS):
                ld = f"buffer_load_dword v{V_P}, v{V_FL}, s[{S_WS}:{S_WS+3}], 0 offen offset:{4*part} sc1"
                if q == pol:
                    e.push('poll', ld, 'm', ('FP', part), early=g0 + 1, late=g0 + 2, cost=1)
                if q == chk:
                    e.push('poll', (lambda part=part: e.vm_wait_text(('FP', part))), 'w', early=g0, late=g0)
                    if not opt("x_nochk"): e.push('poll', self.poll_check(ld, f"v_cmp_ne_u32 vcc, s{S_N}, v{V_P}", f"flag{part}"), 's', early=g0, late=g0 + 1)
            assert LA < HD
            for qn in PEERS:
                if issue_at(qn) != q: continue
                d, i = SEQ2[qn]
                SH = S_HSO if opt("x_hhot") else S_T
                FLH = "" if (opt("x_hhot") or opt("hplain")) else " sc1"
                dst = AH + 8 * RING[qn]
                nd = min(GOS[36 + qn] - 1 - iopt("dminH", 36), g0 + ngap + 2)
                e.push('hld', f"s_add_u32 s{S_T}, s{S_HB+d}, {i*8192}", 's', early=g0 + 3, late=max(g0 + 4, nd - 6))
                for t in range(2):
                    e.push('hld', f"buffer_load_dwordx4 a[{dst+4*t}:{dst+4*t+3}], v{V_HS}, s[{S_WS}:{S_WS+3}], s{SH} offen offset:{t*1024}" + FLH, 'm', ('H', qn), early=g0 + 4, late=max(g0 + 5 + t, nd - 5 + 5 * t), cost=float(opt('spH', 3.0)))

    def tail(self):
        e = self.e
        t = V_T
        NG = 12; BOX = NG * 1024
        V_BAD, V_PA, V_O = t + 5, t + 6, t + 1
        val = lambda v: acc2((v // 4) // 2, (v // 4) % 2) + v % 4
        OWN_LDS = self.wslot[32] * SLOT
        e.raw(f"""
        s_lshl_b32 s84, s{S_M}, 2
        s_add_u32 s84, s84, s{S_J}
        s_lshl_b32 s84, s84, 2
        v_lshlrev_b32 v{t}, 4, v1
        s_cmp_eq_u32 s{S_W}, s{S_KQ}
        s_cbranch_scc0 L_send
        """)
        e.raw(f"v_add_u32 v{V_PA}, {OWN_LDS}, v{t}")
        for nt in range(9):
            e.raw(f"""
            v_accvgpr_read_b32 v{t+7}, a{AB2+2*nt}
            v_accvgpr_read_b32 v{t+8}, a{AB2+2*nt+1}
            v_lshlrev_b32 v{V_FL}, 16, v{t+7}
            v_and_b32 v{t+7}, 0xffff0000, v{t+7}
            v_lshlrev_b32 v{V_FS}, 16, v{t+8}
            v_and_b32 v{t+8}, 0xffff0000, v{t+8}""")
            for tt in range(2):
                r = acc2(nt, tt)
                e.raw(f"v_add_f32 v{r}, v{r}, v{V_FL}\nv_add_f32 v{r+1}, v{r+1}, v{t+7}\nv_add_f32 v{r+2}, v{r+2}, v{V_FS}\nv_add_f32 v{r+3}, v{r+3}, v{t+8}")
                e.raw(f"ds_write_b128 v{V_PA}, v[{r}:{r+3}] offset:{(2*nt+tt)*1024}")
        e.raw("s_waitcnt lgkmcnt(0)\ns_barrier")
        if STAMP:
            e.raw("s_branch L_end")
        else:
            e.raw("s_branch L_end")
        e.raw(f"""
        L_send:
        s_add_u32 s85, s84, s{S_W}
        s_lshl_b32 s85, s85, 2
        s_add_u32 s85, s85, s{S_KQ}
        s_mul_i32 s85, s85, {BOX}
        s_add_u32 s85, s85, {P_OFF}
        """)
        Q = [V_TA + 4 * i for i in range(4)]
        for q in Q: e.raw(f"v_mov_b32 v{q+3}, s{S_N}")
        for g in range(NG):
            q = Q[g % 4]
            if g % 4 == 0 and g: e.raw("s_add_u32 s85, s85, 4096")
            for w_ in range(3):
                e.raw(f"v_cvt_pk_bf16_f32 v{q+w_}, v{val(6*g+2*w_)}, v{val(6*g+2*w_+1)}")
            e.raw(f"buffer_store_dwordx4 v[{q}:{q+3}], v{t}, s[{S_WS}:{S_WS+3}], s85 offen offset:{(g%4)*1024} sc1")
        e.raw(f"""
        s_sub_u32 s88, s{S_W}, s{S_KQ}
        s_sub_u32 s88, s88, 1
        s_and_b32 s88, s88, 3
        s_add_u32 s85, s84, s{S_KQ}
        s_lshl_b32 s85, s85, 2
        s_lshl_b32 s87, s88, 12
        s_add_u32 s87, s87, {P_OFF}
        """)
        for d in range(1, 4):
            e.raw(f"""
            s_add_u32 s86, s{S_KQ}, {d}
            s_and_b32 s86, s86, 3
            s_add_u32 s86, s86, s85
            s_mul_i32 s86, s86, {BOX}
            s_add_u32 s{S_TW+d}, s86, s87""")
        e.raw(f"""
        v_min_u32 v{t+7}, 2, v1
        v_mov_b32 v{t+8}, s{S_TW+1}
        v_mov_b32 v{V_BAD}, s{S_TW+2}
        v_cmp_eq_u32 vcc, 1, v{t+7}
        s_mul_i32 s87, s88, 6144
        s_add_u32 s87, s87, {OWN_LDS}
        v_cndmask_b32 v{t+8}, v{t+8}, v{V_BAD}, vcc
        v_mov_b32 v{V_BAD}, s{S_TW+3}
        v_cmp_eq_u32 vcc, 2, v{t+7}
        s_lshl_b32 s86, s{S_M}, 7
        s_lshl_b32 s85, s{S_KQ}, 5
        v_cndmask_b32 v{t+8}, v{t+8}, v{V_BAD}, vcc
        v_add_u32 v{V_PA}, {3*1024+1020}, v{t+8}
        s_add_u32 s86, s86, s85
        s_mul_i32 s86, s86, 1152
        s_mul_i32 s85, s{S_J}, 288
        s_add_u32 s86, s86, s85
        s_mul_i32 s85, s88, 96
        s_add_u32 s86, s86, s85
        v_and_b32 v{V_O}, 15, v1
        v_mul_u32_u24 v{V_O}, 1152, v{V_O}
        v_add_u32 v{V_O}, v{V_O}, v{V_BI}
        v_add_u32 v{V_O+1}, {16*1152}, v{V_O}
        v_add_u32 v{V_FL}, s87, v{t}
        s_mov_b32 s89, 0xffff0000
        """)
        POLL = f"buffer_load_dword v{V_P}, v{V_PA}, s[{S_WS}:{S_WS+3}], 0 offen sc1"
        e.raw(POLL)
        e.raw("s_barrier")
        OWN = [ACC_B + 4 * i for i in range(6)]
        zones = [ACC_B + 24 + 4 * i for i in range(12)]
        for kl in range(6): e.raw(f"ds_read_b128 v[{OWN[kl]}:{OWN[kl]+3}], v{V_FL} offset:{kl*1024}")
        zone = lambda g, d: zones[3 * g + d]
        S = [36, 37, 38, 39]; U = [40, 41, 42]; X = [43, 44]
        e.raw(f"s_mov_b32 s91, {SPIN_LIMIT}\ns_mov_b32 s88, 64\nL_redo:\nv_mov_b32 v{V_BAD}, 0")
        e.raw(f"""
        L_tw_chk:
        s_waitcnt vmcnt(0)
        v_cmp_ne_u32 vcc, s{S_N}, v{V_P}
        s_nop 3
        s_cmp_eq_u64 vcc, 0
        s_cbranch_scc1 L_tw_go
        s_sub_u32 s91, s91, 1
        s_cmp_le_i32 s91, 0
        s_cbranch_scc1 L_tw_go
        {POLL}
        s_branch L_tw_chk
        L_tw_go:""")
        stamp(e, 7) if opt("stamp7", "poll") == "poll" and not opt("pstamp") else None
        vm = []
        for g in range(4):
            for d in range(3):
                r = zone(g, d)
                e.raw(f"buffer_load_dwordx4 v[{r}:{r+3}], v{t}, s[{S_WS}:{S_WS+3}], s{S_TW+1+d} offen offset:{g*1024} sc1")
                vm.append(('L', g))
        e.raw("s_waitcnt lgkmcnt(0)")
        done_g = set()
        def need_granule(g):
            if g in done_g: return
            done_g.add(g)
            last = max(i for i, v in enumerate(vm) if v == ('L', g))
            e.raw(f"s_waitcnt vmcnt({min(len(vm) - 1 - last, 63)})")
            z = [zone(g, d) + 3 for d in range(3)]
            e.raw(f"""
            v_xor_b32 v{X[0]}, s{S_N}, v{z[0]}
            v_xor_b32 v{X[1]}, s{S_N}, v{z[1]}
            v_or3_b32 v{V_BAD}, v{X[0]}, v{X[1]}, v{V_BAD}
            v_xor_b32 v{X[0]}, s{S_N}, v{z[2]}
            v_or_b32 v{V_BAD}, v{X[0]}, v{V_BAD}""")
        for kl in range(6):
            ntl, tt = kl // 2, kl % 2
            for v in range(4 * kl, 4 * kl + 4): need_granule(v // 6)
            for x in range(4):
                v = 4 * kl + x; g, pos = v // 6, v % 6
                for d in range(3):
                    src = zone(g, d) + pos // 2
                    e.raw(f"v_lshlrev_b32 v{U[d]}, 16, v{src}" if pos % 2 == 0 else f"v_and_b32 v{U[d]}, s89, v{src}")
                e.raw(f"v_add_f32 v{S[x]}, v{OWN[kl]+x}, v{U[0]}\nv_add_f32 v{U[1]}, v{U[1]}, v{U[2]}\nv_add_f32 v{S[x]}, v{S[x]}, v{U[1]}")
            o = (46 if kl % 2 == 0 else 2)
            e.raw(f"v_cvt_pk_bf16_f32 v{o}, v{S[0]}, v{S[1]}\nv_cvt_pk_bf16_f32 v{o+1}, v{S[2]}, v{S[3]}")
            e.raw(f"buffer_store_dwordx2 v[{o}:{o+1}], v{V_O+tt}, s[{S_OUT}:{S_OUT+3}], s86 offen offset:{32*ntl}" + (" sc1" if opt("outsc1") else ""))
            vm.append(('S', kl))
        e.raw(f"""
        v_cmp_ne_u32 vcc, 0, v{V_BAD}
        s_nop 3
        s_cmp_eq_u64 vcc, 0
        s_cbranch_scc1 L_tdone
        s_sub_u32 s88, s88, 1
        s_cmp_eq_u32 s88, 0
        s_cbranch_scc1 L_tdone
        s_waitcnt vmcnt(0)
        {POLL}
        s_branch L_redo
        L_tdone:
        """)
        if STAMP:
            e.raw(f"s_sub_u32 s85, s{S_W}, s{S_KQ}\ns_and_b32 s85, s85, 3\ns_cmp_eq_u32 s85, 1\ns_cbranch_scc0 L_end")
            e.raw("s_waitcnt vmcnt(0)")
            if opt("stamp7") == "end" and not opt("pstamp"): stamp(e, 7)
            e.raw(f"""
            s_lshl_b32 s84, s2, 5
            s_add_u32 s84, s84, {STAMP_OFF}
            v_lshlrev_b32 v{t+1}, 2, v1
            v_mov_b32 v{t+2}, {OOB}
            v_cmp_gt_u32 vcc, 8, v1
            s_nop 1
            v_cndmask_b32 v{t+1}, v{t+2}, v{t+1}, vcc
            buffer_store_dword v{V_ST}, v{t+1}, s[{S_WS}:{S_WS+3}], s84 offen sc1""")
            if opt("chunkstamp") or opt("both"):
                e.raw(f"s_lshl_b32 s84, s2, 8\ns_add_u32 s84, s84, {STAMP_OFF + 65536}\nv_lshlrev_b32 v{t+1}, 2, v1\nbuffer_store_dword v63, v{t+1}, s[{S_WS}:{S_WS+3}], s84 offen sc1")
            e.raw("s_waitcnt vmcnt(0)")

def kd(name, vgpr, accum, sgpr=102):
    return f""".section .rodata,"a"
.p2align 6
.amdhsa_kernel {name}
  .amdhsa_next_free_vgpr {vgpr}
  .amdhsa_next_free_sgpr {sgpr}
  .amdhsa_accum_offset {accum}
  .amdhsa_group_segment_fixed_size 0
  .amdhsa_kernarg_size 64
  .amdhsa_user_sgpr_count 2
  .amdhsa_user_sgpr_kernarg_segment_ptr 1
  .amdhsa_system_sgpr_workgroup_id_x 1
.end_amdhsa_kernel
"""

def gen_amp(name, a, b, amp, wg):
    return f""".globl {name}
.p2align 8
.type {name},@function
{name}:
    s_cmp_ge_u32 s2, 1
    s_cbranch_scc1 L_{name}_end
    s_load_dwordx2 s[4:5], s[0:1], 56
    s_waitcnt lgkmcnt(0)
    s_mov_b32 s8, s4
    s_mov_b32 s9, s5
    s_mov_b32 s10, {WS_BYTES}
    s_mov_b32 s11, 0x20000
    v_mov_b32 v1, {STAMP_OFF + 32 * wg}
    buffer_load_dword v2, v1, s[8:11], 0 offen offset:{4*a} sc1
    buffer_load_dword v3, v1, s[8:11], 0 offen offset:{4*b} sc1
    s_waitcnt vmcnt(0)
    v_sub_u32 v2, v3, v2
    s_nop 1
    v_readfirstlane_b32 s12, v2
    s_nop 3
    s_min_u32 s12, s12, 20000
    s_mul_i32 s12, s12, {amp}
    s_memrealtime s[14:15]
    s_waitcnt lgkmcnt(0)
    s_mov_b32 s13, s14
L_{name}_spin:
    s_memrealtime s[14:15]
    s_waitcnt lgkmcnt(0)
    s_sub_u32 s16, s14, s13
    s_cmp_lt_u32 s16, s12
    s_cbranch_scc1 L_{name}_spin
L_{name}_end:
    s_endpgm
""" + kd(name, 8, 8, 32) + ".text\n"

def main(path):
    g = Gen()
    body = g.build()
    launch = f"; @launch grid=(256,1,1) block=(256,1,1) lds={LDS_BYTES}"
    if opt("amp"):
        launch = f"; @launch kernel={KNAME} grid=(256,1,1) block=(256,1,1) lds={LDS_BYTES}\n; @launch kernel=mlp_amp_kernel grid=(1,1,1) block=(64,1,1) lds=0"
    txt = f"""; Fused MLP  out = relu(x@w1+b1)^2 @ w2 + b2   (one workgroup per CU, split-K over 4, see generator notes)
{launch}
.amdgcn_target "amdgcn-amd-amdhsa--gfx950"
.text
.globl {KNAME}
.p2align 8
.type {KNAME},@function
{KNAME}:
""" + body + kd(KNAME, 512, 256)
    if opt("amp"):
        a, b = [int(v) for v in opt("amp").split("_")]
        txt += ".text\n" + gen_amp("mlp_amp_kernel", a, b, iopt("ampx", 20), iopt("ampwg", 37))
    open(path, "w").write(txt)

if __name__ == "__main__":
    main(sys.argv[1] if len(sys.argv) > 1 else "f4.s")
```

```python
import sys, os
from emit import Emitter

OPT = dict(kv.split("=") if "=" in kv else (kv, 1) for kv in os.environ.get("GOPT", "").split(",") if kv)
def opt(k, d=None): return OPT.get(k, d)
def iopt(k, d): return int(OPT.get(k, d))

KNAME = "standalone__dense_activation_squared_relu__prompt_kernel"
X_BYTES, W1_BYTES, B1_BYTES, W2_BYTES, B2_BYTES, OUT_BYTES = 2359296, 5308416, 9216, 5308416, 1152, 2359296
WS_BYTES = 268435456
H_OFF = 0
P_OFF = 20 << 20
FL_OFF = 40 << 20
EP_OFF = 41 << 20
STAMP_OFF = 128 << 20
OOB = 0x40000000
SLOT = 20480
NSLOT = 8
LDS_BYTES = NSLOT * SLOT
BIAS_LDS = 4 * SLOT + 16384
SPIN_LIMIT = 1 << 16
TAGMASK = 0xFFF

S_X, S_W1, S_B1, S_WS, S_W2, S_OUT = 4, 8, 12, 16, 20, 24
S_W, S_M, S_S, S_PAR, S_KQ, S_J = 28, 29, 30, 31, 32, 33
S_CBA, S_CBB, S_WSO, S_MW, S_MX = 34, 35, 36, 38, 39
S_HSO, S_T, S_T2, S_N = 40, 41, 42, 43
S_TW, S_TX = 44, 53
S_SO2 = 62
S_HB = 80
S_DBG = 92
KA = 64
V_WA, V_WB, V_X, V_W2 = 2, 6, 11, 15
V_TA, V_TB, V_T2, V_XR = 20, 36, 42, 45
V_HS, V_BI, V_FL, V_FS, V_P, V_NP = 47, 48, 49, 50, 51, 52
V_T = 53
V_ST = 62
ACC_A, ACC_B, BIASB = 64, 128, 208
AX, AW, AH, AB2 = 0, 144, 0, 224
HD = iopt("HD", 8)
STAMP = bool(opt("stamp"))
NT1 = " nt" if opt("ntw1", "0") == "1" else ""
NTX = " nt" if opt("ntx", "0") == "1" else ""

def acc2(nt, t):
    return (BIASB + 8 * nt + 4 * t) if nt < 5 else (ACC_A + 16 * (nt - 5) + 8 + 4 * t)
def srd(dst, ptr, nbytes):
    return [f"s_mov_b32 s{dst}, s{ptr}", f"s_mov_b32 s{dst+1}, s{ptr+1}", f"s_mov_b32 s{dst+2}, {nbytes}", f"s_mov_b32 s{dst+3}, 0x20000"]
def lines(s): return [x.strip() for x in s.strip().split("\n") if x.strip()]
def stamp(e, idx, pro=False):
    if not STAMP or (opt("chunkstamp") and idx != 0): return
    if opt("pstamp") and (pro != (idx >= 3)) and idx not in (0,):
        if not (pro and idx < 3): return
    ins = "s_memtime" if opt("cyc") else "s_memrealtime"
    e.raw(f"{ins} s[90:91]\ns_waitcnt lgkmcnt(0)\nv_writelane_b32 v{V_ST}, s90, {idx}")
    if opt("both"):
        e.raw(f"s_memtime s[90:91]\ns_waitcnt lgkmcnt(0)\nv_writelane_b32 v63, s90, {idx}")

def ksteps2():
    grp = lambda frs: [(d, i) for d in (1, 2, 3) for i in frs]
    seq = [(0, i) for i in range(9)] + grp((0, 1, 2, 3)) + grp((4, 5, 6)) + grp((7, 8))
    assert len(seq) == 36
    return seq
SEQ2 = ksteps2()
PEERS = [q for q, (d, i) in enumerate(SEQ2) if d != 0]
RING = {q: n % HD for n, q in enumerate(PEERS)}
PARTS = [((0, 1, 2, 3), iopt("pub0", 33), iopt("pol0", 0), iopt("chk0", 3)),
         ((4, 5, 6), iopt("pub1", 47), iopt("pol1", 15), iopt("chk1", 17)),
         ((7, 8), iopt("pub2", 49), iopt("pol2", 22), iopt("chk2", 24))]
def part_of(i): return [p for p, x in enumerate(PARTS) if i in x[0]][0]
OWNB = {SEQ2[q][1]: q for q in range(36) if SEQ2[q][0] == 0 and SEQ2[q][1] >= 4}
STEPS = [('A', k) for k in range(18)] + [('B', k) for k in range(18)] + [('P', q) for q in range(36)]
def nfrag(kind): return {'A': 8, 'B': 10, 'P': 9}[kind]
GOS = []
_g = 0
for (_k, _) in STEPS:
    GOS.append(_g); _g += 2 * nfrag(_k)
GOS.append(_g)

class Gen:
    def __init__(self):
        self.e = Emitter()
        self.wslot = {}
        self.free = []
        self.slow = []
        self.nlabel = 0

    def setup_first(self):
        t = V_T
        L = lines(f"""
        s_and_b32 s84, s2, 7
        s_lshr_b32 s85, s2, 3
        v_lshrrev_b32 v{t}, 6, v0
        v_and_b32 v1, 63, v0
        s_and_b32 s{S_KQ}, s84, 3
        v_readfirstlane_b32 s{S_W}, v{t}
        s_lshr_b32 s86, s84, 2
        s_lshr_b32 s87, s85, 2
        s_and_b32 s{S_J}, s85, 3
        s_lshl_b32 s86, s86, 3
        s_add_u32 s{S_M}, s86, s87
        s_lshl_b32 s{S_S}, s{S_KQ}, 2
        s_add_u32 s{S_S}, s{S_S}, s{S_J}
        s_and_b32 s{S_PAR}, s{S_J}, 1
        """)
        rot = opt("rot", "jm")
        if rot == "0": L += ["s_mov_b32 s84, 0"]
        elif rot == "j": L += lines(f"s_mul_i32 s84, s{S_J}, 9\ns_lshr_b32 s84, s84, 2")
        elif rot == "jm": L += lines(f"s_lshl_b32 s84, s{S_J}, 1\ns_add_u32 s84, s84, s87\ns_cmp_ge_u32 s84, 9\ns_cselect_b32 s85, 9, 0\ns_sub_u32 s84, s84, s85")
        elif rot == "jm2": L += lines(f"s_lshl_b32 s84, s{S_J}, 1\ns_and_b32 s85, s87, 1\ns_mul_i32 s85, s85, 5\ns_add_u32 s84, s84, s85\ns_cmp_ge_u32 s84, 9\ns_cselect_b32 s85, 9, 0\ns_sub_u32 s84, s84, s85")
        L += [f"s_mul_i32 s85, s{S_M}, 147456"]
        for c in range(9):
            L += lines(f"""
            s_mul_i32 s{S_TW+c}, s84, 589824
            s_lshl_b32 s86, s84, 7
            s_add_u32 s{S_TX+c}, s85, s86""")
            if c < 8: L += ["s_add_u32 s84, s84, 1", "s_cmp_eq_u32 s84, 9", "s_cselect_b32 s84, 0, s84"]
        L += lines(f"""
        s_mul_i32 s{S_CBA}, s{S_S}, 576
        s_mul_i32 s{S_T}, s{S_PAR}, 320
        s_add_u32 s{S_CBB}, s{S_CBA}, 256
        s_add_u32 s{S_CBA}, s{S_CBA}, s{S_T}
        s_lshl_b32 s{S_T}, s{S_PAR}, 8
        s_sub_u32 s{S_CBB}, s{S_CBB}, s{S_T}
        s_lshl_b32 s{S_MX}, s{S_W}, 12
        s_mul_i32 s{S_MW}, s{S_W}, 5120
        s_mul_i32 s{S_T}, s{S_W}, {32*1152}
        v_lshrrev_b32 v{t}, 3, v1
        v_lshrrev_b32 v{t+1}, 4, v1
        v_and_b32 v{t+2}, 7, v1
        v_mul_u32_u24 v{t}, 1152, v{t}
        v_add_u32 v{t}, s{S_T}, v{t}
        """)
        for q in range(4):
            L += lines(f"""
            v_add_u32 v{t+3}, {4*q}, v{t+1}
            v_and_b32 v{t+3}, 7, v{t+3}
            v_xor_b32 v{t+3}, v{t+2}, v{t+3}
            v_lshl_add_u32 v{t+3}, v{t+3}, 4, v{t}
            v_add_u32 v{V_X+q}, {q*(8*1152-1024)}, v{t+3}""")
        L += lines(f"""
        s_mul_i32 s{S_T}, s{S_W}, {16*9216}
        v_and_b32 v{t+2}, 15, v1
        v_mul_u32_u24 v{t}, 9216, v{t+1}
        v_add_u32 v{t}, s{S_T}, v{t}
        v_lshlrev_b32 v{t+3}, 1, v{t+1}
        v_xor_b32 v{t+3}, v{t+2}, v{t+3}
        v_xor_b32 v{t+4}, 8, v{t+3}
        v_lshl_add_u32 v{V_WA}, v{t+3}, 4, v{t}
        v_lshl_add_u32 v{t+4}, v{t+4}, 4, v{t}
        v_add_u32 v{V_WA+1}, {4*9216-1024}, v{V_WA}
        v_add_u32 v{V_WA+2}, {8*9216-2048}, v{t+4}
        v_add_u32 v{V_WA+3}, {12*9216-3072}, v{t+4}
        v_lshlrev_b32 v{V_BI}, 3, v{t+1}
        """)
        L += lines(f"""
        v_lshlrev_b32 v{t+4}, 4, v1
        v_mov_b32 v{t+3}, {OOB}
        v_cmp_gt_u32 vcc, 36, v1
        s_mul_i32 s86, s{S_S}, 576
        s_mul_i32 s87, s{S_J}, 288
        v_cndmask_b32 v{t+5}, v{t+3}, v{t+4}, vcc
        v_cmp_gt_u32 vcc, 18, v1
        s_nop 1
        v_cndmask_b32 v{t+6}, v{t+3}, v{t+4}, vcc
        """)
        return L

    def setup_reads_A(self):
        t = V_T
        L = lines(f"""
        v_lshrrev_b32 v{t}, 4, v1
        v_and_b32 v{t+1}, 1, v{t}
        v_lshrrev_b32 v{t+2}, 1, v{t}
        v_and_b32 v{t+3}, 15, v1
        v_lshrrev_b32 v{t+4}, 2, v{t+3}
        v_and_b32 v{t+3}, 3, v{t+3}
        v_lshl_add_u32 v{V_TB+4}, v{t+1}, 3, v{t+4}
        v_lshlrev_b32 v{V_TB+5}, 8, v{V_TB+4}
        v_lshl_add_u32 v{V_TB+5}, v{t+2}, 12, v{V_TB+5}
        v_lshl_add_u32 v{V_TB+5}, v{t+3}, 3, v{V_TB+5}
        v_lshl_add_u32 v{V_TA}, v{t+1}, 2, v{t+4}
        v_lshl_add_u32 v{V_TB+5}, v{V_TA}, 5, v{V_TB+5}
        """)
        for ft in range(8): L.append(f"v_xor_b32 v{V_TA+ft}, {ft*32}, v{V_TB+5}")
        for ft in range(8): L.append(f"v_add_u32 v{V_TA+8+ft}, {3*SLOT}, v{V_TA+ft}")
        L += lines(f"""
        v_and_b32 v{t}, 15, v1
        v_lshrrev_b32 v{t+1}, 4, v1
        v_lshrrev_b32 v{t+2}, 1, v{t}
        v_xor_b32 v{t+1}, v{t+1}, v{t+2}
        v_lshlrev_b32 v{t+1}, 4, v{t+1}
        v_lshl_add_u32 v{t+1}, v{t}, 7, v{t+1}
        v_add_u32 v{t+1}, {5*SLOT}, v{t+1}
        v_add_u32 v{V_XR}, s{S_MX}, v{t+1}
        v_xor_b32 v{t+1}, 64, v{t+1}
        v_add_u32 v{V_XR+1}, s{S_MX}, v{t+1}
        """)
        return L

    def setup_late(self):
        t = V_T + 3
        L = lines(f"s_mul_i32 s84, s{S_W}, {16*9216}")
        for q in range(5):
            L += lines(f"""
            v_add_u32 v{t}, {64*q}, v1
            v_mul_u32_u24 v{t+1}, 205, v{t}
            v_lshrrev_b32 v{t+1}, 12, v{t+1}
            v_mul_u32_u24 v{t+2}, 20, v{t+1}
            v_sub_u32 v{t+2}, v{t}, v{t+2}
            v_lshrrev_b32 v{t+3}, 2, v{t+1}
            v_and_b32 v{t+3}, 2, v{t+3}
            v_xor_b32 v{t+2}, v{t+2}, v{t+3}
            v_mul_u32_u24 v{t+3}, 9216, v{t+1}
            v_lshl_add_u32 v{t+3}, v{t+2}, 4, v{t+3}
            v_add_u32 v{V_WB+q}, s84, v{t+3}""")
            if q & 3: L.append(f"v_subrev_u32 v{V_WB+q}, {(q&3)*1024}, v{V_WB+q}")
        L += lines(f"""
        s_lshl_b32 s84, s{S_W}, 11
        s_lshl_b32 s85, s{S_M}, 4
        s_add_u32 s85, s85, s{S_S}
        s_mul_i32 s{S_HSO}, s85, 73728
        v_lshl_add_u32 v{V_HS}, v1, 4, s84
        s_lshl_b32 s85, s85, 7
        s_add_u32 s85, s85, {FL_OFF}
        v_mov_b32 v{t}, s85
        v_mov_b32 v{t+1}, {OOB}""")
        L.append(f"v_cmp_eq_u32 vcc, 0, v1\n    s_nop 1\n    v_cndmask_b32 v{V_FS}, v{t+1}, v{t}, vcc")
        L += lines(f"""
        v_lshrrev_b32 v{t}, 4, v1
        v_and_b32 v{t+1}, 1, v{t}
        v_lshrrev_b32 v{t+2}, 1, v{t}
        v_and_b32 v{t+3}, 15, v1
        v_lshrrev_b32 v{t+4}, 2, v{t+3}
        v_and_b32 v{t+3}, 3, v{t+3}
        v_lshl_add_u32 v{V_TB+4}, v{t+1}, 3, v{t+4}
        v_mul_u32_u24 v{V_TB+4}, 320, v{V_TB+4}
        v_mul_u32_u24 v{V_TB+5}, 5120, v{t+2}
        v_add_u32 v{V_TB+4}, v{V_TB+4}, v{V_TB+5}
        v_lshl_add_u32 v{V_TB+4}, v{t+3}, 3, v{V_TB+4}
        v_lshlrev_b32 v{t+1}, 5, v{t+1}
        v_add_u32 v{V_TB}, v{V_TB+4}, v{t+1}
        v_sub_u32 v{V_TB+1}, v{V_TB+4}, v{t+1}
        v_add_u32 v{V_TB+2}, {3*SLOT}, v{V_TB}
        v_add_u32 v{V_TB+3}, {3*SLOT}, v{V_TB+1}
        v_add_u32 v{V_TB+4}, {6*SLOT}, v{V_TB}
        v_add_u32 v{V_TB+5}, {6*SLOT}, v{V_TB+1}
        v_lshl_add_u32 v{t+4}, v{t}, 2, v{t+4}
        v_mul_u32_u24 v{t+4}, 288, v{t+4}
        v_lshl_add_u32 v{V_T2}, v{t+3}, 3, v{t+4}
        v_add_u32 v{V_T2+1}, {3*SLOT}, v{V_T2}
        v_add_u32 v{V_T2+2}, {6*SLOT}, v{V_T2}""")
        L.append("@P2")
        L += lines(f"""
        s_lshl_b32 s85, s{S_M}, 2
        s_add_u32 s85, s85, s{S_KQ}
        s_lshl_b32 s85, s85, 9
        s_add_u32 s85, s85, {FL_OFF}
        v_and_b32 v{t}, 3, v1
        v_min_u32 v{t}, 2, v{t}
        v_add_u32 v{t}, 1, v{t}
        v_add_u32 v{t}, s{S_J}, v{t}
        v_and_b32 v{t}, 3, v{t}
        v_lshlrev_b32 v{t}, 7, v{t}
        v_add_u32 v{V_FL}, s85, v{t}
        s_and_b32 s84, s{S_W}, 1
        s_mul_i32 s84, s84, {16*1152}
        """)
        for q in range(5):
            L += lines(f"""
            v_add_u32 v{t}, {64*q}, v1
            v_mul_u32_u24 v{t+1}, 57, v{t}
            v_lshrrev_b32 v{t+1}, 10, v{t+1}
            v_mul_u32_u24 v{t+2}, 18, v{t+1}
            v_sub_u32 v{t+2}, v{t}, v{t+2}
            v_mul_u32_u24 v{t+3}, 1152, v{t+1}
            v_lshl_add_u32 v{t+3}, v{t+2}, 4, v{t+3}
            v_add_u32 v{V_W2+q}, s84, v{t+3}""")
            if q & 3: L.append(f"v_subrev_u32 v{V_W2+q}, {(q&3)*1024}, v{V_W2+q}")
        L.append(f"v_mov_b32 v{t}, {OOB}")
        L.append(f"v_cmp_gt_u32 vcc, 32, v1\n    s_nop 1\n    v_cndmask_b32 v{V_W2+4}, v{t}, v{V_W2+4}, vcc")
        L += lines(f"""
        s_mul_i32 s0, s{S_PAR}, {160*1152}
        s_sub_u32 s1, {160*1152}, s0
        s_mul_i32 s3, s{S_PAR}, {-128*1152}
        s_sub_u32 s37, {-128*1152}, s3
        s_mul_i32 s88, s{S_J}, 288
        """)
        for d in range(4):
            L += lines(f"""
            s_add_u32 s{84+d}, s{S_J}, {d}
            s_and_b32 s{84+d}, s{84+d}, 3
            s_lshl_b32 s89, s{S_KQ}, 2
            s_add_u32 s{84+d}, s{84+d}, s89
            s_lshl_b32 s89, s{S_M}, 4
            s_add_u32 s89, s89, s{84+d}
            s_mul_i32 s{S_HB+d}, s89, 73728
            s_mul_i32 s{84+d}, s{84+d}, {288*1152}
            s_add_u32 s{84+d}, s{84+d}, s88""")
        for c in range(18):
            (d0, i0), (d1, i1) = SEQ2[2 * c], SEQ2[2 * c + 1]
            def corr(d, i): return (0 if d % 2 == 0 else 1) if i < 4 else (3 if d % 2 == 0 else 37)
            L += lines(f"""
            s_add_u32 s88, s{84+d0}, s{corr(d0,i0)}
            s_add_u32 s88, s88, {32*i0*1152}
            s_add_u32 s89, s{84+d1}, s{corr(d1,i1)}
            s_add_u32 s89, s89, {32*i1*1152}""")
            L.append(f"s_cmp_lt_u32 s{S_W}, 2\n    s_cselect_b32 s{S_SO2+c}, s88, s89")
        return L

    def pf1_setup(self):
        t = V_T
        return lines(f"""
        s_and_b32 s84, s{S_M}, 7
        s_lshl_b32 s84, s84, 2
        s_add_u32 s84, s84, s{S_J}
        s_lshl_b32 s84, s84, 2
        s_add_u32 s84, s84, s{S_W}
        s_lshr_b32 s85, s{S_M}, 3
        s_lshl_b32 s85, s85, 10
        s_lshl_b32 s86, s84, 3
        s_add_u32 s85, s85, s86
        s_mul_i32 s85, s85, 1152
        v_lshrrev_b32 v{t+2}, 3, v1
        v_and_b32 v{t+3}, 7, v1
        v_mul_u32_u24 v{t+3}, 1152, v{t+3}
        v_lshl_add_u32 v{t+3}, v{t+2}, 7, v{t+3}
        v_add_u32 v{t+3}, 256, v{t+3}
        v_add_u32 v{t+3}, s85, v{t+3}
        v_mov_b32 v{t+4}, {OOB}
        v_cmp_gt_u32 vcc, 56, v1
        s_lshl_b32 s84, s84, 2
        s_mul_i32 s85, s{S_KQ}, {4*576}
        v_cndmask_b32 v{t}, v{t+4}, v{t+3}, vcc
        v_and_b32 v{t+2}, 3, v1
        v_add_u32 v{t+2}, s84, v{t+2}
        v_lshrrev_b32 v{t+3}, 3, v{t+2}
        v_lshrrev_b32 v{t+1}, 2, v1
        v_lshl_add_u32 v{t+3}, v{t+1}, 6, v{t+3}
        v_add_u32 v{t+3}, 128, v{t+3}
        v_mul_u32_u24 v{t+3}, 9216, v{t+3}
        v_and_b32 v{t+2}, 7, v{t+2}
        v_lshrrev_b32 v{t+1}, 1, v{t+2}
        v_mul_u32_u24 v{t+5}, 576, v{t+1}
        v_add_u32 v{t+3}, v{t+3}, v{t+5}
        v_and_b32 v{t+1}, 1, v{t+1}
        v_mul_u32_u24 v{t+1}, 320, v{t+1}
        v_add_u32 v{t+3}, v{t+3}, v{t+1}
        v_and_b32 v{t+2}, 1, v{t+2}
        v_lshl_add_u32 v{t+3}, v{t+2}, 7, v{t+3}
        v_add_u32 v{t+3}, s85, v{t+3}
        v_cmp_gt_u32 vcc, 28, v1
        s_nop 1
        v_cndmask_b32 v{t+1}, v{t+4}, v{t+3}, vcc
        """)
    def w_items(self, C):
        slot = self.wslot[C]
        if C < 9:
            it = [(f"s_add_u32 s{S_WSO}, s{S_CBA}, s{S_TW+C}", 's', None),
                  (f"s_add_u32 m0, s{S_MX}, {slot*SLOT}", 's', None)]
            for q in range(4):
                it.append((f"buffer_load_dwordx4 v{V_WA+q}, s[{S_W1}:{S_W1+3}], s{S_WSO} offen offset:{q*1024}" + NT1 + " lds", 'm', ('W', C)))
            return it
        if C < 18:
            vb, sr, so = V_WB, S_W1, S_WSO
            it = [(f"s_add_u32 s{S_WSO}, s{S_CBB}, s{S_TW+C-9}", 's', None)]
        else:
            vb, sr, so = V_W2, S_W2, S_SO2 + C - 18
            it = []
        nt = NT1 if C < 18 else ""
        it.append((f"s_add_u32 m0, s{S_MW}, {slot*SLOT}", 's', None))
        for q in range(4):
            it.append((f"buffer_load_dwordx4 v{vb+q}, s[{sr}:{sr+3}], s{so} offen offset:{q*1024}{nt} lds", 'm', ('W', C)))
        it.append((f"s_add_u32 m0, s{S_MW}, {slot*SLOT+4096}", 's', None))
        it.append((f"buffer_load_dwordx4 v{vb+4}, s[{sr}:{sr+3}], s{so} offen{nt} lds", 'm', ('W', C)))
        return it
    def x_items(self, c):
        slot = 5 + c % 3
        it = [(f"s_add_u32 m0, s{S_MX}, {slot*SLOT}", 's', None)]
        for q in range(4):
            it.append((f"buffer_load_dwordx4 v{V_X+q}, s[{S_X}:{S_X+3}], s{S_TX+c} offen offset:{q*1024}" + NTX + " lds", 'm', ('X', c)))
        return it
    def push_dma(self, items, early, need, cost):
        e = self.e
        nm = sum(1 for it in items if it[1] == 'm')
        dmin = iopt("dmin", 40)
        k = 0
        for (t, kind, tag) in items:
            late = max(early + 1 + k, int(need - dmin - (nm - 1 - min(k, nm - 1)) * cost))
            if kind == 'm':
                e.push('dma', t, kind, tag, early=early, late=late, cost=cost)
                k += 1
            else:
                e.push('dma', t, kind, tag, early=early, late=max(early, late - 1))
        self.tighten('dma')
    def tighten(self, stream):
        q = self.e.streams.get(stream, [])
        for i in range(len(q) - 2, -1, -1):
            sp = q[i].cost if q[i].kind == 'm' else 1
            lim = q[i + 1].late - sp
            if q[i].late > lim: q[i].late = max(q[i].early, int(lim))

    def frag_reads(self, si):
        kind, k = STEPS[si]
        C, ks = si // 2, si % 2
        slot = self.wslot[C]
        dst0 = AW + 40 * (si % 2)
        out = []
        for f in range(nfrag(kind)):
            for h in range(2):
                d = dst0 + 4 * f + 2 * h
                if kind == 'A':
                    vb = V_TA + f + (8 if slot >= 3 else 0)
                    off = (slot % 3) * SLOT + ks * 8192 + h * 1024
                elif kind == 'B':
                    vb = V_TB + (f & 1) + 2 * (slot // 3)
                    off = (slot % 3) * SLOT + ks * 10240 + h * 1280 + f * 32
                else:
                    vb = V_T2 + slot // 3
                    off = (slot % 3) * SLOT + ks * 10240 + h * 5120 + f * 32
                out.append((f"ds_read_b64_tr_b16 a[{d}:{d+1}], v{vb} offset:{off}", ('WF', si, f)))
        return out
    def x_reads(self, kt):
        c, p = kt // 2, kt % 2
        return [(f"ds_read_b128 a[{AX+8*kt+4*t}:{AX+8*kt+4*t+3}], v{V_XR+p} offset:{(c%3)*SLOT + t*2048}", ('XF', kt)) for t in range(2)]

    def bias_cvt(self, n, base):
        out = []
        for ft in range(n):
            q = base + 4 * ft
            out += [f"v_lshlrev_b32 v{q}, 16, v{q+2}", f"v_and_b32 v{q+1}, 0xffff0000, v{q+2}",
                    f"v_lshlrev_b32 v{q+2}, 16, v{q+3}", f"v_and_b32 v{q+3}, 0xffff0000, v{q+3}"]
        return out
    def epi_items(self, acc, il, istore, t):
        P = acc + 16 * il + 4 * t; Q = P + 8
        it = []
        for r in range(4): it.append((f"v_mul_f32 v{P+r}, v{P+r}, |v{P+r}|", 'v', None))
        for r in range(4): it.append((f"v_mul_f32 v{Q+r}, v{Q+r}, |v{Q+r}|", 'v', None))
        it += [(f"v_cvt_pk_bf16_f32 v{P}, v{P}, v{P+1}", 'v', None), (f"v_cvt_pk_bf16_f32 v{P+1}, v{P+2}, v{P+3}", 'v', None),
               (f"v_cvt_pk_bf16_f32 v{P+2}, v{Q}, v{Q+1}", 'v', None), (f"v_cvt_pk_bf16_f32 v{P+3}, v{Q+2}, v{Q+3}", 'v', None)]
        for r in range(4): it.append((f"v_pk_max_i16 v{P+r}, v{P+r}, 0", 'v', None))
        if t == 0: it.append((f"s_add_u32 s{S_T2}, s{S_HSO}, {istore*8192}", 's', None))
        st = f"buffer_store_dwordx4 v[{P}:{P+3}], v{V_HS}, s[{S_WS}:{S_WS+3}], s{S_T2} offen offset:{t*1024}" + {"nt": " sc1 nt", "sc01": " sc0 sc1", "sc01nt": " sc0 sc1 nt"}.get(opt("hstf", ""), " sc1")
        if opt("x_nostB") and istore >= 4: st = f"buffer_load_dword v255, v{V_FS}, s[{S_WS}:{S_WS+3}], 0 offen offset:24"
        if opt("x_noepiB") and istore >= 4: it = [x for x in it if x[1] != 'v']
        it.append((st, 'm', ('HS', part_of(istore))))
        return it

    def poll_check(self, load_text, cond_bad, name):
        self.nlabel += 1
        lb = f"L_{name}_{self.nlabel}"
        self.slow.append(f"""
        {lb}_slow:
        s_mov_b32 s91, {SPIN_LIMIT}
        {lb}_spin:
        {load_text}
        s_waitcnt vmcnt(0)
        {cond_bad}
        s_nop 1
        s_cbranch_vccz {lb}_back
        s_sub_u32 s91, s91, 1
        s_cmp_lg_u32 s91, 0
        s_cbranch_scc1 {lb}_spin
        s_branch {lb}_back
        """)
        return f"{cond_bad}\n    s_nop 1\n    s_cbranch_vccnz {lb}_slow\n{lb}_back:"

    def prologue(self):
        e = self.e
        t = V_T
        stamp(e, 0)
        e.raw(f"""
        s_cmp_ge_u32 s2, 256
        s_cbranch_scc1 L_end
        s_load_dwordx16 s[{KA}:{KA+15}], s[0:1], 0
        """)
        if opt("icpf", "1") == "1":
            e.raw(f"""
            s_getpc_b64 s[90:91]
            L_pc:
            v_lshlrev_b32 v{t}, 7, v0
            v_min_u32 v{t+1}, L_code_end-L_pc-4, v{t}""")
            e.vmem(f"global_load_dword v255, v{t+1}, s[90:91]", 'IC')
            e.raw(f"v_add_u32 v{t}, 32768, v{t}\nv_min_u32 v{t+1}, L_code_end-L_pc-4, v{t}")
            e.vmem(f"global_load_dword v255, v{t+1}, s[90:91]", 'IC')
        for x in self.setup_first(): e.raw(x)
        stamp(e, 3, True) if opt("pstamp") else None
        e.raw("s_waitcnt lgkmcnt(0)")
        stamp(e, 4, True) if opt("pstamp") else None
        for x in srd(S_X, KA, X_BYTES) + srd(S_W1, KA + 2, W1_BYTES) + srd(S_B1, KA + 4, B1_BYTES) + srd(S_DBG, KA + 8, B2_BYTES): e.raw(x)
        self.wslot = {0: 0, 1: 1, 2: 2, 3: 3, 4: 4}
        def emit_items(items):
            for (tx, k, tag) in items:
                if k == 'm': e.vmem(tx, tag)
                else: e.raw(tx)
        emit_items([(f"s_mov_b32 m0, {BIAS_LDS}", 's', None),
                    (f"buffer_load_dwordx4 v{t+5}, s[{S_B1}:{S_B1+3}], s86 offen lds", 'm', 'BI'),
                    (f"s_mov_b32 m0, {BIAS_LDS+1024}", 's', None),
                    (f"buffer_load_dwordx4 v{t+6}, s[{S_DBG}:{S_DBG+3}], s87 offen lds", 'm', 'BI')])
        emit_items(self.x_items(0) + self.w_items(0))
        stamp(e, 5, True) if opt("pstamp") else None
        for x in srd(S_WS, KA + 14, WS_BYTES) + srd(S_W2, KA + 6, W2_BYTES) + srd(S_OUT, KA + 10, OUT_BYTES): e.raw(x)
        e.raw(f"s_mov_b32 s100, s{KA+12}\ns_mov_b32 s101, s{KA+13}\ns_nop 0")
        for x in self.setup_reads_A(): e.raw(x)
        for x in self.setup_late():
            if x != "@P2": e.raw(x)
        e.raw(f"""
        s_or_b32 s88, s2, s{S_W}
        v_mov_b32 v{t}, {OOB}
        v_mov_b32 v{t+1}, {EP_OFF}
        v_or_b32 v{t+2}, s88, v1
        v_cmp_eq_u32 vcc, 0, v{t+2}
        s_nop 1
        v_cndmask_b32 v{V_NP}, v{t}, v{t+1}, vcc""")
        e.raw(f"""
        s_mul_i32 s84, s{S_S}, 576
        s_sub_u32 s85, s{S_CBA}, s84
        s_sub_u32 s86, s{S_CBB}, s84
        s_add_u32 s85, s85, {BIAS_LDS}
        s_add_u32 s86, s86, {BIAS_LDS}
        v_add_u32 v{t}, s85, v{V_BI}
        v_add_u32 v{t+1}, s86, v{V_BI}
        v_add_u32 v{t+2}, {BIAS_LDS+1024}, v{V_BI}
        """)
        stamp(e, 6, True) if opt("pstamp") else None
        e.wait_vm('BI')
        stamp(e, 7, True) if opt("pstamp") else None
        for ft in range(8): e.ds(f"ds_read_b64 v[{ACC_B+4*ft+2}:{ACC_B+4*ft+3}], v{t} offset:{32*ft}", 'BR')
        for ft in range(10): e.ds(f"ds_read_b64 v[{BIASB+4*ft+2}:{BIASB+4*ft+3}], v{t+1} offset:{32*ft}", 'BR')
        for nt in range(9): e.ds(f"ds_read_b64 a[{AB2+2*nt}:{AB2+2*nt+1}], v{t+2} offset:{32*nt}", 'BR')
        e.raw(f"s_mov_b32 s{S_DBG}, s100\ns_mov_b32 s{S_DBG+1}, s101\ns_mov_b32 s{S_DBG+2}, 256")
        e.wait_lg_all()
        for x in self.bias_cvt(8, ACC_B) + self.bias_cvt(10, BIASB): e.raw(x)
        emit_items(self.x_items(1) + self.w_items(1))
        stamp(e, 1, bool(opt("pstamp")))
        e.wait_vm([('W', 0), ('X', 0)])
        e.raw("s_barrier")
        stamp(e, 2, bool(opt("pstamp")))
        self.pro_rest = [self.x_items(2), self.w_items(2),
                         [(f"buffer_load_dword v{V_P}, v{V_NP}, s[{S_WS}:{S_WS+3}], 0 offen sc1", 'm', 'EP')], self.w_items(3), self.w_items(4)]
        for (tx, tag) in self.frag_reads(0): e.ds(tx, tag)
        for (tx, tag) in self.x_reads(0): e.ds(tx, tag)
    @staticmethod
    def _glued(prev):
        return prev.startswith("s_cmp") or prev.startswith("v_cmp") or prev.startswith("s_nop")

    def build(self):
        e = self.e
        self.prologue()
        if opt("noAst"): e.raw(f"v_mov_b32 v255, {OOB}")
        e.prio_streams = {'dma', 'hld', 'stB'}
        e.force_prio = True
        e.strict = opt('strict', '1') == '1'
        e.ta_slack = float(opt('ta_slack', 1.0))
        if e.strict: e.prio_streams = {'dma', 'hld', 'stA', 'stB', 'poll', 'flag'}
        e.min_sp = iopt('min_sp', 3)
        self.pf_gap = None
        def need(C): return GOS[2 * C - 1] - 1
        CX = CA = float(opt("spA", 3.0)); CB_ = float(opt("spB", 4.0)); C2 = float(opt("sp2", 3.5))
        def wcost(C): return CA if C < 9 else (CB_ if C < 18 else C2)
        pr = self.pro_rest
        self.push_dma(pr[0], 0, need(2), CX); self.push_dma(pr[1], 0, need(2), CA)
        self.push_dma(pr[2], 0, GOS[3], 1.0)
        self.push_dma(pr[3], 0, need(3), CA); self.push_dma(pr[4], 0, need(4), CA)
        nextW = 5
        LOOK = iopt("look", 8)
        MERGE = opt("merge", "1") == "1"
        for si, (kind, k) in enumerate(STEPS):
            if MERGE and si == 70: break
            nf = nfrag(kind); ngap = 2 * nf
            C, ks = si // 2, si % 2
            g0 = e.gap
            assert g0 == GOS[si]
            cur = AW + 40 * (si % 2)
            if (kind, k) == ('B', 0): stamp(e, 3)
            if (kind, k) == ('P', 0): stamp(e, 4)
            if (kind, k) == ('P', 9): stamp(e, 5)
            have_next = si + 1 < len(STEPS)
            reads = []
            if have_next:
                reads = self.frag_reads(si + 1)
                nkind, nk = STEPS[si + 1]
                if nkind == 'A':
                    xr = self.x_reads(nk)
                    reads = reads[:2] + xr[:1] + reads[2:4] + xr[1:] + reads[4:]
            per = [[] for _ in range(ngap)]
            nr = len(reads)
            for i_, r in enumerate(reads):
                per[(i_ * ngap) // nr if nr > ngap else i_].append(r)
            if MERGE and si == 69:
                r71 = self.frag_reads(71)
                per[ngap - 2].append(r71[0]); per[ngap - 1].append(r71[1])
            if MERGE and si == 68: self.push_tail_setup(g0)
            pre0 = []
            if opt("stepstamp"):
                a_, b_ = [int(v) for v in opt("stepstamp").split("_")]
                if a_ <= si <= b_:
                    pre0 = [f"v_writelane_b32 v63, s90, {si - a_}", "s_memtime s[90:91]"]
            if have_next and ks == 1:
                nC = C + 1
                pre0 = ["s_barrier"] + pre0
                if opt("chunkstamp") and not opt("stepstamp"):
                    pre0 = pre0 + [f"v_writelane_b32 v63, s90, {nC-1}", "s_memtime s[90:91]"]
                if nC - 2 >= 0: self.free.append(self.wslot[nC - 2])
                if kind == 'A' and C + 3 < 9:
                    self.push_dma(self.x_items(C + 3), g0 + 1, need(C + 3), CX)
                if kind == 'A' and C >= 6:
                    self.free.append(5 + C % 3)
                nissue = 0
                while self.free and nextW < 36 and nextW <= nC + LOOK:
                    if kind == 'A' and nextW >= 9 and nissue >= iopt("wA", 1): break
                    nissue += 1
                    cand = [s_ for s_ in self.free if (nextW >= 9 or s_ < 5)]
                    if not cand: break
                    early = g0 + 1
                    if nextW >= 18 + iopt("w2_in_window", 0):
                        if self.pf_gap is None: break
                        early = max(early, self.pf_gap + iopt("pf_window", 140))
                    sl = cand[0]; self.free.remove(sl)
                    self.wslot[nextW] = sl
                    nd = need(nextW)
                    if 9 <= nextW < 18 + iopt("w2_in_window", 0):
                        asap = max(g0 + iopt("dmin", 40) + int(6 * wcost(nextW)), getattr(self, "last_asap", 0) + int(6 * wcost(nextW)))
                        nd = min(nd, asap); self.last_asap = nd
                    cost = wcost(nextW)
                    lin0 = iopt("lin0", 25)
                    if nextW >= lin0:
                        lper = iopt("linper", 49)
                        early = max(early, GOS[36] + (nextW - lin0) * lper)
                        pass
                        nd = min(nd, early + lper + iopt("dmin", 40))
                    self.push_dma(self.w_items(nextW), early, max(nd, early + iopt("dmin", 40) + 30), cost)
                    nextW += 1
                    if nextW == 18: self.push_pf2(g0 + 1)
                self.after_barrier_hooks(si, g0)
            self.step_hooks(si, kind, k, g0, ngap)
            def waits_for(sj, gi):
                kj, kk = STEPS[sj]; nfj = nfrag(kj)
                w = []
                f, t = gi // 2, gi % 2
                G = 4 if kj == 'A' else 5
                if t == 0 and f % G == 0:
                    tags = [('WF', sj, min(f + G - 1, nfj - 1))]
                    if f == 0 and kj == 'A': tags.append(('XF', kk))
                    w.append(('lg', tags))
                if gi == 0 and kj == 'P' and SEQ2[kk][0] != 0:
                    w.append(('vm', [('H', kk)]))
                return w
            for f in range(nf):
                for t in range(2):
                    gi = 2 * f + t
                    A = f"a[{cur+4*f}:{cur+4*f+3}]"
                    if kind in 'AB':
                        B = f"a[{AX+8*k+4*t}:{AX+8*k+4*t+3}]"
                        acc = (ACC_A if kind == 'A' else ACC_B) + 8 * f + 4 * t
                        D = f"v[{acc}:{acc+3}]"
                        if k == 0:
                            bq = (ACC_B if kind == 'A' else BIASB) + 4 * f
                            Cc = f"v[{bq}:{bq+3}]"
                        else: Cc = D
                    else:
                        d, i = SEQ2[k]
                        if d == 0:
                            hb = (ACC_A + 16 * i if i < 4 else ACC_B + 16 * (i - 4)) + 4 * t
                            B = f"v[{hb}:{hb+3}]"
                        else:
                            hb = AH + 8 * RING[k] + 4 * t
                            B = f"a[{hb}:{hb+3}]"
                        acc = acc2(f, t)
                        D = f"v[{acc}:{acc+3}]"
                        Cc = "0" if k == 0 else D
                    if si == 0 and gi == 0:
                        e.wait_lg([('WF', 0, 3), ('XF', 0)])
                    post = []
                    if gi + 1 < ngap: post += waits_for(si, gi + 1)
                    elif have_next:
                        post += waits_for(si + 1, 0)
                        if MERGE and si == 69: post.append(('vm', [('H', 35)]))
                        if ks == 0 and si + 2 < len(STEPS):
                            nC = C + 1
                            tags = [('W', nC)]
                            if kind == 'A' and nC < 9: tags.append(('X', nC))
                            tags += self.extra_barrier_tags(si + 1)
                            post.append(('vm', tags))
                    e.mfma_gap(f"v_mfma_f32_16x16x32_bf16 {D}, {A}, {B}, {Cc}", pre=pre0 if gi == 0 else (), dss=per[gi], post=post)
        if MERGE:
            import copy
            assert e.pending() == 0 or all(nm not in ('dma', 'hld') or not q for nm, q in e.streams.items())
            e.flush_streams()
            e.raw(f"s_cmp_eq_u32 s{S_W}, s{S_KQ}\ns_cbranch_scc1 L_owner")
            eo = Emitter()
            eo.vm, eo.vm_gap, eo.vm_done = list(e.vm), list(e.vm_gap), e.vm_done
            eo.lg, eo.lg_done = list(e.lg), e.lg_done
            eo.gap = e.gap
            eo.raw("L_owner:")
            self.final_block(eo, False)
            self.tail_owner(eo)
            self.slow.append(eo.text())
            self.final_block(e, True)
            if opt("chunkstamp"):
                e.raw("s_waitcnt lgkmcnt(0)\nv_writelane_b32 v63, s90, 35\ns_memtime s[90:91]\ns_waitcnt lgkmcnt(0)\nv_writelane_b32 v63, s90, 36")
            stamp(e, 6)
            self.tail_sender()
        else:
            raise SystemExit("only the merged tail is generated")
        e.raw("L_end:\ns_endpgm")
        for s_ in self.slow: e.raw(s_)
        e.raw("L_code_end:")
        print(e.stats, "slots:", self.wslot, file=sys.stderr)
        if opt("vmlog"):
            for (g, tags, n, newly) in e.log:
                y = newly[-1] if newly else None
                summary = {}
                for (t, gg) in newly: summary.setdefault(str(t), []).append(gg)
                print(f"gap {g:5d} wait {tags} vmcnt({n}) youngest {y} dist {g - y[1] if y else 0}  covers " + ", ".join(f"{k}@{v[0]}-{v[-1]}" for k, v in summary.items()), file=sys.stderr)
        return e.text()

    PUB = tuple(x[1] for x in PARTS)
    def extra_barrier_tags(self, si):
        return [('HS', p) for p in range(len(PARTS)) if self.PUB[p] == si]
    def after_barrier_hooks(self, si, g0):
        e = self.e
        if si in self.PUB:
            part = self.PUB.index(si)
            e.push('flag', f"buffer_store_dword v{V_NP}, v{V_FS}, s[{S_WS}:{S_WS+3}], 0 offen offset:{4*part} sc1", 'm', ('FS', part), early=g0 + 2, late=g0 + 2)

    def push_pf2(self, g):
        e = self.e; t = V_T
        for n_, tx in enumerate([f"s_and_b32 s0, s{S_M}, 7", f"s_lshl_b32 s0, s0, 2", f"s_add_u32 s0, s0, s{S_J}", f"s_mul_i32 s0, s0, {36*1152}",
                   f"s_mul_i32 s1, s{S_KQ}, {1152*1152}", f"s_add_u32 s0, s0, s1", f"s_mul_i32 s1, s{S_W}, {81*128}", f"s_add_u32 s0, s0, s1",
                   f"v_lshlrev_b32 v{t}, 7, v1", f"v_mov_b32 v{t+2}, {OOB}", f"v_add_u32 v{t+1}, {64*128}, v{t}",
                   f"v_cmp_gt_u32 vcc, 17, v1\n    s_nop 1\n    v_cndmask_b32 v{t+1}, v{t+2}, v{t+1}, vcc"]):
            e.push('pf', tx, 's', early=g, late=g + 2 + n_)
        burst0 = max(g, GOS[18 + iopt("pf_at", 5)], GOS[18 + iopt("epiA1_late", 6)] + 14)
        slack = max(0, (e.streams['dma'][-1].late if e.streams['dma'] else g) - burst0) + 2
        def rec():
            self.pf_gap = e.gap
            return f"buffer_load_dword v255, v{t}, s[{S_W2}:{S_W2+3}], s0 offen"
        e.push('dma', rec, 'm', 'PF', early=burst0, late=burst0 + slack + 2, cost=10)
        e.push('dma', f"buffer_load_dword v255, v{t+1}, s[{S_W2}:{S_W2+3}], s0 offen", 'm', 'PF', early=burst0, late=burst0 + slack + 8, cost=5)

    def step_hooks(self, si, kind, k, g0, ngap):
        e = self.e
        if (kind, k) == ('A', iopt("ep_at", 4)):
            e.push('nonce', lambda: e.vm_wait_text('EP'), 'w', early=g0, late=g0 + 2)
            for t in [f"v_add_u32 v{V_P}, 1, v{V_P}", f"v_or_b32 v{V_P}, 0x80000000, v{V_P}"]:
                e.push('nonce', t, 'v', early=g0, late=g0 + 4)
            e.push('nonce', f"buffer_store_dword v{V_P}, v{V_NP}, s[{S_WS}:{S_WS+3}], 0 offen sc1", 'm', 'EPW', early=g0, late=g0 + 6)
            e.push('nonce', f"v_subrev_u32 v{V_NP}, {EP_OFF}, v{V_NP}", 'v', early=g0, late=g0 + 8)
            e.push('nonce', f"buffer_store_dword v{V_P}, v{V_NP}, s[{S_DBG}:{S_DBG+3}], 0 offen sc1", 'm', 'NW', early=g0, late=g0 + 10)
        NR = iopt("nr_at", 12); NC = iopt("nc_at", 16)
        ldn = f"buffer_load_dword v{V_P}, v{V_NP}, s[{S_DBG}:{S_DBG+3}], 0 offen sc1"
        if (kind, k) == ('A', NR):
            e.push('nonce', f"v_mov_b32 v{V_NP}, 0", 'v', early=g0, late=g0 + 2)
            e.push('nonce', ldn, 'm', 'NR', early=g0 + 1, late=g0 + 4)
        if (kind, k) == ('A', NC):
            e.push('nonce', lambda: e.vm_wait_text('NR'), 'w', early=g0, late=g0 + 2)
            e.push('nonce', self.poll_check(ldn, f"v_cmp_eq_u32 vcc, 0, v{V_P}", "nonce"), 's', early=g0, late=g0 + 5)
            e.push('nonce', f"v_readfirstlane_b32 s{S_N}, v{V_P}\n    s_nop 3", 'v', early=g0, late=g0 + 8)
            e.push('nonce', f"v_mov_b32 v{V_NP}, s{S_N}", 'v', early=g0, late=g0 + 10)
        SPS = float(opt('spS', 3.5))
        if (kind, k) == ('B', 0):
            st = g0 + 8
            e1 = GOS[18 + iopt("epiA1_late", 6)] + 8; e2 = GOS[18 + iopt("epiA2_late", 11)]
            self.storesA2 = []
            nA1 = iopt("nA1", 4)
            for (frs, a, b) in ((tuple(range(nA1)), st, e1), (tuple(range(nA1, 4)), e1, e2)):
                its = [x for i in frs for t in range(2) for x in self.epi_items(ACC_A, i, i, t)]
                nv = sum(1 for x in its if x[1] == 'v'); n = 0; late = a
                for (tx, kk, tag) in its:
                    if kk == 'v':
                        n += 1; late = a + (n * (b - a)) // nv
                        e.push('epi', tx, kk, tag, early=st, late=late)
                    elif frs[0] == 0:
                        e.push('stA', tx, kk, tag, early=late + 1, late=late + 4, cost=SPS if kk == 'm' else 0)
                    else:
                        self.storesA2.append((tx, kk, tag, late))
        if getattr(self, "storesA2", None) and kind == 'B' and self.pf_gap is not None and k >= iopt("epiA2_late", 11) - 1:
            early = self.pf_gap + iopt("pf_window", 140); sp = iopt("stA2_sp", 10)
            for (tx, kk, tag, late) in self.storesA2:
                early = max(early, late + 1)
                e.push('stA', tx, kk, tag, early=early, late=early + 3, cost=SPS if kk == 'm' else 0)
                if kk == 'm': early += sp
            self.storesA2 = []
        if (kind, k) == ('P', 0):
            prev = g0 + 2
            for (frs, vend, burst) in (((4, 5, 6), iopt("vB1", 80), iopt("bB1", 84)), ((7, 8), iopt("vB2", 150), iopt("bB2", 156))):
                its = [(i, x) for i in frs for t in range(2) for x in self.epi_items(ACC_B, i - 4, i, t)]
                end = g0 + vend
                nv = sum(1 for (_, x) in its if x[1] == 'v'); n = 0; early = g0 + burst
                for (i, (tx, kk, tag)) in its:
                    if kk == 'v':
                        n += 1
                        late = min(prev + (n * (end - prev)) // nv, GOS[36 + OWNB[i]] - 4)
                        e.push('epi', tx, kk, tag, early=g0 + 2, late=late)
                    else:
                        e.push('stB', tx, kk, tag, early=early if kk == 'm' else early - 2, late=early - 30, cost=float(opt("spSB", 4.0)) if kk == 'm' else 0)
                prev = end
        if kind == 'P' or (kind == 'B' and k >= 14):
            LA = iopt("LA", 4)
            q = k if kind == 'P' else k - 18
            c0, c1, c2 = PARTS[0][3], PARTS[1][3], PARTS[2][3]
            FIRST = {9: c0, 10: c0, 11: c0 + 1, 12: c0 + 1, 21: c1, 22: c1, 23: c1 + 1, 30: c2, 31: c2 + 1}
            def issue_at(qn):
                if qn in FIRST: return FIRST[qn]
                return max(qn - LA, PARTS[part_of(SEQ2[qn][1])][3], qn - HD + 1)
            for part, (_, _, pol, chk) in enumerate(PARTS):
                ld = f"buffer_load_dword v{V_P}, v{V_FL}, s[{S_WS}:{S_WS+3}], 0 offen offset:{4*part} sc1"
                if q == pol:
                    e.push('poll', ld, 'm', ('FP', part), early=g0 + 1, late=g0 + 2, cost=1)
                if q == chk:
                    e.push('poll', (lambda part=part: e.vm_wait_text(('FP', part))), 'w', early=g0, late=g0)
                    if not opt("x_nochk"): e.push('poll', self.poll_check(ld, f"v_cmp_ne_u32 vcc, s{S_N}, v{V_P}", f"flag{part}"), 's', early=g0, late=g0 + 1)
            assert LA < HD
            for qn in PEERS:
                if issue_at(qn) != q: continue
                d, i = SEQ2[qn]
                SH = S_HSO if opt("x_hhot") else S_T
                FLH = "" if (opt("x_hhot") or opt("hplain")) else " sc1"
                dst = AH + 8 * RING[qn]
                nd = min(GOS[36 + qn] - 1 - iopt("dminH", 36), g0 + ngap + 2)
                e.push('hld', f"s_add_u32 s{S_T}, s{S_HB+d}, {i*8192}", 's', early=g0 + 3, late=max(g0 + 4, nd - 6))
                for t in range(2):
                    e.push('hld', f"buffer_load_dwordx4 a[{dst+4*t}:{dst+4*t+3}], v{V_HS}, s[{S_WS}:{S_WS+3}], s{SH} offen offset:{t*1024}" + FLH, 'm', ('H', qn), early=g0 + 4, late=max(g0 + 5 + t, nd - 5 + 5 * t), cost=float(opt('spH', 3.0)))

    NG = 12
    BOX = 12 * 1024
    @staticmethod
    def val(v): return acc2((v // 4) // 2, (v // 4) % 2) + v % 4
    QUADS = [V_TA + 4 * i for i in range(4)]

    def push_tail_setup(self, g0):
        e = self.e; t = V_T
        items = lines(f"""
        s_lshl_b32 s84, s{S_M}, 2
        s_add_u32 s84, s84, s{S_J}
        s_lshl_b32 s84, s84, 2
        v_lshlrev_b32 v{t}, 4, v1
        s_add_u32 s85, s84, s{S_W}
        s_lshl_b32 s85, s85, 2
        s_add_u32 s85, s85, s{S_KQ}
        s_mul_i32 s85, s85, {self.BOX}
        s_add_u32 s85, s85, {P_OFF}
        s_add_u32 s86, s85, 4096
        s_add_u32 s87, s85, 8192""") + [f"v_mov_b32 v{q+3}, s{S_N}" for q in self.QUADS]
        for n, x in enumerate(items):
            e.push('misc', x, 's', early=g0 + 1, late=g0 + 4 + 2 * n)

    def granule_items(self, g):
        t = V_T; q = self.QUADS[g % 4]
        it = [(f"v_cvt_pk_bf16_f32 v{q+w_}, v{self.val(6*g+2*w_)}, v{self.val(6*g+2*w_+1)}", 'v') for w_ in range(3)]
        it.append((f"buffer_store_dwordx4 v[{q}:{q+3}], v{t}, s[{S_WS}:{S_WS+3}], s{85 + g // 4} offen offset:{(g%4)*1024} sc1", 'm'))
        return it

    def final_block(self, e, sender):
        e.comment("---- final block: q = 34, 35")
        P, Q = AW, AW + 40
        r71 = self.frag_reads(71)
        g0 = e.gap
        e.streams = {}; e.prio_streams = set(); e.strict = False; e.force_prio = False
        self.sent = set()
        if sender:
            for g in range(self.NG):
                k1 = (6 * g + 5) // 4
                start = 4 * (k1 // 2) + 2 + (k1 % 2) + 4
                if start > 35: continue
                self.sent.add(g)
                for n, (tx, kk) in enumerate(self.granule_items(g)):
                    e.push('snd', tx, kk, ('PS', g), early=g0 + start, late=g0 + start + 2 + n)
        for nt in range(9):
            for sub in range(4):
                q = 34 + sub // 2; tt = sub % 2
                A = (P if sub < 2 else Q) + 4 * nt
                hb = AH + 8 * RING[q] + 4 * tt
                acc = acc2(nt, tt)
                dss = []
                if sub < 2 and nt + 1 < 9: dss = [r71[2 * (nt + 1) + sub]]
                post = []
                if sub == 1: post.append(('lg', [('WF', 71, nt)]))
                if sub == 3 and nt + 1 < 9: post.append(('lg', [('WF', 70, nt + 1)]))
                e.mfma_gap(f"v_mfma_f32_16x16x32_bf16 v[{acc}:{acc+3}], a[{A}:{A+3}], a[{hb}:{hb+3}], v[{acc}:{acc+3}]", dss=dss, post=post)
        e.flush_streams()

    def tail_owner(self, e):
        t = V_T
        V_PA = t + 6
        OWN_LDS = self.wslot[32] * SLOT
        e.raw(f"v_add_u32 v{V_PA}, {OWN_LDS}, v{t}")
        for nt in range(9):
            e.raw(f"""
            v_accvgpr_read_b32 v{t+7}, a{AB2+2*nt}
            v_accvgpr_read_b32 v{t+8}, a{AB2+2*nt+1}
            v_lshlrev_b32 v{V_FL}, 16, v{t+7}
            v_and_b32 v{t+7}, 0xffff0000, v{t+7}
            v_lshlrev_b32 v{V_FS}, 16, v{t+8}
            v_and_b32 v{t+8}, 0xffff0000, v{t+8}""")
            if nt == 8: e.raw("s_nop 3")
            for tt in range(2):
                r = acc2(nt, tt)
                e.raw(f"v_add_f32 v{r}, v{r}, v{V_FL}\nv_add_f32 v{r+1}, v{r+1}, v{t+7}\nv_add_f32 v{r+2}, v{r+2}, v{V_FS}\nv_add_f32 v{r+3}, v{r+3}, v{t+8}")
                e.raw(f"ds_write_b128 v{V_PA}, v[{r}:{r+3}] offset:{(2*nt+tt)*1024}")
        e.raw("s_waitcnt lgkmcnt(0)\ns_barrier\ns_branch L_end")

    def tail_sender(self):
        e = self.e
        t = V_T
        NG, BOX = self.NG, self.BOX
        V_BAD, V_PA, V_O = t + 5, t + 6, t + 1
        OWN_LDS = self.wslot[32] * SLOT
        e.raw("s_nop 7")
        for g in range(NG):
            if g in self.sent: continue
            for (tx, kk) in self.granule_items(g): e.raw(tx)
        e.raw(f"""
        s_sub_u32 s88, s{S_W}, s{S_KQ}
        s_sub_u32 s88, s88, 1
        s_and_b32 s88, s88, 3
        s_add_u32 s85, s84, s{S_KQ}
        s_lshl_b32 s85, s85, 2
        s_lshl_b32 s87, s88, 12
        s_add_u32 s87, s87, {P_OFF}
        """)
        for d in range(1, 4):
            e.raw(f"""
            s_add_u32 s86, s{S_KQ}, {d}
            s_and_b32 s86, s86, 3
            s_add_u32 s86, s86, s85
            s_mul_i32 s86, s86, {BOX}
            s_add_u32 s{S_TW+d}, s86, s87""")
        e.raw(f"""
        v_min_u32 v{t+7}, 2, v1
        v_mov_b32 v{t+8}, s{S_TW+1}
        v_mov_b32 v{V_BAD}, s{S_TW+2}
        v_cmp_eq_u32 vcc, 1, v{t+7}
        s_mul_i32 s87, s88, 6144
        s_add_u32 s87, s87, {OWN_LDS}
        v_cndmask_b32 v{t+8}, v{t+8}, v{V_BAD}, vcc
        v_mov_b32 v{V_BAD}, s{S_TW+3}
        v_cmp_eq_u32 vcc, 2, v{t+7}
        s_lshl_b32 s86, s{S_M}, 7
        s_lshl_b32 s85, s{S_KQ}, 5
        v_cndmask_b32 v{t+8}, v{t+8}, v{V_BAD}, vcc
        v_add_u32 v{V_PA}, {3*1024+1020}, v{t+8}
        s_add_u32 s86, s86, s85
        s_mul_i32 s86, s86, 1152
        s_mul_i32 s85, s{S_J}, 288
        s_add_u32 s86, s86, s85
        s_mul_i32 s85, s88, 96
        s_add_u32 s86, s86, s85
        v_and_b32 v{V_O}, 15, v1
        v_mul_u32_u24 v{V_O}, 1152, v{V_O}
        v_add_u32 v{V_O}, v{V_O}, v{V_BI}
        v_add_u32 v{V_O+1}, {16*1152}, v{V_O}
        v_add_u32 v{V_FL}, s87, v{t}
        s_mov_b32 s89, 0xffff0000
        """)
        POLL = f"buffer_load_dword v{V_P}, v{V_PA}, s[{S_WS}:{S_WS+3}], 0 offen sc1"
        OPT_ = opt("optim", "0") == "1"
        if not OPT_: e.raw(POLL)
        e.raw("s_barrier")
        OWN = [ACC_B + 4 * i for i in range(6)]
        zones = [ACC_B + 24 + 4 * i for i in range(12)]
        for kl in range(6): e.raw(f"ds_read_b128 v[{OWN[kl]}:{OWN[kl]+3}], v{V_FL} offset:{kl*1024}")
        zone = lambda g, d: zones[3 * g + d]
        S = [36, 37, 38, 39]; U = [40, 41, 42]; X = [43, 44]
        e.raw(f"s_mov_b32 s91, {SPIN_LIMIT}\ns_mov_b32 s88, 64")
        if OPT_:
            e.raw("s_waitcnt vmcnt(0)\ns_branch L_tw_go")
        e.raw(f"L_redo:")
        e.raw(f"""
        L_tw_chk:
        s_waitcnt vmcnt(0)
        v_cmp_ne_u32 vcc, s{S_N}, v{V_P}
        s_nop 3
        s_cmp_eq_u64 vcc, 0
        s_cbranch_scc1 L_tw_go
        s_sub_u32 s91, s91, 1
        s_cmp_le_i32 s91, 0
        s_cbranch_scc1 L_tw_go
        {POLL}
        s_branch L_tw_chk
        L_tw_go:""")
        stamp(e, 7) if opt("stamp7", "poll") == "poll" and not opt("pstamp") else None
        e.raw(f"v_mov_b32 v{V_BAD}, 0")
        vm = []
        for g in range(4):
            for d in range(3):
                r = zone(g, d)
                e.raw(f"buffer_load_dwordx4 v[{r}:{r+3}], v{t}, s[{S_WS}:{S_WS+3}], s{S_TW+1+d} offen offset:{g*1024} sc1")
                vm.append(('L', g))
        e.raw("s_waitcnt lgkmcnt(0)")
        done_g = set()
        def need_granule(g):
            if g in done_g: return
            done_g.add(g)
            last = max(i for i, v in enumerate(vm) if v == ('L', g))
            e.raw(f"s_waitcnt vmcnt({min(len(vm) - 1 - last, 63)})")
            z = [zone(g, d) + 3 for d in range(3)]
            e.raw(f"""
            v_xor_b32 v{X[0]}, s{S_N}, v{z[0]}
            v_xor_b32 v{X[1]}, s{S_N}, v{z[1]}
            v_or3_b32 v{V_BAD}, v{X[0]}, v{X[1]}, v{V_BAD}
            v_xor_b32 v{X[0]}, s{S_N}, v{z[2]}
            v_or_b32 v{V_BAD}, v{X[0]}, v{V_BAD}""")
        if opt("earlychk", "0") == "1":
            for g in range(4): need_granule(g)
            e.raw(f"""
            v_cmp_ne_u32 vcc, 0, v{V_BAD}
            s_nop 3
            s_cmp_eq_u64 vcc, 0
            s_cbranch_scc1 L_tags_ok
            s_sub_u32 s88, s88, 1
            s_cmp_eq_u32 s88, 0
            s_cbranch_scc1 L_tags_ok
            {POLL}
            s_branch L_redo
            L_tags_ok:""")
        for kl in range(6):
            ntl, tt = kl // 2, kl % 2
            for v in range(4 * kl, 4 * kl + 4): need_granule(v // 6)
            for x in range(4):
                v = 4 * kl + x; g, pos = v // 6, v % 6
                for d in range(3):
                    src = zone(g, d) + pos // 2
                    e.raw(f"v_lshlrev_b32 v{U[d]}, 16, v{src}" if pos % 2 == 0 else f"v_and_b32 v{U[d]}, s89, v{src}")
                e.raw(f"v_add_f32 v{S[x]}, v{OWN[kl]+x}, v{U[0]}\nv_add_f32 v{U[1]}, v{U[1]}, v{U[2]}\nv_add_f32 v{S[x]}, v{S[x]}, v{U[1]}")
            o = (46 if kl % 2 == 0 else 2)
            e.raw(f"v_cvt_pk_bf16_f32 v{o}, v{S[0]}, v{S[1]}\nv_cvt_pk_bf16_f32 v{o+1}, v{S[2]}, v{S[3]}")
            e.raw(f"buffer_store_dwordx2 v[{o}:{o+1}], v{V_O+tt}, s[{S_OUT}:{S_OUT+3}], s86 offen offset:{32*ntl}" + (" sc1" if opt("outsc1") else ""))
            vm.append(('S', kl))
        if opt("earlychk", "0") != "1":
            e.raw(f"""
            v_cmp_ne_u32 vcc, 0, v{V_BAD}
            s_nop 3
            s_cmp_eq_u64 vcc, 0
            s_cbranch_scc1 L_tdone
            s_sub_u32 s88, s88, 1
            s_cmp_eq_u32 s88, 0
            s_cbranch_scc1 L_tdone
            s_waitcnt vmcnt(0)
            {POLL}
            s_branch L_redo
            L_tdone:
            """)
        if STAMP:
            e.raw(f"s_sub_u32 s85, s{S_W}, s{S_KQ}\ns_and_b32 s85, s85, 3\ns_cmp_eq_u32 s85, 1\ns_cbranch_scc0 L_end")
            e.raw("s_waitcnt vmcnt(0)")
            if opt("stamp7") == "end" and not opt("pstamp"): stamp(e, 7)
            e.raw(f"""
            s_lshl_b32 s84, s2, 5
            s_add_u32 s84, s84, {STAMP_OFF}
            v_lshlrev_b32 v{t+1}, 2, v1
            v_mov_b32 v{t+2}, {OOB}
            v_cmp_gt_u32 vcc, 8, v1
            s_nop 1
            v_cndmask_b32 v{t+1}, v{t+2}, v{t+1}, vcc
            buffer_store_dword v{V_ST}, v{t+1}, s[{S_WS}:{S_WS+3}], s84 offen sc1""")
            if opt("chunkstamp") or opt("both"):
                e.raw(f"s_lshl_b32 s84, s2, 8\ns_add_u32 s84, s84, {STAMP_OFF + 65536}\nv_lshlrev_b32 v{t+1}, 2, v1\nbuffer_store_dword v63, v{t+1}, s[{S_WS}:{S_WS+3}], s84 offen sc1")
            e.raw("s_waitcnt vmcnt(0)")

def kd(name, vgpr, accum, sgpr=102):
    return f""".section .rodata,"a"
.p2align 6
.amdhsa_kernel {name}
  .amdhsa_next_free_vgpr {vgpr}
  .amdhsa_next_free_sgpr {sgpr}
  .amdhsa_accum_offset {accum}
  .amdhsa_group_segment_fixed_size 0
  .amdhsa_kernarg_size 64
  .amdhsa_user_sgpr_count 2
  .amdhsa_user_sgpr_kernarg_segment_ptr 1
  .amdhsa_system_sgpr_workgroup_id_x 1
.end_amdhsa_kernel
"""

def gen_amp(name, a, b, amp, wg):
    return f""".globl {name}
.p2align 8
.type {name},@function
{name}:
    s_cmp_ge_u32 s2, 1
    s_cbranch_scc1 L_{name}_end
    s_load_dwordx2 s[4:5], s[0:1], 56
    s_waitcnt lgkmcnt(0)
    s_mov_b32 s8, s4
    s_mov_b32 s9, s5
    s_mov_b32 s10, {WS_BYTES}
    s_mov_b32 s11, 0x20000
    v_mov_b32 v1, {STAMP_OFF + 32 * wg}
    buffer_load_dword v2, v1, s[8:11], 0 offen offset:{4*a} sc1
    buffer_load_dword v3, v1, s[8:11], 0 offen offset:{4*b} sc1
    s_waitcnt vmcnt(0)
    v_sub_u32 v2, v3, v2
    s_nop 1
    v_readfirstlane_b32 s12, v2
    s_nop 3
    s_min_u32 s12, s12, 20000
    s_mul_i32 s12, s12, {amp}
    s_memrealtime s[14:15]
    s_waitcnt lgkmcnt(0)
    s_mov_b32 s13, s14
L_{name}_spin:
    s_memrealtime s[14:15]
    s_waitcnt lgkmcnt(0)
    s_sub_u32 s16, s14, s13
    s_cmp_lt_u32 s16, s12
    s_cbranch_scc1 L_{name}_spin
L_{name}_end:
    s_endpgm
""" + kd(name, 8, 8, 32) + ".text\n"

def main(path):
    g = Gen()
    body = g.build()
    launch = f"; @launch grid=(256,1,1) block=(256,1,1) lds={LDS_BYTES}"
    if opt("amp"):
        launch = f"; @launch kernel={KNAME} grid=(256,1,1) block=(256,1,1) lds={LDS_BYTES}\n; @launch kernel=mlp_amp_kernel grid=(1,1,1) block=(64,1,1) lds=0"
    txt = f"""; Fused MLP  out = relu(x@w1+b1)^2 @ w2 + b2   (one workgroup per CU, split-K over 4, see generator notes)
{launch}
.amdgcn_target "amdgcn-amd-amdhsa--gfx950"
.text
.globl {KNAME}
.p2align 8
.type {KNAME},@function
{KNAME}:
""" + body + kd(KNAME, 512, 256)
    if opt("amp"):
        a, b = [int(v) for v in opt("amp").split("_")]
        txt += ".text\n" + gen_amp("mlp_amp_kernel", a, b, iopt("ampx", 20), iopt("ampwg", 37))
    open(path, "w").write(txt)

if __name__ == "__main__":
    main(sys.argv[1] if len(sys.argv) > 1 else "f4.s")
```

```python
import sys, os
from emit import Emitter

OPT = dict(kv.split("=") if "=" in kv else (kv, 1) for kv in os.environ.get("GOPT", "").split(",") if kv)
def opt(k, d=None): return OPT.get(k, d)
def iopt(k, d): return int(OPT.get(k, d))

KNAME = "standalone__dense_activation_squared_relu__prompt_kernel"
X_BYTES, W1_BYTES, B1_BYTES, W2_BYTES, B2_BYTES, OUT_BYTES = 2359296, 5308416, 9216, 5308416, 1152, 2359296
WS_BYTES = 268435456
H_OFF = 0
P_OFF = 20 << 20
FL_OFF = 40 << 20
EP_OFF = 41 << 20
STAMP_OFF = 128 << 20
OOB = 0x40000000
SLOT = 20480
NSLOT = 8
LDS_BYTES = NSLOT * SLOT
BIAS_LDS = 4 * SLOT + 16384
SPIN_LIMIT = 1 << 16
TAGMASK = 0xFFF

S_X, S_W1, S_B1, S_WS, S_W2, S_OUT = 4, 8, 12, 16, 20, 24
S_W, S_M, S_S, S_PAR, S_KQ, S_J = 28, 29, 30, 31, 32, 33
S_CBA, S_CBB, S_WSO, S_MW, S_MX = 34, 35, 36, 38, 39
S_HSO, S_T, S_T2, S_N = 40, 41, 42, 43
S_TW, S_TX = 44, 53
S_SO2 = 62
S_HB = 80
S_DBG = 92
KA = 64
V_WA, V_WB, V_X, V_W2 = 2, 6, 11, 15
V_TA, V_TB, V_T2, V_XR = 20, 36, 42, 45
V_HS, V_BI, V_FL, V_FS, V_P, V_NP = 47, 48, 49, 50, 51, 52
V_T = 53
V_ST = 62
ACC_A, ACC_B, BIASB = 64, 128, 208
AX, AW, AH, AB2 = 0, 144, 0, 224
HD = iopt("HD", 8)
STAMP = bool(opt("stamp"))
NT1 = " nt" if opt("ntw1", "0") == "1" else ""
NTX = " nt" if opt("ntx", "0") == "1" else ""

def acc2(nt, t):
    return (BIASB + 8 * nt + 4 * t) if nt < 5 else (ACC_A + 16 * (nt - 5) + 8 + 4 * t)
def srd(dst, ptr, nbytes):
    return [f"s_mov_b32 s{dst}, s{ptr}", f"s_mov_b32 s{dst+1}, s{ptr+1}", f"s_mov_b32 s{dst+2}, {nbytes}", f"s_mov_b32 s{dst+3}, 0x20000"]
def lines(s): return [x.strip() for x in s.strip().split("\n") if x.strip()]
def stamp(e, idx, pro=False):
    if not STAMP or (opt("chunkstamp") and idx != 0): return
    if opt("pstamp") and (pro != (idx >= 3)) and idx not in (0,):
        if not (pro and idx < 3): return
    ins = "s_memtime" if opt("cyc") else "s_memrealtime"
    e.raw(f"{ins} s[90:91]\ns_waitcnt lgkmcnt(0)\nv_writelane_b32 v{V_ST}, s90, {idx}")
    if opt("both"):
        e.raw(f"s_memtime s[90:91]\ns_waitcnt lgkmcnt(0)\nv_writelane_b32 v63, s90, {idx}")

def ksteps2():
    grp = lambda frs: [(d, i) for d in (1, 2, 3) for i in frs]
    seq = [(0, i) for i in range(9)] + grp((0, 1, 2, 3)) + grp((4, 5, 6)) + grp((7, 8))
    assert len(seq) == 36
    return seq
SEQ2 = ksteps2()
PEERS = [q for q, (d, i) in enumerate(SEQ2) if d != 0]
RING = {q: n % HD for n, q in enumerate(PEERS)}
PARTS = [((0, 1, 2, 3), iopt("pub0", 33), iopt("pol0", 0), iopt("chk0", 3)),
         ((4, 5, 6), iopt("pub1", 47), iopt("pol1", 15), iopt("chk1", 17)),
         ((7, 8), iopt("pub2", 49), iopt("pol2", 22), iopt("chk2", 24))]
def part_of(i): return [p for p, x in enumerate(PARTS) if i in x[0]][0]
OWNB = {SEQ2[q][1]: q for q in range(36) if SEQ2[q][0] == 0 and SEQ2[q][1] >= 4}
STEPS = [('A', k) for k in range(18)] + [('B', k) for k in range(18)] + [('P', q) for q in range(36)]
def nfrag(kind): return {'A': 8, 'B': 10, 'P': 9}[kind]
GOS = []
_g = 0
for (_k, _) in STEPS:
    GOS.append(_g); _g += 2 * nfrag(_k)
GOS.append(_g)

class Gen:
    def __init__(self):
        self.e = Emitter()
        self.wslot = {}
        self.free = []
        self.slow = []
        self.nlabel = 0

    def setup_first(self):
        t = V_T
        L = lines(f"""
        s_and_b32 s84, s2, 7
        s_lshr_b32 s85, s2, 3
        v_lshrrev_b32 v{t}, 6, v0
        v_and_b32 v1, 63, v0
        s_and_b32 s{S_KQ}, s84, 3
        v_readfirstlane_b32 s{S_W}, v{t}
        s_lshr_b32 s86, s84, 2
        s_lshr_b32 s87, s85, 2
        s_and_b32 s{S_J}, s85, 3
        s_lshl_b32 s86, s86, 3
        s_add_u32 s{S_M}, s86, s87
        s_lshl_b32 s{S_S}, s{S_KQ}, 2
        s_add_u32 s{S_S}, s{S_S}, s{S_J}
        s_and_b32 s{S_PAR}, s{S_J}, 1
        """)
        rot = opt("rot", "jm")
        if rot == "0": L += ["s_mov_b32 s84, 0"]
        elif rot == "j": L += lines(f"s_mul_i32 s84, s{S_J}, 9\ns_lshr_b32 s84, s84, 2")
        elif rot == "jm": L += lines(f"s_lshl_b32 s84, s{S_J}, 1\ns_add_u32 s84, s84, s87\ns_cmp_ge_u32 s84, 9\ns_cselect_b32 s85, 9, 0\ns_sub_u32 s84, s84, s85")
        elif rot == "jm2": L += lines(f"s_lshl_b32 s84, s{S_J}, 1\ns_and_b32 s85, s87, 1\ns_mul_i32 s85, s85, 5\ns_add_u32 s84, s84, s85\ns_cmp_ge_u32 s84, 9\ns_cselect_b32 s85, 9, 0\ns_sub_u32 s84, s84, s85")
        L += [f"s_mov_b32 s88, s84", f"s_mul_i32 s89, s{S_M}, 147456", f"s_mul_i32 s{S_TW}, s84, 589824",
              "s_lshl_b32 s86, s84, 7", f"s_add_u32 s{S_TX}, s89, s86"]
        L += lines(f"""
        s_mul_i32 s{S_CBA}, s{S_S}, 576
        s_mul_i32 s{S_T}, s{S_PAR}, 320
        s_add_u32 s{S_CBB}, s{S_CBA}, 256
        s_add_u32 s{S_CBA}, s{S_CBA}, s{S_T}
        s_lshl_b32 s{S_T}, s{S_PAR}, 8
        s_sub_u32 s{S_CBB}, s{S_CBB}, s{S_T}
        s_lshl_b32 s{S_MX}, s{S_W}, 12
        s_mul_i32 s{S_MW}, s{S_W}, 5120
        s_mul_i32 s{S_T}, s{S_W}, {32*1152}
        v_lshrrev_b32 v{t}, 3, v1
        v_lshrrev_b32 v{t+1}, 4, v1
        v_and_b32 v{t+2}, 7, v1
        v_mul_u32_u24 v{t}, 1152, v{t}
        v_add_u32 v{t}, s{S_T}, v{t}
        """)
        for q in range(4):
            L += lines(f"""
            v_add_u32 v{t+3}, {4*q}, v{t+1}
            v_and_b32 v{t+3}, 7, v{t+3}
            v_xor_b32 v{t+3}, v{t+2}, v{t+3}
            v_lshl_add_u32 v{t+3}, v{t+3}, 4, v{t}
            v_add_u32 v{V_X+q}, {q*(8*1152-1024)}, v{t+3}""")
        L += lines(f"""
        s_mul_i32 s{S_T}, s{S_W}, {16*9216}
        v_and_b32 v{t+2}, 15, v1
        v_mul_u32_u24 v{t}, 9216, v{t+1}
        v_add_u32 v{t}, s{S_T}, v{t}
        v_lshlrev_b32 v{t+3}, 1, v{t+1}
        v_xor_b32 v{t+3}, v{t+2}, v{t+3}
        v_xor_b32 v{t+4}, 8, v{t+3}
        v_lshl_add_u32 v{V_WA}, v{t+3}, 4, v{t}
        v_lshl_add_u32 v{t+4}, v{t+4}, 4, v{t}
        v_add_u32 v{V_WA+1}, {4*9216-1024}, v{V_WA}
        v_add_u32 v{V_WA+2}, {8*9216-2048}, v{t+4}
        v_add_u32 v{V_WA+3}, {12*9216-3072}, v{t+4}
        v_lshlrev_b32 v{V_BI}, 3, v{t+1}
        """)
        L += lines(f"""
        v_lshlrev_b32 v{t+4}, 4, v1
        v_mov_b32 v{t+3}, {OOB}
        v_cmp_gt_u32 vcc, 36, v1
        s_mul_i32 s86, s{S_S}, 576
        s_mul_i32 s87, s{S_J}, 288
        v_cndmask_b32 v{t+5}, v{t+3}, v{t+4}, vcc
        v_cmp_gt_u32 vcc, 18, v1
        s_nop 1
        v_cndmask_b32 v{t+6}, v{t+3}, v{t+4}, vcc
        """)
        return L

    def setup_tables(self):
        L = []
        for c in range(1, 9):
            L += ["s_add_u32 s88, s88, 1", "s_cmp_eq_u32 s88, 9", "s_cselect_b32 s88, 0, s88",
                  f"s_mul_i32 s{S_TW+c}, s88, 589824", "s_lshl_b32 s84, s88, 7", f"s_add_u32 s{S_TX+c}, s89, s84"]
        return L
    def setup_reads_A(self):
        t = V_T
        L = lines(f"""
        v_lshrrev_b32 v{t}, 4, v1
        v_and_b32 v{t+1}, 1, v{t}
        v_lshrrev_b32 v{t+2}, 1, v{t}
        v_and_b32 v{t+3}, 15, v1
        v_lshrrev_b32 v{t+4}, 2, v{t+3}
        v_and_b32 v{t+3}, 3, v{t+3}
        v_lshl_add_u32 v{V_TB+4}, v{t+1}, 3, v{t+4}
        v_lshlrev_b32 v{V_TB+5}, 8, v{V_TB+4}
        v_lshl_add_u32 v{V_TB+5}, v{t+2}, 12, v{V_TB+5}
        v_lshl_add_u32 v{V_TB+5}, v{t+3}, 3, v{V_TB+5}
        v_lshl_add_u32 v{V_TA}, v{t+1}, 2, v{t+4}
        v_lshl_add_u32 v{V_TB+5}, v{V_TA}, 5, v{V_TB+5}
        """)
        for ft in range(8): L.append(f"v_xor_b32 v{V_TA+ft}, {ft*32}, v{V_TB+5}")
        for ft in range(8): L.append(f"v_add_u32 v{V_TA+8+ft}, {3*SLOT}, v{V_TA+ft}")
        L += lines(f"""
        v_and_b32 v{t}, 15, v1
        v_lshrrev_b32 v{t+1}, 4, v1
        v_lshrrev_b32 v{t+2}, 1, v{t}
        v_xor_b32 v{t+1}, v{t+1}, v{t+2}
        v_lshlrev_b32 v{t+1}, 4, v{t+1}
        v_lshl_add_u32 v{t+1}, v{t}, 7, v{t+1}
        v_add_u32 v{t+1}, {5*SLOT}, v{t+1}
        v_add_u32 v{V_XR}, s{S_MX}, v{t+1}
        v_xor_b32 v{t+1}, 64, v{t+1}
        v_add_u32 v{V_XR+1}, s{S_MX}, v{t+1}
        """)
        return L

    def setup_late(self):
        t = V_T + 3
        L = lines(f"s_mul_i32 s84, s{S_W}, {16*9216}")
        for q in range(5):
            L += lines(f"""
            v_add_u32 v{t}, {64*q}, v1
            v_mul_u32_u24 v{t+1}, 205, v{t}
            v_lshrrev_b32 v{t+1}, 12, v{t+1}
            v_mul_u32_u24 v{t+2}, 20, v{t+1}
            v_sub_u32 v{t+2}, v{t}, v{t+2}
            v_lshrrev_b32 v{t+3}, 2, v{t+1}
            v_and_b32 v{t+3}, 2, v{t+3}
            v_xor_b32 v{t+2}, v{t+2}, v{t+3}
            v_mul_u32_u24 v{t+3}, 9216, v{t+1}
            v_lshl_add_u32 v{t+3}, v{t+2}, 4, v{t+3}
            v_add_u32 v{V_WB+q}, s84, v{t+3}""")
            if q & 3: L.append(f"v_subrev_u32 v{V_WB+q}, {(q&3)*1024}, v{V_WB+q}")
        L += lines(f"""
        s_lshl_b32 s84, s{S_W}, 11
        s_lshl_b32 s85, s{S_M}, 4
        s_add_u32 s85, s85, s{S_S}
        s_mul_i32 s{S_HSO}, s85, 73728
        v_lshl_add_u32 v{V_HS}, v1, 4, s84
        s_lshl_b32 s85, s85, 7
        s_add_u32 s85, s85, {FL_OFF}
        v_mov_b32 v{t}, s85
        v_mov_b32 v{t+1}, {OOB}""")
        L.append(f"v_cmp_eq_u32 vcc, 0, v1\n    s_nop 1\n    v_cndmask_b32 v{V_FS}, v{t+1}, v{t}, vcc")
        L += lines(f"""
        v_lshrrev_b32 v{t}, 4, v1
        v_and_b32 v{t+1}, 1, v{t}
        v_lshrrev_b32 v{t+2}, 1, v{t}
        v_and_b32 v{t+3}, 15, v1
        v_lshrrev_b32 v{t+4}, 2, v{t+3}
        v_and_b32 v{t+3}, 3, v{t+3}
        v_lshl_add_u32 v{V_TB+4}, v{t+1}, 3, v{t+4}
        v_mul_u32_u24 v{V_TB+4}, 320, v{V_TB+4}
        v_mul_u32_u24 v{V_TB+5}, 5120, v{t+2}
        v_add_u32 v{V_TB+4}, v{V_TB+4}, v{V_TB+5}
        v_lshl_add_u32 v{V_TB+4}, v{t+3}, 3, v{V_TB+4}
        v_lshlrev_b32 v{t+1}, 5, v{t+1}
        v_add_u32 v{V_TB}, v{V_TB+4}, v{t+1}
        v_sub_u32 v{V_TB+1}, v{V_TB+4}, v{t+1}
        v_add_u32 v{V_TB+2}, {3*SLOT}, v{V_TB}
        v_add_u32 v{V_TB+3}, {3*SLOT}, v{V_TB+1}
        v_add_u32 v{V_TB+4}, {6*SLOT}, v{V_TB}
        v_add_u32 v{V_TB+5}, {6*SLOT}, v{V_TB+1}
        v_lshl_add_u32 v{t+4}, v{t}, 2, v{t+4}
        v_mul_u32_u24 v{t+4}, 288, v{t+4}
        v_lshl_add_u32 v{V_T2}, v{t+3}, 3, v{t+4}
        v_add_u32 v{V_T2+1}, {3*SLOT}, v{V_T2}
        v_add_u32 v{V_T2+2}, {6*SLOT}, v{V_T2}""")
        L.append("@P2")
        L += lines(f"""
        s_lshl_b32 s85, s{S_M}, 2
        s_add_u32 s85, s85, s{S_KQ}
        s_lshl_b32 s85, s85, 9
        s_add_u32 s85, s85, {FL_OFF}
        v_and_b32 v{t}, 3, v1
        v_min_u32 v{t}, 2, v{t}
        v_add_u32 v{t}, 1, v{t}
        v_add_u32 v{t}, s{S_J}, v{t}
        v_and_b32 v{t}, 3, v{t}
        v_lshlrev_b32 v{t}, 7, v{t}
        v_add_u32 v{V_FL}, s85, v{t}
        s_and_b32 s84, s{S_W}, 1
        s_mul_i32 s84, s84, {16*1152}
        """)
        for q in range(5):
            L += lines(f"""
            v_add_u32 v{t}, {64*q}, v1
            v_mul_u32_u24 v{t+1}, 57, v{t}
            v_lshrrev_b32 v{t+1}, 10, v{t+1}
            v_mul_u32_u24 v{t+2}, 18, v{t+1}
            v_sub_u32 v{t+2}, v{t}, v{t+2}
            v_mul_u32_u24 v{t+3}, 1152, v{t+1}
            v_lshl_add_u32 v{t+3}, v{t+2}, 4, v{t+3}
            v_add_u32 v{V_W2+q}, s84, v{t+3}""")
            if q & 3: L.append(f"v_subrev_u32 v{V_W2+q}, {(q&3)*1024}, v{V_W2+q}")
        L.append(f"v_mov_b32 v{t}, {OOB}")
        L.append(f"v_cmp_gt_u32 vcc, 32, v1\n    s_nop 1\n    v_cndmask_b32 v{V_W2+4}, v{t}, v{V_W2+4}, vcc")
        L += lines(f"""
        s_mul_i32 s0, s{S_PAR}, {160*1152}
        s_sub_u32 s1, {160*1152}, s0
        s_mul_i32 s3, s{S_PAR}, {-128*1152}
        s_sub_u32 s37, {-128*1152}, s3
        s_mul_i32 s88, s{S_J}, 288
        """)
        for d in range(4):
            L += lines(f"""
            s_add_u32 s{84+d}, s{S_J}, {d}
            s_and_b32 s{84+d}, s{84+d}, 3
            s_lshl_b32 s89, s{S_KQ}, 2
            s_add_u32 s{84+d}, s{84+d}, s89
            s_lshl_b32 s89, s{S_M}, 4
            s_add_u32 s89, s89, s{84+d}
            s_mul_i32 s{S_HB+d}, s89, 73728
            s_mul_i32 s{84+d}, s{84+d}, {288*1152}
            s_add_u32 s{84+d}, s{84+d}, s88""")
        for c in range(18):
            (d0, i0), (d1, i1) = SEQ2[2 * c], SEQ2[2 * c + 1]
            def corr(d, i): return (0 if d % 2 == 0 else 1) if i < 4 else (3 if d % 2 == 0 else 37)
            L += lines(f"""
            s_add_u32 s88, s{84+d0}, s{corr(d0,i0)}
            s_add_u32 s88, s88, {32*i0*1152}
            s_add_u32 s89, s{84+d1}, s{corr(d1,i1)}
            s_add_u32 s89, s89, {32*i1*1152}""")
            L.append(f"s_cmp_lt_u32 s{S_W}, 2\n    s_cselect_b32 s{S_SO2+c}, s88, s89")
        return L

    def pf1_setup(self):
        t = V_T
        return lines(f"""
        s_and_b32 s84, s{S_M}, 7
        s_lshl_b32 s84, s84, 2
        s_add_u32 s84, s84, s{S_J}
        s_lshl_b32 s84, s84, 2
        s_add_u32 s84, s84, s{S_W}
        s_lshr_b32 s85, s{S_M}, 3
        s_lshl_b32 s85, s85, 10
        s_lshl_b32 s86, s84, 3
        s_add_u32 s85, s85, s86
        s_mul_i32 s85, s85, 1152
        v_lshrrev_b32 v{t+2}, 3, v1
        v_and_b32 v{t+3}, 7, v1
        v_mul_u32_u24 v{t+3}, 1152, v{t+3}
        v_lshl_add_u32 v{t+3}, v{t+2}, 7, v{t+3}
        v_add_u32 v{t+3}, 256, v{t+3}
        v_add_u32 v{t+3}, s85, v{t+3}
        v_mov_b32 v{t+4}, {OOB}
        v_cmp_gt_u32 vcc, 56, v1
        s_lshl_b32 s84, s84, 2
        s_mul_i32 s85, s{S_KQ}, {4*576}
        v_cndmask_b32 v{t}, v{t+4}, v{t+3}, vcc
        v_and_b32 v{t+2}, 3, v1
        v_add_u32 v{t+2}, s84, v{t+2}
        v_lshrrev_b32 v{t+3}, 3, v{t+2}
        v_lshrrev_b32 v{t+1}, 2, v1
        v_lshl_add_u32 v{t+3}, v{t+1}, 6, v{t+3}
        v_add_u32 v{t+3}, 128, v{t+3}
        v_mul_u32_u24 v{t+3}, 9216, v{t+3}
        v_and_b32 v{t+2}, 7, v{t+2}
        v_lshrrev_b32 v{t+1}, 1, v{t+2}
        v_mul_u32_u24 v{t+5}, 576, v{t+1}
        v_add_u32 v{t+3}, v{t+3}, v{t+5}
        v_and_b32 v{t+1}, 1, v{t+1}
        v_mul_u32_u24 v{t+1}, 320, v{t+1}
        v_add_u32 v{t+3}, v{t+3}, v{t+1}
        v_and_b32 v{t+2}, 1, v{t+2}
        v_lshl_add_u32 v{t+3}, v{t+2}, 7, v{t+3}
        v_add_u32 v{t+3}, s85, v{t+3}
        v_cmp_gt_u32 vcc, 28, v1
        s_nop 1
        v_cndmask_b32 v{t+1}, v{t+4}, v{t+3}, vcc
        """)
    def w_items(self, C):
        slot = self.wslot[C]
        if C < 9:
            it = [(f"s_add_u32 s{S_WSO}, s{S_CBA}, s{S_TW+C}", 's', None),
                  (f"s_add_u32 m0, s{S_MX}, {slot*SLOT}", 's', None)]
            for q in range(4):
                it.append((f"buffer_load_dwordx4 v{V_WA+q}, s[{S_W1}:{S_W1+3}], s{S_WSO} offen offset:{q*1024}" + NT1 + " lds", 'm', ('W', C)))
            return it
        if C < 18:
            vb, sr, so = V_WB, S_W1, S_WSO
            it = [(f"s_add_u32 s{S_WSO}, s{S_CBB}, s{S_TW+C-9}", 's', None)]
        else:
            vb, sr, so = V_W2, S_W2, S_SO2 + C - 18
            it = []
        nt = NT1 if C < 18 else ""
        it.append((f"s_add_u32 m0, s{S_MW}, {slot*SLOT}", 's', None))
        for q in range(4):
            it.append((f"buffer_load_dwordx4 v{vb+q}, s[{sr}:{sr+3}], s{so} offen offset:{q*1024}{nt} lds", 'm', ('W', C)))
        it.append((f"s_add_u32 m0, s{S_MW}, {slot*SLOT+4096}", 's', None))
        it.append((f"buffer_load_dwordx4 v{vb+4}, s[{sr}:{sr+3}], s{so} offen{nt} lds", 'm', ('W', C)))
        return it
    def x_items(self, c):
        slot = 5 + c % 3
        it = [(f"s_add_u32 m0, s{S_MX}, {slot*SLOT}", 's', None)]
        for q in range(4):
            it.append((f"buffer_load_dwordx4 v{V_X+q}, s[{S_X}:{S_X+3}], s{S_TX+c} offen offset:{q*1024}" + NTX + " lds", 'm', ('X', c)))
        return it
    def push_dma(self, items, early, need, cost):
        e = self.e
        nm = sum(1 for it in items if it[1] == 'm')
        dmin = iopt("dmin", 40)
        k = 0
        for (t, kind, tag) in items:
            late = max(early + 1 + k, int(need - dmin - (nm - 1 - min(k, nm - 1)) * cost))
            if kind == 'm':
                e.push('dma', t, kind, tag, early=early, late=late, cost=cost)
                k += 1
            else:
                e.push('dma', t, kind, tag, early=early, late=max(early, late - 1))
        self.tighten('dma')
    def tighten(self, stream):
        q = self.e.streams.get(stream, [])
        for i in range(len(q) - 2, -1, -1):
            sp = q[i].cost if q[i].kind == 'm' else 1
            lim = q[i + 1].late - sp
            if q[i].late > lim: q[i].late = max(q[i].early, int(lim))

    def frag_reads(self, si):
        kind, k = STEPS[si]
        C, ks = si // 2, si % 2
        slot = self.wslot[C]
        dst0 = AW + 40 * (si % 2)
        out = []
        for f in range(nfrag(kind)):
            for h in range(2):
                d = dst0 + 4 * f + 2 * h
                if kind == 'A':
                    vb = V_TA + f + (8 if slot >= 3 else 0)
                    off = (slot % 3) * SLOT + ks * 8192 + h * 1024
                elif kind == 'B':
                    vb = V_TB + (f & 1) + 2 * (slot // 3)
                    off = (slot % 3) * SLOT + ks * 10240 + h * 1280 + f * 32
                else:
                    vb = V_T2 + slot // 3
                    off = (slot % 3) * SLOT + ks * 10240 + h * 5120 + f * 32
                out.append((f"ds_read_b64_tr_b16 a[{d}:{d+1}], v{vb} offset:{off}", ('WF', si, f)))
        return out
    def frag_read(self, si, f, h, dst):
        C, ks = si // 2, si % 2
        slot = self.wslot[C]
        off = (slot % 3) * SLOT + ks * 10240 + h * 5120 + f * 32
        d = dst + 2 * h
        return (f"ds_read_b64_tr_b16 a[{d}:{d+1}], v{V_T2 + slot // 3} offset:{off}", ('FB', si, f))
    def x_reads(self, kt):
        c, p = kt // 2, kt % 2
        return [(f"ds_read_b128 a[{AX+8*kt+4*t}:{AX+8*kt+4*t+3}], v{V_XR+p} offset:{(c%3)*SLOT + t*2048}", ('XF', kt)) for t in range(2)]

    def bias_cvt(self, n, base):
        out = []
        for ft in range(n):
            q = base + 4 * ft
            out += [f"v_lshlrev_b32 v{q}, 16, v{q+2}", f"v_and_b32 v{q+1}, 0xffff0000, v{q+2}",
                    f"v_lshlrev_b32 v{q+2}, 16, v{q+3}", f"v_and_b32 v{q+3}, 0xffff0000, v{q+3}"]
        return out
    def epi_items(self, acc, il, istore, t):
        P = acc + 16 * il + 4 * t; Q = P + 8
        it = []
        for r in range(4): it.append((f"v_mul_f32 v{P+r}, v{P+r}, |v{P+r}|", 'v', None))
        for r in range(4): it.append((f"v_mul_f32 v{Q+r}, v{Q+r}, |v{Q+r}|", 'v', None))
        it += [(f"v_cvt_pk_bf16_f32 v{P}, v{P}, v{P+1}", 'v', None), (f"v_cvt_pk_bf16_f32 v{P+1}, v{P+2}, v{P+3}", 'v', None),
               (f"v_cvt_pk_bf16_f32 v{P+2}, v{Q}, v{Q+1}", 'v', None), (f"v_cvt_pk_bf16_f32 v{P+3}, v{Q+2}, v{Q+3}", 'v', None)]
        for r in range(4): it.append((f"v_pk_max_i16 v{P+r}, v{P+r}, 0", 'v', None))
        if t == 0: it.append((f"s_add_u32 s{S_T2}, s{S_HSO}, {istore*8192}", 's', None))
        st = f"buffer_store_dwordx4 v[{P}:{P+3}], v{V_HS}, s[{S_WS}:{S_WS+3}], s{S_T2} offen offset:{t*1024}" + {"nt": " sc1 nt", "sc01": " sc0 sc1", "sc01nt": " sc0 sc1 nt"}.get(opt("hstf", ""), " sc1")
        if opt("x_nostB") and istore >= 4: st = f"buffer_load_dword v255, v{V_FS}, s[{S_WS}:{S_WS+3}], 0 offen offset:24"
        if opt("x_noepiB") and istore >= 4: it = [x for x in it if x[1] != 'v']
        it.append((st, 'm', ('HS', part_of(istore))))
        return it

    def poll_check(self, load_text, cond_bad, name):
        self.nlabel += 1
        lb = f"L_{name}_{self.nlabel}"
        self.slow.append(f"""
        {lb}_slow:
        s_mov_b32 s91, {SPIN_LIMIT}
        {lb}_spin:
        {load_text}
        s_waitcnt vmcnt(0)
        {cond_bad}
        s_nop 1
        s_cbranch_vccz {lb}_back
        s_sub_u32 s91, s91, 1
        s_cmp_lg_u32 s91, 0
        s_cbranch_scc1 {lb}_spin
        s_branch {lb}_back
        """)
        return f"{cond_bad}\n    s_nop 1\n    s_cbranch_vccnz {lb}_slow\n{lb}_back:"

    def prologue(self):
        e = self.e
        t = V_T
        stamp(e, 0)
        e.raw(f"""
        s_cmp_ge_u32 s2, 256
        s_cbranch_scc1 L_end
        s_load_dwordx16 s[{KA}:{KA+15}], s[0:1], 0
        """)
        if opt("icpf", "1") == "1":
            e.raw(f"""
            s_getpc_b64 s[90:91]
            L_pc:
            v_lshlrev_b32 v{t}, 7, v0
            v_min_u32 v{t+1}, L_code_end-L_pc-4, v{t}""")
            e.vmem(f"global_load_dword v255, v{t+1}, s[90:91]", 'IC')
            e.raw(f"v_add_u32 v{t}, 32768, v{t}\nv_min_u32 v{t+1}, L_code_end-L_pc-4, v{t}")
            e.vmem(f"global_load_dword v255, v{t+1}, s[90:91]", 'IC')
        for x in self.setup_first(): e.raw(x)
        stamp(e, 3, True) if opt("pstamp") else None
        e.raw("s_waitcnt lgkmcnt(0)")
        stamp(e, 4, True) if opt("pstamp") else None
        for x in srd(S_X, KA, X_BYTES) + srd(S_W1, KA + 2, W1_BYTES) + srd(S_B1, KA + 4, B1_BYTES) + srd(S_DBG, KA + 8, B2_BYTES): e.raw(x)
        self.wslot = {0: 0, 1: 1, 2: 2, 3: 3, 4: 4}
        def emit_items(items):
            for (tx, k, tag) in items:
                if k == 'm': e.vmem(tx, tag)
                else: e.raw(tx)
        emit_items([(f"s_mov_b32 m0, {BIAS_LDS}", 's', None),
                    (f"buffer_load_dwordx4 v{t+5}, s[{S_B1}:{S_B1+3}], s86 offen lds", 'm', 'BI'),
                    (f"s_mov_b32 m0, {BIAS_LDS+1024}", 's', None),
                    (f"buffer_load_dwordx4 v{t+6}, s[{S_DBG}:{S_DBG+3}], s87 offen lds", 'm', 'BI')])
        emit_items(self.x_items(0) + self.w_items(0))
        stamp(e, 5, True) if opt("pstamp") else None
        for x in srd(S_WS, KA + 14, WS_BYTES) + srd(S_W2, KA + 6, W2_BYTES) + srd(S_OUT, KA + 10, OUT_BYTES): e.raw(x)
        e.raw(f"s_mov_b32 s100, s{KA+12}\ns_mov_b32 s101, s{KA+13}\ns_nop 0")
        for x in self.setup_tables(): e.raw(x)
        for x in self.setup_reads_A(): e.raw(x)
        late = self.setup_late(); cut = late.index("@P2")
        for x in late[:cut]: e.raw(x)
        self.setup_p2 = late[cut + 1:]
        if opt("p2pro") == "1":
            for x in self.setup_p2: e.raw(x)
            self.setup_p2 = []
        e.raw(f"""
        s_or_b32 s88, s2, s{S_W}
        v_mov_b32 v{t}, {OOB}
        v_mov_b32 v{t+1}, {EP_OFF}
        v_or_b32 v{t+2}, s88, v1
        v_cmp_eq_u32 vcc, 0, v{t+2}
        s_nop 1
        v_cndmask_b32 v{V_NP}, v{t}, v{t+1}, vcc""")
        e.raw(f"""
        s_mul_i32 s84, s{S_S}, 576
        s_sub_u32 s85, s{S_CBA}, s84
        s_sub_u32 s86, s{S_CBB}, s84
        s_add_u32 s85, s85, {BIAS_LDS}
        s_add_u32 s86, s86, {BIAS_LDS}
        v_add_u32 v{t}, s85, v{V_BI}
        v_add_u32 v{t+1}, s86, v{V_BI}
        v_add_u32 v{t+2}, {BIAS_LDS+1024}, v{V_BI}
        """)
        stamp(e, 6, True) if opt("pstamp") else None
        e.wait_vm('BI')
        stamp(e, 7, True) if opt("pstamp") else None
        for ft in range(8): e.ds(f"ds_read_b64 v[{ACC_B+4*ft+2}:{ACC_B+4*ft+3}], v{t} offset:{32*ft}", 'BR')
        for ft in range(10): e.ds(f"ds_read_b64 v[{BIASB+4*ft+2}:{BIASB+4*ft+3}], v{t+1} offset:{32*ft}", 'BR')
        for nt in range(9): e.ds(f"ds_read_b64 a[{AB2+2*nt}:{AB2+2*nt+1}], v{t+2} offset:{32*nt}", 'BR')
        e.raw(f"s_mov_b32 s{S_DBG}, s100\ns_mov_b32 s{S_DBG+1}, s101\ns_mov_b32 s{S_DBG+2}, 256")
        e.wait_lg_all()
        for x in self.bias_cvt(8, ACC_B) + self.bias_cvt(10, BIASB): e.raw(x)
        emit_items(self.x_items(1) + self.w_items(1))
        stamp(e, 1, bool(opt("pstamp")))
        e.wait_vm([('W', 0), ('X', 0)])
        e.raw("s_barrier")
        stamp(e, 2, bool(opt("pstamp")))
        self.pro_rest = [self.x_items(2), self.w_items(2),
                         [(f"buffer_load_dword v{V_P}, v{V_NP}, s[{S_WS}:{S_WS+3}], 0 offen sc1", 'm', 'EP')], self.w_items(3), self.w_items(4)]
        for (tx, tag) in self.frag_reads(0): e.ds(tx, tag)
        for (tx, tag) in self.x_reads(0): e.ds(tx, tag)
    @staticmethod
    def _glued(prev):
        return prev.startswith("s_cmp") or prev.startswith("v_cmp") or prev.startswith("s_nop")

    def build(self):
        e = self.e
        self.prologue()
        if opt("noAst"): e.raw(f"v_mov_b32 v255, {OOB}")
        e.prio_streams = {'dma', 'hld', 'stB'}
        e.force_prio = True
        e.strict = opt('strict', '1') == '1'
        e.ta_slack = float(opt('ta_slack', 1.0))
        if e.strict: e.prio_streams = {'dma', 'hld', 'stA', 'stB', 'poll', 'flag'}
        e.min_sp = iopt('min_sp', 3)
        self.pf_gap = None
        NBq = iopt("nb", 4)
        def need(C): return min(GOS[2 * C - 1] - 1, GOS[72 - NBq - 1] - 1)
        CX = CA = float(opt("spA", 3.0)); CB_ = float(opt("spB", 4.0)); C2 = float(opt("sp2", 3.5))
        def wcost(C): return CA if C < 9 else (CB_ if C < 18 else C2)
        pr = self.pro_rest
        self.push_dma(pr[0], 0, need(2), CX); self.push_dma(pr[1], 0, need(2), CA)
        self.push_dma(pr[2], 0, GOS[3], 1.0)
        self.push_dma(pr[3], 0, need(3), CA); self.push_dma(pr[4], 0, need(4), CA)
        nextW = 5
        LOOK = iopt("look", 8)
        MERGE = True
        NB = iopt("nb", 4); B0 = 72 - NB
        self.NB, self.B0 = NB, B0
        for si, (kind, k) in enumerate(STEPS):
            if si == B0: break
            nf = nfrag(kind); ngap = 2 * nf
            C, ks = si // 2, si % 2
            g0 = e.gap
            assert g0 == GOS[si]
            cur = AW + 40 * (si % 2)
            if (kind, k) == ('B', 0): stamp(e, 3)
            if (kind, k) == ('P', 0): stamp(e, 4)
            if (kind, k) == ('P', 9): stamp(e, 5)
            have_next = si + 1 < len(STEPS)
            reads = []
            if si == B0 - 1:
                reads = [self.frag_read(B0 + j, f, h, self.blk_buf(f) + 4 * j) for f in range(2) for j in range(NB) for h in range(2)]
            elif have_next:
                reads = self.frag_reads(si + 1)
                nkind, nk = STEPS[si + 1]
                if nkind == 'A':
                    xr = self.x_reads(nk)
                    reads = reads[:2] + xr[:1] + reads[2:4] + xr[1:] + reads[4:]
            per = [[] for _ in range(ngap)]
            nr = len(reads)
            for i_, r in enumerate(reads):
                per[(i_ * ngap) // nr if nr > ngap else i_].append(r)
            if si == B0 - 2: self.push_tail_setup(g0)
            pre0 = []
            if opt("stepstamp"):
                a_, b_ = [int(v) for v in opt("stepstamp").split("_")]
                if a_ <= si <= b_:
                    pre0 = [f"v_writelane_b32 v63, s90, {si - a_}", "s_memtime s[90:91]"]
            if have_next and ks == 1:
                nC = C + 1
                pre0 = ["s_barrier"] + pre0
                if opt("chunkstamp") and not opt("stepstamp"):
                    pre0 = pre0 + [f"v_writelane_b32 v63, s90, {nC-1}", "s_memtime s[90:91]"]
                if nC - 2 >= 0: self.free.append(self.wslot[nC - 2])
                if kind == 'A' and C + 3 < 9:
                    self.push_dma(self.x_items(C + 3), g0 + 1, need(C + 3), CX)
                if kind == 'A' and C >= 6:
                    self.free.append(5 + C % 3)
                nissue = 0
                while self.free and nextW < 36 and nextW <= nC + LOOK:
                    if kind == 'A' and nextW >= 9 and nissue >= iopt("wA", 1): break
                    nissue += 1
                    cand = [s_ for s_ in self.free if (nextW >= 9 or s_ < 5)]
                    if not cand: break
                    early = g0 + 1
                    if nextW >= 18 + iopt("w2_in_window", 0):
                        if self.pf_gap is None: break
                        early = max(early, self.pf_gap + iopt("pf_window", 140))
                    sl = cand[0]; self.free.remove(sl)
                    self.wslot[nextW] = sl
                    nd = need(nextW)
                    if 9 <= nextW < 18 + iopt("w2_in_window", 0):
                        asap = max(g0 + iopt("dmin", 40) + int(6 * wcost(nextW)), getattr(self, "last_asap", 0) + int(6 * wcost(nextW)))
                        nd = min(nd, asap); self.last_asap = nd
                    cost = wcost(nextW)
                    lin0 = iopt("lin0", 25)
                    if nextW >= lin0:
                        lper = iopt("linper", 49)
                        early = max(early, GOS[36] + (nextW - lin0) * lper)
                        pass
                        nd = min(nd, early + lper + iopt("dmin", 40))
                    self.push_dma(self.w_items(nextW), early, max(nd, early + iopt("dmin", 40) + 30), cost)
                    nextW += 1
                    if nextW == 18: self.push_pf2(g0 + 1)
                self.after_barrier_hooks(si, g0)
            self.step_hooks(si, kind, k, g0, ngap)
            def waits_for(sj, gi):
                kj, kk = STEPS[sj]; nfj = nfrag(kj)
                w = []
                f, t = gi // 2, gi % 2
                G = 4 if kj == 'A' else 5
                if t == 0 and f % G == 0:
                    tags = [('WF', sj, min(f + G - 1, nfj - 1))]
                    if f == 0 and kj == 'A': tags.append(('XF', kk))
                    w.append(('lg', tags))
                if gi == 0 and kj == 'P' and SEQ2[kk][0] != 0:
                    w.append(('vm', [('H', kk)]))
                return w
            for f in range(nf):
                for t in range(2):
                    gi = 2 * f + t
                    A = f"a[{cur+4*f}:{cur+4*f+3}]"
                    if kind in 'AB':
                        B = f"a[{AX+8*k+4*t}:{AX+8*k+4*t+3}]"
                        acc = (ACC_A if kind == 'A' else ACC_B) + 8 * f + 4 * t
                        D = f"v[{acc}:{acc+3}]"
                        if k == 0:
                            bq = (ACC_B if kind == 'A' else BIASB) + 4 * f
                            Cc = f"v[{bq}:{bq+3}]"
                        else: Cc = D
                    else:
                        d, i = SEQ2[k]
                        if d == 0:
                            hb = (ACC_A + 16 * i if i < 4 else ACC_B + 16 * (i - 4)) + 4 * t
                            B = f"v[{hb}:{hb+3}]"
                        else:
                            hb = AH + 8 * RING[k] + 4 * t
                            B = f"a[{hb}:{hb+3}]"
                        acc = acc2(f, t)
                        D = f"v[{acc}:{acc+3}]"
                        Cc = "0" if k == 0 else D
                    if si == 0 and gi == 0:
                        e.wait_lg([('WF', 0, 3), ('XF', 0)])
                    post = []
                    if gi + 1 < ngap: post += waits_for(si, gi + 1)
                    elif have_next:
                        if si == B0 - 1:
                            post.append(('lg', [('FB', B0 + NB - 1, 0)]))
                            post.append(('vm', [('H', 35)]))
                        else:
                            post += waits_for(si + 1, 0)
                        if ks == 0 and si + 2 < len(STEPS):
                            nC = C + 1
                            tags = [('W', nC)]
                            if si + 1 == B0 - 1: tags += [('W', c_) for c_ in range(nC, 36)]
                            if kind == 'A' and nC < 9: tags.append(('X', nC))
                            tags += self.extra_barrier_tags(si + 1)
                            post.append(('vm', tags))
                    e.mfma_gap(f"v_mfma_f32_16x16x32_bf16 {D}, {A}, {B}, {Cc}", pre=pre0 if gi == 0 else (), dss=per[gi], post=post)
        if MERGE:
            import copy
            assert e.pending() == 0 or all(nm not in ('dma', 'hld') or not q for nm, q in e.streams.items())
            e.flush_streams()
            e.raw(f"s_cmp_eq_u32 s{S_W}, s{S_KQ}\ns_cbranch_scc1 L_owner")
            eo = Emitter()
            eo.vm, eo.vm_gap, eo.vm_done = list(e.vm), list(e.vm_gap), e.vm_done
            eo.lg, eo.lg_done = list(e.lg), e.lg_done
            eo.gap = e.gap
            eo.raw("L_owner:")
            self.final_block(eo, False)
            self.tail_owner(eo)
            self.slow.append(eo.text())
            self.final_block(e, True)
            if opt("chunkstamp"):
                e.raw("s_waitcnt lgkmcnt(0)\nv_writelane_b32 v63, s90, 35\ns_memtime s[90:91]\ns_waitcnt lgkmcnt(0)\nv_writelane_b32 v63, s90, 36")
            stamp(e, 6)
            self.tail_sender()
        else:
            raise SystemExit("only the merged tail is generated")
        e.raw("L_end:\ns_endpgm")
        for s_ in self.slow: e.raw(s_)
        e.raw("L_code_end:")
        print(e.stats, "slots:", self.wslot, file=sys.stderr)
        if opt("vmlog"):
            for (g, tags, n, newly) in e.log:
                y = newly[-1] if newly else None
                summary = {}
                for (t, gg) in newly: summary.setdefault(str(t), []).append(gg)
                print(f"gap {g:5d} wait {tags} vmcnt({n}) youngest {y} dist {g - y[1] if y else 0}  covers " + ", ".join(f"{k}@{v[0]}-{v[-1]}" for k, v in summary.items()), file=sys.stderr)
        return e.text()

    PUB = tuple(x[1] for x in PARTS)
    def extra_barrier_tags(self, si):
        return [('HS', p) for p in range(len(PARTS)) if self.PUB[p] == si]
    def after_barrier_hooks(self, si, g0):
        e = self.e
        if si in self.PUB:
            part = self.PUB.index(si)
            e.push('flag', f"buffer_store_dword v{V_NP}, v{V_FS}, s[{S_WS}:{S_WS+3}], 0 offen offset:{4*part} sc1", 'm', ('FS', part), early=g0 + 2, late=g0 + 2)

    def push_pf2(self, g):
        e = self.e; t = V_T
        for n_, tx in enumerate([f"s_and_b32 s100, s{S_M}, 7", f"s_lshl_b32 s100, s100, 2", f"s_add_u32 s100, s100, s{S_J}", f"s_mul_i32 s100, s100, {36*1152}",
                   f"s_mul_i32 s101, s{S_KQ}, {1152*1152}", f"s_add_u32 s100, s100, s101", f"s_mul_i32 s101, s{S_W}, {81*128}", f"s_add_u32 s100, s100, s101",
                   f"v_lshlrev_b32 v{t}, 7, v1", f"v_mov_b32 v{t+2}, {OOB}", f"v_add_u32 v{t+1}, {64*128}, v{t}",
                   f"v_cmp_gt_u32 vcc, 17, v1\n    s_nop 1\n    v_cndmask_b32 v{t+1}, v{t+2}, v{t+1}, vcc"]):
            e.push('pf', tx, 's', early=g, late=g + 2 + n_)
        burst0 = max(g, GOS[18 + iopt("pf_at", 5)], GOS[18 + iopt("epiA1_late", 6)] + 14)
        slack = max(0, (e.streams['dma'][-1].late if e.streams['dma'] else g) - burst0) + 2
        def rec():
            self.pf_gap = e.gap
            return f"buffer_load_dword v255, v{t}, s[{S_W2}:{S_W2+3}], s100 offen"
        e.push('dma', rec, 'm', 'PF', early=burst0, late=burst0 + slack + 2, cost=10)
        e.push('dma', f"buffer_load_dword v255, v{t+1}, s[{S_W2}:{S_W2+3}], s100 offen", 'm', 'PF', early=burst0, late=burst0 + slack + 8, cost=5)

    def step_hooks(self, si, kind, k, g0, ngap):
        e = self.e
        if (kind, k) == ('A', iopt("ep_at", 4)):
            e.push('nonce', lambda: e.vm_wait_text('EP'), 'w', early=g0, late=g0 + 2)
            for t in [f"v_add_u32 v{V_P}, 1, v{V_P}", f"v_or_b32 v{V_P}, 0x80000000, v{V_P}"]:
                e.push('nonce', t, 'v', early=g0, late=g0 + 4)
            e.push('nonce', f"buffer_store_dword v{V_P}, v{V_NP}, s[{S_WS}:{S_WS+3}], 0 offen sc1", 'm', 'EPW', early=g0, late=g0 + 6)
            e.push('nonce', f"v_subrev_u32 v{V_NP}, {EP_OFF}, v{V_NP}", 'v', early=g0, late=g0 + 8)
            e.push('nonce', f"buffer_store_dword v{V_P}, v{V_NP}, s[{S_DBG}:{S_DBG+3}], 0 offen sc1", 'm', 'NW', early=g0, late=g0 + 10)
        NR = iopt("nr_at", 12); NC = iopt("nc_at", 16)
        ldn = f"buffer_load_dword v{V_P}, v{V_NP}, s[{S_DBG}:{S_DBG+3}], 0 offen sc1"
        if (kind, k) == ('A', NR):
            e.push('nonce', f"v_mov_b32 v{V_NP}, 0", 'v', early=g0, late=g0 + 2)
            e.push('nonce', ldn, 'm', 'NR', early=g0 + 1, late=g0 + 4)
        if (kind, k) == ('A', NC):
            e.push('nonce', lambda: e.vm_wait_text('NR'), 'w', early=g0, late=g0 + 2)
            e.push('nonce', self.poll_check(ldn, f"v_cmp_eq_u32 vcc, 0, v{V_P}", "nonce"), 's', early=g0, late=g0 + 5)
            e.push('nonce', f"v_readfirstlane_b32 s{S_N}, v{V_P}\n    s_nop 3", 'v', early=g0, late=g0 + 8)
            e.push('nonce', f"v_mov_b32 v{V_NP}, s{S_N}", 'v', early=g0, late=g0 + 10)
        if (kind, k) == ('B', iopt("p2_at", 6)) and self.setup_p2:
            end = GOS[18 + iopt("p2_end", 13)]
            for n, x in enumerate(self.setup_p2):
                e.push('setup', x, 's', early=g0, late=g0 + ((n + 1) * (end - g0)) // len(self.setup_p2))
        SPS = float(opt('spS', 3.5))
        if (kind, k) == ('B', 0):
            st = g0 + 8
            e1 = GOS[18 + iopt("epiA1_late", 6)] + 8; e2 = GOS[18 + iopt("epiA2_late", 11)]
            self.storesA2 = []
            nA1 = iopt("nA1", 4)
            for (frs, a, b) in ((tuple(range(nA1)), st, e1), (tuple(range(nA1, 4)), e1, e2)):
                its = [x for i in frs for t in range(2) for x in self.epi_items(ACC_A, i, i, t)]
                nv = sum(1 for x in its if x[1] == 'v'); n = 0; late = a
                for (tx, kk, tag) in its:
                    if kk == 'v':
                        n += 1; late = a + (n * (b - a)) // nv
                        e.push('epi', tx, kk, tag, early=st, late=late)
                    elif frs[0] == 0:
                        e.push('stA', tx, kk, tag, early=late + 1, late=late + 4, cost=SPS if kk == 'm' else 0)
                    else:
                        self.storesA2.append((tx, kk, tag, late))
        if getattr(self, "storesA2", None) and kind == 'B' and self.pf_gap is not None and k >= iopt("epiA2_late", 11) - 1:
            early = self.pf_gap + iopt("pf_window", 140); sp = iopt("stA2_sp", 10)
            for (tx, kk, tag, late) in self.storesA2:
                early = max(early, late + 1)
                e.push('stA', tx, kk, tag, early=early, late=early + 3, cost=SPS if kk == 'm' else 0)
                if kk == 'm': early += sp
            self.storesA2 = []
        if (kind, k) == ('P', 0):
            prev = g0 + 2
            for (frs, vend, burst) in (((4, 5, 6), iopt("vB1", 80), iopt("bB1", 84)), ((7, 8), iopt("vB2", 150), iopt("bB2", 156))):
                its = [(i, x) for i in frs for t in range(2) for x in self.epi_items(ACC_B, i - 4, i, t)]
                end = g0 + vend
                nv = sum(1 for (_, x) in its if x[1] == 'v'); n = 0; early = g0 + burst
                for (i, (tx, kk, tag)) in its:
                    if kk == 'v':
                        n += 1
                        late = min(prev + (n * (end - prev)) // nv, GOS[36 + OWNB[i]] - 4)
                        e.push('epi', tx, kk, tag, early=g0 + 2, late=late)
                    else:
                        e.push('stB', tx, kk, tag, early=early if kk == 'm' else early - 2, late=early - 30, cost=float(opt("spSB", 4.0)) if kk == 'm' else 0)
                prev = end
        if kind == 'P' or (kind == 'B' and k >= 14):
            LA = iopt("LA", 4)
            q = k if kind == 'P' else k - 18
            c0, c1, c2 = PARTS[0][3], PARTS[1][3], PARTS[2][3]
            FIRST = {9: c0, 10: c0, 11: c0 + 1, 12: c0 + 1, 21: c1, 22: c1, 23: c1 + 1, 30: c2, 31: c2 + 1}
            if self.NB == 4: FIRST.update({32: 27, 33: 28, 34: 28, 35: 29})
            def issue_at(qn):
                if qn in FIRST: return FIRST[qn]
                return max(qn - LA, PARTS[part_of(SEQ2[qn][1])][3], qn - HD + 1)
            for part, (_, _, pol, chk) in enumerate(PARTS):
                ld = f"buffer_load_dword v{V_P}, v{V_FL}, s[{S_WS}:{S_WS+3}], 0 offen offset:{4*part} sc1"
                if q == pol:
                    e.push('poll', ld, 'm', ('FP', part), early=g0 + 1, late=g0 + 2, cost=1)
                if q == chk:
                    e.push('poll', (lambda part=part: e.vm_wait_text(('FP', part))), 'w', early=g0, late=g0)
                    if not opt("x_nochk"): e.push('poll', self.poll_check(ld, f"v_cmp_ne_u32 vcc, s{S_N}, v{V_P}", f"flag{part}"), 's', early=g0, late=g0 + 1)
            assert LA < HD
            for qn in PEERS:
                if issue_at(qn) != q: continue
                d, i = SEQ2[qn]
                SH = S_HSO if opt("x_hhot") else S_T
                FLH = "" if (opt("x_hhot") or opt("hplain")) else " sc1"
                dst = AH + 8 * RING[qn]
                nd = min(GOS[36 + qn] - 1 - iopt("dminH", 36), g0 + ngap + 2)
                e.push('hld', f"s_add_u32 s{S_T}, s{S_HB+d}, {i*8192}", 's', early=g0 + 3, late=max(g0 + 4, nd - 6))
                for t in range(2):
                    e.push('hld', f"buffer_load_dwordx4 a[{dst+4*t}:{dst+4*t+3}], v{V_HS}, s[{S_WS}:{S_WS+3}], s{SH} offen offset:{t*1024}" + FLH, 'm', ('H', qn), early=g0 + 4, late=max(g0 + 5 + t, nd - 5 + 5 * t), cost=float(opt('spH', 3.0)))

    NG = 12
    BOX = 12 * 1024
    @staticmethod
    def val(v): return acc2((v // 4) // 2, (v // 4) % 2) + v % 4
    QUADS = [V_TA + 4 * i for i in range(4)]

    def push_tail_setup(self, g0):
        e = self.e; t = V_T
        items = lines(f"""
        s_lshl_b32 s84, s{S_M}, 2
        s_add_u32 s84, s84, s{S_J}
        s_lshl_b32 s84, s84, 2
        v_lshlrev_b32 v{t}, 4, v1
        s_add_u32 s85, s84, s{S_W}
        s_lshl_b32 s85, s85, 2
        s_add_u32 s85, s85, s{S_KQ}
        s_mul_i32 s85, s85, {self.BOX}
        s_add_u32 s85, s85, {P_OFF}
        s_add_u32 s86, s85, 4096
        s_add_u32 s87, s85, 8192""") + [f"v_mov_b32 v{q+3}, s{S_N}" for q in self.QUADS]
        for n, x in enumerate(items):
            e.push('misc', x, 's', early=g0 + 1, late=g0 + 4 + 2 * n)

    def granule_items(self, g):
        t = V_T; q = self.QUADS[g % 4]
        it = [(f"v_cvt_pk_bf16_f32 v{q+w_}, v{self.val(6*g+2*w_)}, v{self.val(6*g+2*w_+1)}", 'v') for w_ in range(3)]
        it.append((f"buffer_store_dwordx4 v[{q}:{q+3}], v{t}, s[{S_WS}:{S_WS+3}], s{85 + g // 4} offen offset:{(g%4)*1024} sc1", 'm'))
        return it

    def blk_buf(self, nt):
        return AW + (0, 16, 40, 56)[nt % 4] if self.NB == 4 else AW + (0, 8, 40, 48)[nt % 4]
    def final_block(self, e, sender):
        NB, B0 = self.NB, self.B0
        g0 = e.gap
        e.streams = {}; e.prio_streams = set(); e.strict = False; e.force_prio = False
        self.sent = set()
        G = 2 * NB
        if sender:
            for g in range(self.NG):
                k1 = (6 * g + 5) // 4
                start = G * (k1 // 2) + G - 2 + (k1 % 2) + (5 if k1 // 2 <= 5 else 8)
                if start > 9 * G - 2: continue
                self.sent.add(g)
                for n, (tx, kk) in enumerate(self.granule_items(g)):
                    e.push('snd', tx, kk, ('PS', g), early=g0 + start, late=g0 + start + 2 + n)
        for nt in range(9):
            rd = [self.frag_read(B0 + j, nt + 2, h, self.blk_buf(nt + 2) + 4 * j) for j in range(NB) for h in range(2)] if nt + 2 < 9 else []
            for sub in range(G):
                j, tt = sub // 2, sub % 2
                q = 36 - NB + j
                A = self.blk_buf(nt) + 4 * j
                hb = AH + 8 * RING[q] + 4 * tt
                acc = acc2(nt, tt)
                dss = [rd[sub]] if rd else []
                post = []
                if sub == G - 1 and nt + 1 < 9: post.append(('lg', [('FB', B0 + NB - 1, nt + 1)]))
                e.mfma_gap(f"v_mfma_f32_16x16x32_bf16 v[{acc}:{acc+3}], a[{A}:{A+3}], a[{hb}:{hb+3}], v[{acc}:{acc+3}]", dss=dss, post=post)
        if e.pending(): e.raw("s_nop 7")
        e.flush_streams()

    def tail_owner(self, e):
        t = V_T
        V_PA = t + 6
        OWN_LDS = self.wslot[32] * SLOT
        e.raw(f"v_add_u32 v{V_PA}, {OWN_LDS}, v{t}")
        for nt in range(9):
            e.raw(f"""
            v_accvgpr_read_b32 v{t+7}, a{AB2+2*nt}
            v_accvgpr_read_b32 v{t+8}, a{AB2+2*nt+1}
            v_lshlrev_b32 v{V_FL}, 16, v{t+7}
            v_and_b32 v{t+7}, 0xffff0000, v{t+7}
            v_lshlrev_b32 v{V_FS}, 16, v{t+8}
            v_and_b32 v{t+8}, 0xffff0000, v{t+8}""")
            if nt == 8: e.raw("s_nop 3")
            for tt in range(2):
                r = acc2(nt, tt)
                e.raw(f"v_add_f32 v{r}, v{r}, v{V_FL}\nv_add_f32 v{r+1}, v{r+1}, v{t+7}\nv_add_f32 v{r+2}, v{r+2}, v{V_FS}\nv_add_f32 v{r+3}, v{r+3}, v{t+8}")
                e.raw(f"ds_write_b128 v{V_PA}, v[{r}:{r+3}] offset:{(2*nt+tt)*1024}")
        MB = OWN_LDS + 18 * 1024
        BOX = self.BOX
        e.raw(f"""
        v_mov_b32 v{t+7}, {MB}
        v_mov_b32 v{t+8}, 0
        ds_write_b32 v{t+7}, v{t+8}
        s_waitcnt lgkmcnt(0)
        s_barrier""")
        if opt("ownpoll", "0") != "1":
            e.raw("s_branch L_end"); return
        e.raw(f"s_add_u32 s85, s84, s{S_KQ}\ns_lshl_b32 s85, s85, 2")
        for d in range(1, 4):
            e.raw(f"""
            s_add_u32 s86, s{S_KQ}, {d}
            s_and_b32 s86, s86, 3
            s_add_u32 s86, s86, s85
            s_mul_i32 s86, s86, {BOX}
            s_add_u32 s{S_TW+d}, s86, {P_OFF}""")
        e.raw(f"""
        v_mul_u32_u24 v{V_PA}, 43, v1
        v_lshrrev_b32 v{V_PA}, 7, v{V_PA}
        v_mul_u32_u24 v{V_FL}, 3, v{V_PA}
        v_sub_u32 v{V_FL}, v1, v{V_FL}
        v_mul_u32_u24 v{V_PA}, 4096, v{V_PA}
        v_add_u32 v{V_PA}, {3*1024+1020}, v{V_PA}
        v_mov_b32 v{t+8}, s{S_TW+1}
        v_mov_b32 v{V_FS}, s{S_TW+2}
        v_cmp_eq_u32 vcc, 1, v{V_FL}
        s_nop 1
        v_cndmask_b32 v{t+8}, v{t+8}, v{V_FS}, vcc
        v_mov_b32 v{V_FS}, s{S_TW+3}
        v_cmp_eq_u32 vcc, 2, v{V_FL}
        s_nop 1
        v_cndmask_b32 v{t+8}, v{t+8}, v{V_FS}, vcc
        v_add_u32 v{V_PA}, v{V_PA}, v{t+8}
        v_mov_b32 v{V_FS}, {OOB}
        v_cmp_gt_u32 vcc, 9, v1
        s_and_b32 s89, s{S_N}, 0xfffffff8
        s_mov_b32 s91, {SPIN_LIMIT}
        v_cndmask_b32 v{V_PA}, v{V_FS}, v{V_PA}, vcc
        L_own_poll:
        buffer_load_dword v{V_P}, v{V_PA}, s[{S_WS}:{S_WS+3}], 0 offen sc1
        s_waitcnt vmcnt(0)
        v_cmp_eq_u32 vcc, s{S_N}, v{V_P}
        s_nop 3
        s_mov_b32 s87, vcc_lo
        s_mov_b32 s88, s89
        s_and_b32 s85, s87, 7
        s_cmp_eq_u32 s85, 7
        s_cselect_b32 s85, 1, 0
        s_or_b32 s88, s88, s85
        s_and_b32 s85, s87, 56
        s_cmp_eq_u32 s85, 56
        s_cselect_b32 s85, 2, 0
        s_or_b32 s88, s88, s85
        s_and_b32 s85, s87, 448
        s_cmp_eq_u32 s85, 448
        s_cselect_b32 s85, 4, 0
        s_or_b32 s88, s88, s85
        s_sub_u32 s91, s91, 1
        s_cmp_le_i32 s91, 0
        s_cselect_b32 s85, 7, 0
        s_or_b32 s88, s88, s85
        v_mov_b32 v{t+8}, s88
        ds_write_b32 v{t+7}, v{t+8}
        s_and_b32 s85, s88, 7
        s_cmp_eq_u32 s85, 7
        s_cbranch_scc0 L_own_poll
        s_branch L_end""")

    def tail_sender(self):
        e = self.e
        t = V_T
        NG, BOX = self.NG, self.BOX
        V_BAD, V_PA, V_O = t + 5, t + 6, t + 1
        OWN_LDS = self.wslot[32] * SLOT
        e.raw("s_nop 7")
        for g in range(NG):
            if g in self.sent: continue
            for (tx, kk) in self.granule_items(g): e.raw(tx)
        e.raw(f"""
        s_sub_u32 s88, s{S_W}, s{S_KQ}
        s_sub_u32 s88, s88, 1
        s_and_b32 s88, s88, 3
        s_add_u32 s85, s84, s{S_KQ}
        s_lshl_b32 s85, s85, 2
        s_lshl_b32 s87, s88, 12
        s_add_u32 s87, s87, {P_OFF}
        """)
        for d in range(1, 4):
            e.raw(f"""
            s_add_u32 s86, s{S_KQ}, {d}
            s_and_b32 s86, s86, 3
            s_add_u32 s86, s86, s85
            s_mul_i32 s86, s86, {BOX}
            s_add_u32 s{S_TW+d}, s86, s87""")
        e.raw(f"""
        v_min_u32 v{t+7}, 2, v1
        v_mov_b32 v{t+8}, s{S_TW+1}
        v_mov_b32 v{V_BAD}, s{S_TW+2}
        v_cmp_eq_u32 vcc, 1, v{t+7}
        s_mul_i32 s87, s88, 6144
        s_add_u32 s87, s87, {OWN_LDS}
        v_cndmask_b32 v{t+8}, v{t+8}, v{V_BAD}, vcc
        v_mov_b32 v{V_BAD}, s{S_TW+3}
        v_cmp_eq_u32 vcc, 2, v{t+7}
        s_lshl_b32 s86, s{S_M}, 7
        s_lshl_b32 s85, s{S_KQ}, 5
        v_cndmask_b32 v{t+8}, v{t+8}, v{V_BAD}, vcc
        v_add_u32 v{V_PA}, {3*1024+1020}, v{t+8}
        s_add_u32 s86, s86, s85
        s_mul_i32 s86, s86, 1152
        s_mul_i32 s85, s{S_J}, 288
        s_add_u32 s86, s86, s85
        s_mul_i32 s85, s88, 96
        s_add_u32 s86, s86, s85
        v_and_b32 v{V_O}, 15, v1
        v_mul_u32_u24 v{V_O}, 1152, v{V_O}
        v_add_u32 v{V_O}, v{V_O}, v{V_BI}
        v_add_u32 v{V_O+1}, {16*1152}, v{V_O}
        v_add_u32 v{V_FL}, s87, v{t}
        s_mov_b32 s89, 0xffff0000
        """)
        POLL = f"buffer_load_dword v{V_P}, v{V_PA}, s[{S_WS}:{S_WS+3}], 0 offen sc1"
        OPT_ = opt("optim", "0") == "1"
        OWNP = opt("ownpoll", "0") == "1"
        if not OPT_ and not OWNP: e.raw(POLL)
        e.raw("s_barrier")
        OWN = [ACC_B + 4 * i for i in range(6)]
        zones = [ACC_B + 24 + 4 * i for i in range(12)]
        for kl in range(6): e.raw(f"ds_read_b128 v[{OWN[kl]}:{OWN[kl]+3}], v{V_FL} offset:{kl*1024}")
        zone = lambda g, d: zones[3 * g + d]
        S = [36, 37, 38, 39]; U = [40, 41, 42]; X = [43, 44]
        e.raw(f"s_mov_b32 s91, {SPIN_LIMIT}\ns_mov_b32 s3, 64")
        if OWNP:
            MB = OWN_LDS + 18 * 1024
            e.raw(f"""
            s_and_b32 s85, s{S_N}, 0xfffffff8
            s_lshl_b32 s87, 1, s88
            s_or_b32 s85, s85, s87
            s_or_b32 s87, s87, 0xfffffff8
            v_mov_b32 v{t+7}, {MB}
            L_mb:
            ds_read_b32 v{t+8}, v{t+7}
            s_waitcnt lgkmcnt(0)
            v_readfirstlane_b32 s90, v{t+8}
            s_sub_u32 s91, s91, 1
            s_cmp_le_i32 s91, 0
            s_cbranch_scc1 L_tw_go
            s_and_b32 s90, s90, s87
            s_cmp_eq_u32 s90, s85
            s_cbranch_scc0 L_mb
            s_branch L_tw_go""")
        elif OPT_:
            e.raw("s_waitcnt vmcnt(0)\ns_branch L_tw_go")
        e.raw(f"L_redo:\ns_mov_b32 s91, {SPIN_LIMIT}")
        e.raw(f"""
        L_tw_chk:
        s_waitcnt vmcnt(0)
        v_cmp_ne_u32 vcc, s{S_N}, v{V_P}
        s_nop 3
        s_cmp_eq_u64 vcc, 0
        s_cbranch_scc1 L_tw_go
        s_sub_u32 s91, s91, 1
        s_cmp_le_i32 s91, 0
        s_cbranch_scc1 L_tw_go
        {POLL}
        s_branch L_tw_chk
        L_tw_go:""")
        stamp(e, 7) if opt("stamp7", "poll") == "poll" and not opt("pstamp") else None
        e.raw(f"v_mov_b32 v{V_BAD}, 0")
        vm = []
        for g in range(4):
            for d in range(3):
                r = zone(g, d)
                e.raw(f"buffer_load_dwordx4 v[{r}:{r+3}], v{t}, s[{S_WS}:{S_WS+3}], s{S_TW+1+d} offen offset:{g*1024} sc1")
                vm.append(('L', g))
        e.raw("s_waitcnt lgkmcnt(0)")
        done_g = set()
        def need_granule(g):
            if g in done_g: return
            done_g.add(g)
            last = max(i for i, v in enumerate(vm) if v == ('L', g))
            e.raw(f"s_waitcnt vmcnt({min(len(vm) - 1 - last, 63)})")
            z = [zone(g, d) + 3 for d in range(3)]
            e.raw(f"""
            v_xor_b32 v{X[0]}, s{S_N}, v{z[0]}
            v_xor_b32 v{X[1]}, s{S_N}, v{z[1]}
            v_or3_b32 v{V_BAD}, v{X[0]}, v{X[1]}, v{V_BAD}
            v_xor_b32 v{X[0]}, s{S_N}, v{z[2]}
            v_or_b32 v{V_BAD}, v{X[0]}, v{V_BAD}""")
        if opt("earlychk", "0") == "1":
            for g in range(4): need_granule(g)
            e.raw(f"""
            v_cmp_ne_u32 vcc, 0, v{V_BAD}
            s_nop 3
            s_cmp_eq_u64 vcc, 0
            s_cbranch_scc1 L_tags_ok
            s_sub_u32 s3, s3, 1
            s_cmp_eq_u32 s3, 0
            s_cbranch_scc1 L_tags_ok
            {POLL}
            s_branch L_redo
            L_tags_ok:""")
        for kl in range(6):
            ntl, tt = kl // 2, kl % 2
            for v in range(4 * kl, 4 * kl + 4): need_granule(v // 6)
            for x in range(4):
                v = 4 * kl + x; g, pos = v // 6, v % 6
                for d in range(3):
                    src = zone(g, d) + pos // 2
                    e.raw(f"v_lshlrev_b32 v{U[d]}, 16, v{src}" if pos % 2 == 0 else f"v_and_b32 v{U[d]}, s89, v{src}")
                e.raw(f"v_add_f32 v{S[x]}, v{OWN[kl]+x}, v{U[0]}\nv_add_f32 v{U[1]}, v{U[1]}, v{U[2]}\nv_add_f32 v{S[x]}, v{S[x]}, v{U[1]}")
            o = (46 if kl % 2 == 0 else 2)
            e.raw(f"v_cvt_pk_bf16_f32 v{o}, v{S[0]}, v{S[1]}\nv_cvt_pk_bf16_f32 v{o+1}, v{S[2]}, v{S[3]}")
            e.raw(f"buffer_store_dwordx2 v[{o}:{o+1}], v{V_O+tt}, s[{S_OUT}:{S_OUT+3}], s86 offen offset:{32*ntl}" + (" sc1" if opt("outsc1") else ""))
            vm.append(('S', kl))
        if opt("earlychk", "0") != "1":
            e.raw(f"""
            v_cmp_ne_u32 vcc, 0, v{V_BAD}
            s_nop 3
            s_cmp_eq_u64 vcc, 0
            s_cbranch_scc1 L_tdone
            s_sub_u32 s3, s3, 1
            s_cmp_eq_u32 s3, 0
            s_cbranch_scc1 L_tdone
            s_waitcnt vmcnt(0)
            {POLL}
            s_branch L_redo
            L_tdone:
            """)
        if STAMP:
            e.raw(f"s_sub_u32 s85, s{S_W}, s{S_KQ}\ns_and_b32 s85, s85, 3\ns_cmp_eq_u32 s85, 1\ns_cbranch_scc0 L_end")
            e.raw("s_waitcnt vmcnt(0)")
            if opt("stamp7") == "end" and not opt("pstamp"): stamp(e, 7)
            e.raw(f"""
            s_lshl_b32 s84, s2, 5
            s_add_u32 s84, s84, {STAMP_OFF}
            v_lshlrev_b32 v{t+1}, 2, v1
            v_mov_b32 v{t+2}, {OOB}
            v_cmp_gt_u32 vcc, 8, v1
            s_nop 1
            v_cndmask_b32 v{t+1}, v{t+2}, v{t+1}, vcc
            buffer_store_dword v{V_ST}, v{t+1}, s[{S_WS}:{S_WS+3}], s84 offen sc1""")
            if opt("chunkstamp") or opt("both"):
                e.raw(f"s_lshl_b32 s84, s2, 8\ns_add_u32 s84, s84, {STAMP_OFF + 65536}\nv_lshlrev_b32 v{t+1}, 2, v1\nbuffer_store_dword v63, v{t+1}, s[{S_WS}:{S_WS+3}], s84 offen sc1")
            e.raw("s_waitcnt vmcnt(0)")

def kd(name, vgpr, accum, sgpr=102):
    return f""".section .rodata,"a"
.p2align 6
.amdhsa_kernel {name}
  .amdhsa_next_free_vgpr {vgpr}
  .amdhsa_next_free_sgpr {sgpr}
  .amdhsa_accum_offset {accum}
  .amdhsa_group_segment_fixed_size 0
  .amdhsa_kernarg_size 64
  .amdhsa_user_sgpr_count 2
  .amdhsa_user_sgpr_kernarg_segment_ptr 1
  .amdhsa_system_sgpr_workgroup_id_x 1
.end_amdhsa_kernel
"""

def gen_amp(name, a, b, amp, wg):
    return f""".globl {name}
.p2align 8
.type {name},@function
{name}:
    s_cmp_ge_u32 s2, 1
    s_cbranch_scc1 L_{name}_end
    s_load_dwordx2 s[4:5], s[0:1], 56
    s_waitcnt lgkmcnt(0)
    s_mov_b32 s8, s4
    s_mov_b32 s9, s5
    s_mov_b32 s10, {WS_BYTES}
    s_mov_b32 s11, 0x20000
    v_mov_b32 v1, {STAMP_OFF + 32 * wg}
    buffer_load_dword v2, v1, s[8:11], 0 offen offset:{4*a} sc1
    buffer_load_dword v3, v1, s[8:11], 0 offen offset:{4*b} sc1
    s_waitcnt vmcnt(0)
    v_sub_u32 v2, v3, v2
    s_nop 1
    v_readfirstlane_b32 s12, v2
    s_nop 3
    s_min_u32 s12, s12, 20000
    s_mul_i32 s12, s12, {amp}
    s_memrealtime s[14:15]
    s_waitcnt lgkmcnt(0)
    s_mov_b32 s13, s14
L_{name}_spin:
    s_memrealtime s[14:15]
    s_waitcnt lgkmcnt(0)
    s_sub_u32 s16, s14, s13
    s_cmp_lt_u32 s16, s12
    s_cbranch_scc1 L_{name}_spin
L_{name}_end:
    s_endpgm
""" + kd(name, 8, 8, 32) + ".text\n"

def main(path):
    g = Gen()
    body = g.build()
    launch = f"; @launch grid=(256,1,1) block=(256,1,1) lds={LDS_BYTES}"
    if opt("amp"):
        launch = f"; @launch kernel={KNAME} grid=(256,1,1) block=(256,1,1) lds={LDS_BYTES}\n; @launch kernel=mlp_amp_kernel grid=(1,1,1) block=(64,1,1) lds=0"
    txt = f"""; Fused MLP  out = relu(x@w1+b1)^2 @ w2 + b2   (one workgroup per CU, split-K over 4, see generator notes)
{launch}
.amdgcn_target "amdgcn-amd-amdhsa--gfx950"
.text
.globl {KNAME}
.p2align 8
.type {KNAME},@function
{KNAME}:
""" + body + kd(KNAME, 512, 256)
    if opt("amp"):
        a, b = [int(v) for v in opt("amp").split("_")]
        txt += ".text\n" + gen_amp("mlp_amp_kernel", a, b, iopt("ampx", 20), iopt("ampwg", 37))
    open(path, "w").write(txt)

if __name__ == "__main__":
    main(sys.argv[1] if len(sys.argv) > 1 else "f4.s")
```

```python
import sys, os
from emit import Emitter

OPT = dict(kv.split("=") if "=" in kv else (kv, 1) for kv in os.environ.get("GOPT", "").split(",") if kv)
def opt(k, d=None): return OPT.get(k, d)
def iopt(k, d): return int(OPT.get(k, d))

KNAME = "standalone__dense_activation_squared_relu__prompt_kernel"
X_BYTES, W1_BYTES, B1_BYTES, W2_BYTES, B2_BYTES, OUT_BYTES = 2359296, 5308416, 9216, 5308416, 1152, 2359296
WS_BYTES = 268435456
H_OFF = 0
P_OFF = 20 << 20
FL_OFF = 40 << 20
EP_OFF = 41 << 20
STAMP_OFF = 128 << 20
OOB = 0x40000000
SLOT = 20480
NSLOT = 8
LDS_BYTES = NSLOT * SLOT
BIAS_LDS = 4 * SLOT + 16384
SPIN_LIMIT = 1 << 16
TAGMASK = 0xFFF

S_X, S_W1, S_B1, S_WS, S_W2, S_OUT = 4, 8, 12, 16, 20, 24
S_W, S_M, S_S, S_PAR, S_KQ, S_J = 28, 29, 30, 31, 32, 33
S_CBA, S_CBB, S_WSO, S_MW, S_MX = 34, 35, 36, 38, 39
S_HSO, S_T, S_T2, S_N = 40, 41, 42, 43
S_TW, S_TX = 44, 53
S_SO2 = 62
S_HB = 80
S_DBG = 92
KA = 64
V_WA, V_WB, V_X, V_W2 = 2, 6, 11, 15
V_TA, V_TB, V_T2, V_XR = 20, 36, 42, 45
V_HS, V_BI, V_FL, V_FS, V_P, V_NP = 47, 48, 49, 50, 51, 52
V_T = 53
V_ST = 62
ACC_A, ACC_B, BIASB = 64, 128, 208
AX, AW, AH, AB2 = 0, 144, 0, 224
HD = iopt("HD", 8)
STAMP = bool(opt("stamp"))
NT1 = " nt" if opt("ntw1", "0") == "1" else ""
NTX = " nt" if opt("ntx", "0") == "1" else ""

def acc2(nt, t):
    return (BIASB + 8 * nt + 4 * t) if nt < 5 else (ACC_A + 16 * (nt - 5) + 8 + 4 * t)
def srd(dst, ptr, nbytes):
    return [f"s_mov_b32 s{dst}, s{ptr}", f"s_mov_b32 s{dst+1}, s{ptr+1}", f"s_mov_b32 s{dst+2}, {nbytes}", f"s_mov_b32 s{dst+3}, 0x20000"]
def lines(s): return [x.strip() for x in s.strip().split("\n") if x.strip()]
def stamp(e, idx, pro=False):
    if not STAMP or (opt("chunkstamp") and idx != 0): return
    if opt("pstamp") and (pro != (idx >= 3)) and idx not in (0,):
        if not (pro and idx < 3): return
    ins = "s_memtime" if opt("cyc") else "s_memrealtime"
    e.raw(f"{ins} s[90:91]\ns_waitcnt lgkmcnt(0)\nv_writelane_b32 v{V_ST}, s90, {idx}")
    if opt("both"):
        e.raw(f"s_memtime s[90:91]\ns_waitcnt lgkmcnt(0)\nv_writelane_b32 v63, s90, {idx}")

def ksteps2():
    grp = lambda frs: [(d, i) for d in (1, 2, 3) for i in frs]
    seq = [(0, i) for i in range(9)] + grp((0, 1, 2, 3)) + grp((4, 5, 6)) + grp((7, 8))
    assert len(seq) == 36
    return seq
SEQ2 = ksteps2()
PEERS = [q for q, (d, i) in enumerate(SEQ2) if d != 0]
RING = {q: n % HD for n, q in enumerate(PEERS)}
PARTS = [((0, 1, 2, 3), iopt("pub0", 33), iopt("pol0", 0), iopt("chk0", 3)),
         ((4, 5, 6), iopt("pub1", 47), iopt("pol1", 15), iopt("chk1", 17)),
         ((7, 8), iopt("pub2", 55), iopt("pol2", 23), iopt("chk2", 25))]
def part_of(i): return [p for p, x in enumerate(PARTS) if i in x[0]][0]
OWNB = {SEQ2[q][1]: q for q in range(36) if SEQ2[q][0] == 0 and SEQ2[q][1] >= 4}
STEPS = [('A', k) for k in range(18)] + [('B', k) for k in range(18)] + [('P', q) for q in range(36)]
def nfrag(kind): return {'A': 8, 'B': 10, 'P': 9}[kind]
GOS = []
_g = 0
for (_k, _) in STEPS:
    GOS.append(_g); _g += 2 * nfrag(_k)
GOS.append(_g)

class Gen:
    def __init__(self):
        self.e = Emitter()
        self.wslot = {}
        self.free = []
        self.slow = []
        self.nlabel = 0

    def setup_first(self):
        t = V_T
        L = lines(f"""
        s_and_b32 s84, s2, 7
        s_lshr_b32 s85, s2, 3
        v_lshrrev_b32 v{t}, 6, v0
        v_and_b32 v1, 63, v0
        s_and_b32 s{S_KQ}, s84, 3
        v_readfirstlane_b32 s{S_W}, v{t}
        s_lshr_b32 s86, s84, 2
        s_lshr_b32 s87, s85, 2
        s_and_b32 s{S_J}, s85, 3
        s_lshl_b32 s86, s86, 3
        s_add_u32 s{S_M}, s86, s87
        s_lshl_b32 s{S_S}, s{S_KQ}, 2
        s_add_u32 s{S_S}, s{S_S}, s{S_J}
        s_and_b32 s{S_PAR}, s{S_J}, 1
        """)
        rot = opt("rot", "jm")
        if rot == "0": L += ["s_mov_b32 s84, 0"]
        elif rot == "j": L += lines(f"s_mul_i32 s84, s{S_J}, 9\ns_lshr_b32 s84, s84, 2")
        elif rot == "jm": L += lines(f"s_lshl_b32 s84, s{S_J}, 1\ns_add_u32 s84, s84, s87\ns_cmp_ge_u32 s84, 9\ns_cselect_b32 s85, 9, 0\ns_sub_u32 s84, s84, s85")
        elif rot == "jm2": L += lines(f"s_lshl_b32 s84, s{S_J}, 1\ns_and_b32 s85, s87, 1\ns_mul_i32 s85, s85, 5\ns_add_u32 s84, s84, s85\ns_cmp_ge_u32 s84, 9\ns_cselect_b32 s85, 9, 0\ns_sub_u32 s84, s84, s85")
        L += [f"s_mov_b32 s88, s84", f"s_mul_i32 s89, s{S_M}, 147456", f"s_mul_i32 s{S_TW}, s84, 589824",
              "s_lshl_b32 s86, s84, 7", f"s_add_u32 s{S_TX}, s89, s86"]
        L += lines(f"""
        s_mul_i32 s{S_CBA}, s{S_S}, 576
        s_mul_i32 s{S_T}, s{S_PAR}, 320
        s_add_u32 s{S_CBB}, s{S_CBA}, 256
        s_add_u32 s{S_CBA}, s{S_CBA}, s{S_T}
        s_lshl_b32 s{S_T}, s{S_PAR}, 8
        s_sub_u32 s{S_CBB}, s{S_CBB}, s{S_T}
        s_lshl_b32 s{S_MX}, s{S_W}, 12
        s_mul_i32 s{S_MW}, s{S_W}, 5120
        s_mul_i32 s{S_T}, s{S_W}, {32*1152}
        v_lshrrev_b32 v{t}, 3, v1
        v_lshrrev_b32 v{t+1}, 4, v1
        v_and_b32 v{t+2}, 7, v1
        v_mul_u32_u24 v{t}, 1152, v{t}
        v_add_u32 v{t}, s{S_T}, v{t}
        """)
        for q in range(4):
            L += lines(f"""
            v_add_u32 v{t+3}, {4*q}, v{t+1}
            v_and_b32 v{t+3}, 7, v{t+3}
            v_xor_b32 v{t+3}, v{t+2}, v{t+3}
            v_lshl_add_u32 v{t+3}, v{t+3}, 4, v{t}
            v_add_u32 v{V_X+q}, {q*(8*1152-1024)}, v{t+3}""")
        L += lines(f"""
        s_mul_i32 s{S_T}, s{S_W}, {16*9216}
        v_and_b32 v{t+2}, 15, v1
        v_mul_u32_u24 v{t}, 9216, v{t+1}
        v_add_u32 v{t}, s{S_T}, v{t}
        v_lshlrev_b32 v{t+3}, 1, v{t+1}
        v_xor_b32 v{t+3}, v{t+2}, v{t+3}
        v_xor_b32 v{t+4}, 8, v{t+3}
        v_lshl_add_u32 v{V_WA}, v{t+3}, 4, v{t}
        v_lshl_add_u32 v{t+4}, v{t+4}, 4, v{t}
        v_add_u32 v{V_WA+1}, {4*9216-1024}, v{V_WA}
        v_add_u32 v{V_WA+2}, {8*9216-2048}, v{t+4}
        v_add_u32 v{V_WA+3}, {12*9216-3072}, v{t+4}
        v_lshlrev_b32 v{V_BI}, 3, v{t+1}
        """)
        L += lines(f"""
        v_lshlrev_b32 v{t+4}, 4, v1
        v_mov_b32 v{t+3}, {OOB}
        v_cmp_gt_u32 vcc, 36, v1
        s_mul_i32 s86, s{S_S}, 576
        s_mul_i32 s87, s{S_J}, 288
        v_cndmask_b32 v{t+5}, v{t+3}, v{t+4}, vcc
        v_cmp_gt_u32 vcc, 18, v1
        s_nop 1
        v_cndmask_b32 v{t+6}, v{t+3}, v{t+4}, vcc
        """)
        return L

    def setup_tables(self):
        L = []
        for c in range(1, 9):
            L += ["s_add_u32 s88, s88, 1", "s_cmp_eq_u32 s88, 9", "s_cselect_b32 s88, 0, s88",
                  f"s_mul_i32 s{S_TW+c}, s88, 589824", "s_lshl_b32 s84, s88, 7", f"s_add_u32 s{S_TX+c}, s89, s84"]
        return L
    def setup_reads_A(self):
        t = V_T
        L = lines(f"""
        v_lshrrev_b32 v{t}, 4, v1
        v_and_b32 v{t+1}, 1, v{t}
        v_lshrrev_b32 v{t+2}, 1, v{t}
        v_and_b32 v{t+3}, 15, v1
        v_lshrrev_b32 v{t+4}, 2, v{t+3}
        v_and_b32 v{t+3}, 3, v{t+3}
        v_lshl_add_u32 v{V_TB+4}, v{t+1}, 3, v{t+4}
        v_lshlrev_b32 v{V_TB+5}, 8, v{V_TB+4}
        v_lshl_add_u32 v{V_TB+5}, v{t+2}, 12, v{V_TB+5}
        v_lshl_add_u32 v{V_TB+5}, v{t+3}, 3, v{V_TB+5}
        v_lshl_add_u32 v{V_TA}, v{t+1}, 2, v{t+4}
        v_lshl_add_u32 v{V_TB+5}, v{V_TA}, 5, v{V_TB+5}
        """)
        for ft in range(8): L.append(f"v_xor_b32 v{V_TA+ft}, {ft*32}, v{V_TB+5}")
        for ft in range(8): L.append(f"v_add_u32 v{V_TA+8+ft}, {3*SLOT}, v{V_TA+ft}")
        L += lines(f"""
        v_and_b32 v{t}, 15, v1
        v_lshrrev_b32 v{t+1}, 4, v1
        v_lshrrev_b32 v{t+2}, 1, v{t}
        v_xor_b32 v{t+1}, v{t+1}, v{t+2}
        v_lshlrev_b32 v{t+1}, 4, v{t+1}
        v_lshl_add_u32 v{t+1}, v{t}, 7, v{t+1}
        v_add_u32 v{t+1}, {5*SLOT}, v{t+1}
        v_add_u32 v{V_XR}, s{S_MX}, v{t+1}
        v_xor_b32 v{t+1}, 64, v{t+1}
        v_add_u32 v{V_XR+1}, s{S_MX}, v{t+1}
        """)
        return L

    def setup_late(self):
        t = V_T + 3
        L = lines(f"s_mul_i32 s84, s{S_W}, {16*9216}")
        for q in range(5):
            L += lines(f"""
            v_add_u32 v{t}, {64*q}, v1
            v_mul_u32_u24 v{t+1}, 205, v{t}
            v_lshrrev_b32 v{t+1}, 12, v{t+1}
            v_mul_u32_u24 v{t+2}, 20, v{t+1}
            v_sub_u32 v{t+2}, v{t}, v{t+2}
            v_lshrrev_b32 v{t+3}, 2, v{t+1}
            v_and_b32 v{t+3}, 2, v{t+3}
            v_xor_b32 v{t+2}, v{t+2}, v{t+3}
            v_mul_u32_u24 v{t+3}, 9216, v{t+1}
            v_lshl_add_u32 v{t+3}, v{t+2}, 4, v{t+3}
            v_add_u32 v{V_WB+q}, s84, v{t+3}""")
            if q & 3: L.append(f"v_subrev_u32 v{V_WB+q}, {(q&3)*1024}, v{V_WB+q}")
        L += lines(f"""
        s_lshl_b32 s84, s{S_W}, 11
        s_lshl_b32 s85, s{S_M}, 4
        s_add_u32 s85, s85, s{S_S}
        s_mul_i32 s{S_HSO}, s85, 73728
        v_lshl_add_u32 v{V_HS}, v1, 4, s84
        s_lshl_b32 s85, s85, 7
        s_add_u32 s85, s85, {FL_OFF}
        v_mov_b32 v{t}, s85
        v_mov_b32 v{t+1}, {OOB}""")
        L.append(f"v_cmp_eq_u32 vcc, 0, v1\n    s_nop 1\n    v_cndmask_b32 v{V_FS}, v{t+1}, v{t}, vcc")
        L += lines(f"""
        v_lshrrev_b32 v{t}, 4, v1
        v_and_b32 v{t+1}, 1, v{t}
        v_lshrrev_b32 v{t+2}, 1, v{t}
        v_and_b32 v{t+3}, 15, v1
        v_lshrrev_b32 v{t+4}, 2, v{t+3}
        v_and_b32 v{t+3}, 3, v{t+3}
        v_lshl_add_u32 v{V_TB+4}, v{t+1}, 3, v{t+4}
        v_mul_u32_u24 v{V_TB+4}, 320, v{V_TB+4}
        v_mul_u32_u24 v{V_TB+5}, 5120, v{t+2}
        v_add_u32 v{V_TB+4}, v{V_TB+4}, v{V_TB+5}
        v_lshl_add_u32 v{V_TB+4}, v{t+3}, 3, v{V_TB+4}
        v_lshlrev_b32 v{t+1}, 5, v{t+1}
        v_add_u32 v{V_TB}, v{V_TB+4}, v{t+1}
        v_sub_u32 v{V_TB+1}, v{V_TB+4}, v{t+1}
        v_add_u32 v{V_TB+2}, {3*SLOT}, v{V_TB}
        v_add_u32 v{V_TB+3}, {3*SLOT}, v{V_TB+1}
        v_add_u32 v{V_TB+4}, {6*SLOT}, v{V_TB}
        v_add_u32 v{V_TB+5}, {6*SLOT}, v{V_TB+1}
        v_lshl_add_u32 v{t+4}, v{t}, 2, v{t+4}
        v_mul_u32_u24 v{t+4}, 288, v{t+4}
        v_lshl_add_u32 v{V_T2}, v{t+3}, 3, v{t+4}
        v_add_u32 v{V_T2+1}, {3*SLOT}, v{V_T2}
        v_add_u32 v{V_T2+2}, {6*SLOT}, v{V_T2}""")
        L.append("@P2")
        L += lines(f"""
        s_lshl_b32 s85, s{S_M}, 2
        s_add_u32 s85, s85, s{S_KQ}
        s_lshl_b32 s85, s85, 9
        s_add_u32 s85, s85, {FL_OFF}
        v_and_b32 v{t}, 3, v1
        v_min_u32 v{t}, 2, v{t}
        v_add_u32 v{t}, 1, v{t}
        v_add_u32 v{t}, s{S_J}, v{t}
        v_and_b32 v{t}, 3, v{t}
        v_lshlrev_b32 v{t}, 7, v{t}
        v_add_u32 v{V_FL}, s85, v{t}
        s_and_b32 s84, s{S_W}, 1
        s_mul_i32 s84, s84, {16*1152}
        """)
        for q in range(5):
            L += lines(f"""
            v_add_u32 v{t}, {64*q}, v1
            v_mul_u32_u24 v{t+1}, 57, v{t}
            v_lshrrev_b32 v{t+1}, 10, v{t+1}
            v_mul_u32_u24 v{t+2}, 18, v{t+1}
            v_sub_u32 v{t+2}, v{t}, v{t+2}
            v_mul_u32_u24 v{t+3}, 1152, v{t+1}
            v_lshl_add_u32 v{t+3}, v{t+2}, 4, v{t+3}
            v_add_u32 v{V_W2+q}, s84, v{t+3}""")
            if q & 3: L.append(f"v_subrev_u32 v{V_W2+q}, {(q&3)*1024}, v{V_W2+q}")
        L.append(f"v_mov_b32 v{t}, {OOB}")
        L.append(f"v_cmp_gt_u32 vcc, 32, v1\n    s_nop 1\n    v_cndmask_b32 v{V_W2+4}, v{t}, v{V_W2+4}, vcc")
        L += lines(f"""
        s_mul_i32 s0, s{S_PAR}, {160*1152}
        s_sub_u32 s1, {160*1152}, s0
        s_mul_i32 s3, s{S_PAR}, {-128*1152}
        s_sub_u32 s37, {-128*1152}, s3
        s_mul_i32 s88, s{S_J}, 288
        """)
        for d in range(4):
            L += lines(f"""
            s_add_u32 s{84+d}, s{S_J}, {d}
            s_and_b32 s{84+d}, s{84+d}, 3
            s_lshl_b32 s89, s{S_KQ}, 2
            s_add_u32 s{84+d}, s{84+d}, s89
            s_lshl_b32 s89, s{S_M}, 4
            s_add_u32 s89, s89, s{84+d}
            s_mul_i32 s{S_HB+d}, s89, 73728
            s_mul_i32 s{84+d}, s{84+d}, {288*1152}
            s_add_u32 s{84+d}, s{84+d}, s88""")
        for c in range(18):
            (d0, i0), (d1, i1) = SEQ2[2 * c], SEQ2[2 * c + 1]
            def corr(d, i): return (0 if d % 2 == 0 else 1) if i < 4 else (3 if d % 2 == 0 else 37)
            L += lines(f"""
            s_add_u32 s88, s{84+d0}, s{corr(d0,i0)}
            s_add_u32 s88, s88, {32*i0*1152}
            s_add_u32 s89, s{84+d1}, s{corr(d1,i1)}
            s_add_u32 s89, s89, {32*i1*1152}""")
            L.append(f"s_cmp_lt_u32 s{S_W}, 2\n    s_cselect_b32 s{S_SO2+c}, s88, s89")
        return L

    def pf1_setup(self):
        t = V_T
        return lines(f"""
        s_and_b32 s84, s{S_M}, 7
        s_lshl_b32 s84, s84, 2
        s_add_u32 s84, s84, s{S_J}
        s_lshl_b32 s84, s84, 2
        s_add_u32 s84, s84, s{S_W}
        s_lshr_b32 s85, s{S_M}, 3
        s_lshl_b32 s85, s85, 10
        s_lshl_b32 s86, s84, 3
        s_add_u32 s85, s85, s86
        s_mul_i32 s85, s85, 1152
        v_lshrrev_b32 v{t+2}, 3, v1
        v_and_b32 v{t+3}, 7, v1
        v_mul_u32_u24 v{t+3}, 1152, v{t+3}
        v_lshl_add_u32 v{t+3}, v{t+2}, 7, v{t+3}
        v_add_u32 v{t+3}, 256, v{t+3}
        v_add_u32 v{t+3}, s85, v{t+3}
        v_mov_b32 v{t+4}, {OOB}
        v_cmp_gt_u32 vcc, 56, v1
        s_lshl_b32 s84, s84, 2
        s_mul_i32 s85, s{S_KQ}, {4*576}
        v_cndmask_b32 v{t}, v{t+4}, v{t+3}, vcc
        v_and_b32 v{t+2}, 3, v1
        v_add_u32 v{t+2}, s84, v{t+2}
        v_lshrrev_b32 v{t+3}, 3, v{t+2}
        v_lshrrev_b32 v{t+1}, 2, v1
        v_lshl_add_u32 v{t+3}, v{t+1}, 6, v{t+3}
        v_add_u32 v{t+3}, 128, v{t+3}
        v_mul_u32_u24 v{t+3}, 9216, v{t+3}
        v_and_b32 v{t+2}, 7, v{t+2}
        v_lshrrev_b32 v{t+1}, 1, v{t+2}
        v_mul_u32_u24 v{t+5}, 576, v{t+1}
        v_add_u32 v{t+3}, v{t+3}, v{t+5}
        v_and_b32 v{t+1}, 1, v{t+1}
        v_mul_u32_u24 v{t+1}, 320, v{t+1}
        v_add_u32 v{t+3}, v{t+3}, v{t+1}
        v_and_b32 v{t+2}, 1, v{t+2}
        v_lshl_add_u32 v{t+3}, v{t+2}, 7, v{t+3}
        v_add_u32 v{t+3}, s85, v{t+3}
        v_cmp_gt_u32 vcc, 28, v1
        s_nop 1
        v_cndmask_b32 v{t+1}, v{t+4}, v{t+3}, vcc
        """)
    def w_items(self, C):
        slot = self.wslot[C]
        if C < 9:
            it = [(f"s_add_u32 s{S_WSO}, s{S_CBA}, s{S_TW+C}", 's', None),
                  (f"s_add_u32 m0, s{S_MX}, {slot*SLOT}", 's', None)]
            for q in range(4):
                it.append((f"buffer_load_dwordx4 v{V_WA+q}, s[{S_W1}:{S_W1+3}], s{S_WSO} offen offset:{q*1024}" + NT1 + " lds", 'm', ('W', C)))
            return it
        if C < 18:
            vb, sr, so = V_WB, S_W1, S_WSO
            it = [(f"s_add_u32 s{S_WSO}, s{S_CBB}, s{S_TW+C-9}", 's', None)]
        else:
            vb, sr, so = V_W2, S_W2, S_SO2 + C - 18
            it = []
        nt = NT1 if C < 18 else ""
        it.append((f"s_add_u32 m0, s{S_MW}, {slot*SLOT}", 's', None))
        for q in range(4):
            it.append((f"buffer_load_dwordx4 v{vb+q}, s[{sr}:{sr+3}], s{so} offen offset:{q*1024}{nt} lds", 'm', ('W', C)))
        it.append((f"s_add_u32 m0, s{S_MW}, {slot*SLOT+4096}", 's', None))
        it.append((f"buffer_load_dwordx4 v{vb+4}, s[{sr}:{sr+3}], s{so} offen{nt} lds", 'm', ('W', C)))
        return it
    def x_items(self, c):
        slot = 5 + c % 3
        it = [(f"s_add_u32 m0, s{S_MX}, {slot*SLOT}", 's', None)]
        for q in range(4):
            it.append((f"buffer_load_dwordx4 v{V_X+q}, s[{S_X}:{S_X+3}], s{S_TX+c} offen offset:{q*1024}" + NTX + " lds", 'm', ('X', c)))
        return it
    def push_dma(self, items, early, need, cost):
        e = self.e
        nm = sum(1 for it in items if it[1] == 'm')
        dmin = iopt("dmin", 40)
        k = 0
        for (t, kind, tag) in items:
            late = max(early + 1 + k, int(need - dmin - (nm - 1 - min(k, nm - 1)) * cost))
            if kind == 'm':
                e.push('dma', t, kind, tag, early=early, late=late, cost=cost)
                k += 1
            else:
                e.push('dma', t, kind, tag, early=early, late=max(early, late - 1))
        self.tighten('dma')
    def tighten(self, stream):
        q = self.e.streams.get(stream, [])
        for i in range(len(q) - 2, -1, -1):
            sp = q[i].cost if q[i].kind == 'm' else 1
            lim = q[i + 1].late - sp
            if q[i].late > lim: q[i].late = max(q[i].early, int(lim))

    def frag_reads(self, si):
        kind, k = STEPS[si]
        C, ks = si // 2, si % 2
        slot = self.wslot[C]
        dst0 = AW + 40 * (si % 2)
        out = []
        for f in range(nfrag(kind)):
            for h in range(2):
                d = dst0 + 4 * f + 2 * h
                if kind == 'A':
                    vb = V_TA + f + (8 if slot >= 3 else 0)
                    off = (slot % 3) * SLOT + ks * 8192 + h * 1024
                elif kind == 'B':
                    vb = V_TB + (f & 1) + 2 * (slot // 3)
                    off = (slot % 3) * SLOT + ks * 10240 + h * 1280 + f * 32
                else:
                    vb = V_T2 + slot // 3
                    off = (slot % 3) * SLOT + ks * 10240 + h * 5120 + f * 32
                out.append((f"ds_read_b64_tr_b16 a[{d}:{d+1}], v{vb} offset:{off}", ('WF', si, f)))
        return out
    def frag_read(self, si, f, h, dst):
        C, ks = si // 2, si % 2
        slot = self.wslot[C]
        off = (slot % 3) * SLOT + ks * 10240 + h * 5120 + f * 32
        d = dst + 2 * h
        return (f"ds_read_b64_tr_b16 a[{d}:{d+1}], v{V_T2 + slot // 3} offset:{off}", ('FB', si, f))
    def x_reads(self, kt):
        c, p = kt // 2, kt % 2
        return [(f"ds_read_b128 a[{AX+8*kt+4*t}:{AX+8*kt+4*t+3}], v{V_XR+p} offset:{(c%3)*SLOT + t*2048}", ('XF', kt)) for t in range(2)]

    def bias_cvt(self, n, base):
        out = []
        for ft in range(n):
            q = base + 4 * ft
            out += [f"v_lshlrev_b32 v{q}, 16, v{q+2}", f"v_and_b32 v{q+1}, 0xffff0000, v{q+2}",
                    f"v_lshlrev_b32 v{q+2}, 16, v{q+3}", f"v_and_b32 v{q+3}, 0xffff0000, v{q+3}"]
        return out
    def epi_items(self, acc, il, istore, t):
        P = acc + 16 * il + 4 * t; Q = P + 8
        it = []
        for r in range(4): it.append((f"v_mul_f32 v{P+r}, v{P+r}, |v{P+r}|", 'v', None))
        for r in range(4): it.append((f"v_mul_f32 v{Q+r}, v{Q+r}, |v{Q+r}|", 'v', None))
        it += [(f"v_cvt_pk_bf16_f32 v{P}, v{P}, v{P+1}", 'v', None), (f"v_cvt_pk_bf16_f32 v{P+1}, v{P+2}, v{P+3}", 'v', None),
               (f"v_cvt_pk_bf16_f32 v{P+2}, v{Q}, v{Q+1}", 'v', None), (f"v_cvt_pk_bf16_f32 v{P+3}, v{Q+2}, v{Q+3}", 'v', None)]
        for r in range(4): it.append((f"v_pk_max_i16 v{P+r}, v{P+r}, 0", 'v', None))
        if t == 0: it.append((f"s_add_u32 s{S_T2}, s{S_HSO}, {istore*8192}", 's', None))
        st = f"buffer_store_dwordx4 v[{P}:{P+3}], v{V_HS}, s[{S_WS}:{S_WS+3}], s{S_T2} offen offset:{t*1024}" + {"nt": " sc1 nt", "sc01": " sc0 sc1", "sc01nt": " sc0 sc1 nt"}.get(opt("hstf", ""), " sc1")
        if opt("x_nostB") and istore >= 4: st = f"buffer_load_dword v255, v{V_FS}, s[{S_WS}:{S_WS+3}], 0 offen offset:24"
        if opt("x_noepiB") and istore >= 4: it = [x for x in it if x[1] != 'v']
        it.append((st, 'm', ('HS', part_of(istore))))
        return it

    def poll_check(self, load_text, cond_bad, name):
        self.nlabel += 1
        lb = f"L_{name}_{self.nlabel}"
        self.slow.append(f"""
        {lb}_slow:
        s_mov_b32 s91, {SPIN_LIMIT}
        {lb}_spin:
        {load_text}
        s_waitcnt vmcnt(0)
        {cond_bad}
        s_nop 1
        s_cbranch_vccz {lb}_back
        s_sub_u32 s91, s91, 1
        s_cmp_lg_u32 s91, 0
        s_cbranch_scc1 {lb}_spin
        s_branch {lb}_back
        """)
        return f"{cond_bad}\n    s_nop 1\n    s_cbranch_vccnz {lb}_slow\n{lb}_back:"

    def prologue(self):
        e = self.e
        t = V_T
        stamp(e, 0)
        e.raw(f"""
        s_cmp_ge_u32 s2, 256
        s_cbranch_scc1 L_end
        s_load_dwordx16 s[{KA}:{KA+15}], s[0:1], 0
        """)
        if opt("icpf", "1") == "1":
            e.raw(f"""
            s_getpc_b64 s[90:91]
            L_pc:
            v_lshlrev_b32 v{t}, 7, v0
            v_min_u32 v{t+1}, L_code_end-L_pc-4, v{t}""")
            e.vmem(f"global_load_dword v255, v{t+1}, s[90:91]", 'IC')
            e.raw(f"v_add_u32 v{t}, 32768, v{t}\nv_min_u32 v{t+1}, L_code_end-L_pc-4, v{t}")
            e.vmem(f"global_load_dword v255, v{t+1}, s[90:91]", 'IC')
        for x in self.setup_first(): e.raw(x)
        stamp(e, 3, True) if opt("pstamp") else None
        e.raw("s_waitcnt lgkmcnt(0)")
        stamp(e, 4, True) if opt("pstamp") else None
        for x in srd(S_X, KA, X_BYTES) + srd(S_W1, KA + 2, W1_BYTES) + srd(S_B1, KA + 4, B1_BYTES) + srd(S_DBG, KA + 8, B2_BYTES): e.raw(x)
        self.wslot = {0: 0, 1: 1, 2: 2, 3: 3, 4: 4}
        def emit_items(items):
            for (tx, k, tag) in items:
                if k == 'm': e.vmem(tx, tag)
                else: e.raw(tx)
        emit_items([(f"s_mov_b32 m0, {BIAS_LDS}", 's', None),
                    (f"buffer_load_dwordx4 v{t+5}, s[{S_B1}:{S_B1+3}], s86 offen lds", 'm', 'BI'),
                    (f"s_mov_b32 m0, {BIAS_LDS+1024}", 's', None),
                    (f"buffer_load_dwordx4 v{t+6}, s[{S_DBG}:{S_DBG+3}], s87 offen lds", 'm', 'BI')])
        emit_items(self.x_items(0) + self.w_items(0))
        stamp(e, 5, True) if opt("pstamp") else None
        for x in srd(S_WS, KA + 14, WS_BYTES) + srd(S_W2, KA + 6, W2_BYTES) + srd(S_OUT, KA + 10, OUT_BYTES): e.raw(x)
        e.raw(f"s_mov_b32 s100, s{KA+12}\ns_mov_b32 s101, s{KA+13}\ns_nop 0")
        for x in self.setup_tables(): e.raw(x)
        for x in self.setup_reads_A(): e.raw(x)
        late = self.setup_late(); cut = late.index("@P2")
        for x in late[:cut]: e.raw(x)
        self.setup_p2 = late[cut + 1:]
        if opt("p2pro", "1") == "1":
            for x in self.setup_p2: e.raw(x)
            self.setup_p2 = []
        e.raw(f"""
        s_or_b32 s88, s2, s{S_W}
        v_mov_b32 v{t}, {OOB}
        v_mov_b32 v{t+1}, {EP_OFF}
        v_or_b32 v{t+2}, s88, v1
        v_cmp_eq_u32 vcc, 0, v{t+2}
        s_nop 1
        v_cndmask_b32 v{V_NP}, v{t}, v{t+1}, vcc""")
        e.raw(f"""
        s_mul_i32 s84, s{S_S}, 576
        s_sub_u32 s85, s{S_CBA}, s84
        s_sub_u32 s86, s{S_CBB}, s84
        s_add_u32 s85, s85, {BIAS_LDS}
        s_add_u32 s86, s86, {BIAS_LDS}
        v_add_u32 v{t}, s85, v{V_BI}
        v_add_u32 v{t+1}, s86, v{V_BI}
        v_add_u32 v{t+2}, {BIAS_LDS+1024}, v{V_BI}
        """)
        stamp(e, 6, True) if opt("pstamp") else None
        e.wait_vm('BI')
        stamp(e, 7, True) if opt("pstamp") else None
        for ft in range(8): e.ds(f"ds_read_b64 v[{ACC_B+4*ft+2}:{ACC_B+4*ft+3}], v{t} offset:{32*ft}", 'BR')
        for ft in range(10): e.ds(f"ds_read_b64 v[{BIASB+4*ft+2}:{BIASB+4*ft+3}], v{t+1} offset:{32*ft}", 'BR')
        for nt in range(9): e.ds(f"ds_read_b64 a[{AB2+2*nt}:{AB2+2*nt+1}], v{t+2} offset:{32*nt}", 'BR')
        e.raw(f"s_mov_b32 s{S_DBG}, s100\ns_mov_b32 s{S_DBG+1}, s101\ns_mov_b32 s{S_DBG+2}, 256")
        e.wait_lg_all()
        for x in self.bias_cvt(8, ACC_B) + self.bias_cvt(10, BIASB): e.raw(x)
        emit_items(self.x_items(1) + self.w_items(1))
        stamp(e, 1, bool(opt("pstamp")))
        e.wait_vm([('W', 0), ('X', 0)])
        e.raw("s_barrier")
        stamp(e, 2, bool(opt("pstamp")))
        self.pro_rest = [self.x_items(2), self.w_items(2),
                         [(f"buffer_load_dword v{V_P}, v{V_NP}, s[{S_WS}:{S_WS+3}], 0 offen sc1", 'm', 'EP')], self.w_items(3), self.w_items(4)]
        for (tx, tag) in self.frag_reads(0): e.ds(tx, tag)
        for (tx, tag) in self.x_reads(0): e.ds(tx, tag)
    @staticmethod
    def _glued(prev):
        return prev.startswith("s_cmp") or prev.startswith("v_cmp") or prev.startswith("s_nop")

    def build(self):
        e = self.e
        self.prologue()
        if opt("noAst"): e.raw(f"v_mov_b32 v255, {OOB}")
        e.prio_streams = {'dma', 'hld', 'stB'}
        e.force_prio = True
        e.strict = opt('strict', '1') == '1'
        e.ta_slack = float(opt('ta_slack', 1.0))
        if e.strict: e.prio_streams = {'dma', 'hld', 'stA', 'stB', 'poll', 'flag'}
        e.min_sp = iopt('min_sp', 3)
        self.pf_gap = None
        NBq = iopt("nb", 4)
        def need(C): return min(GOS[2 * C - 1] - 1, GOS[72 - NBq - 1] - 1)
        CX = CA = float(opt("spA", 3.0)); CB_ = float(opt("spB", 4.0)); C2 = float(opt("sp2", 3.5))
        def wcost(C): return CA if C < 9 else (CB_ if C < 18 else C2)
        pr = self.pro_rest
        self.push_dma(pr[0], 0, need(2), CX); self.push_dma(pr[1], 0, need(2), CA)
        self.push_dma(pr[2], 0, GOS[3], 1.0)
        self.push_dma(pr[3], 0, need(3), CA); self.push_dma(pr[4], 0, need(4), CA)
        nextW = 5
        LOOK = iopt("look", 8)
        MERGE = True
        NB = iopt("nb", 4); B0 = 72 - NB
        self.NB, self.B0 = NB, B0
        for si, (kind, k) in enumerate(STEPS):
            if si == B0: break
            nf = nfrag(kind); ngap = 2 * nf
            C, ks = si // 2, si % 2
            g0 = e.gap
            assert g0 == GOS[si]
            cur = AW + 40 * (si % 2)
            if (kind, k) == ('B', 0): stamp(e, 3)
            if (kind, k) == ('P', 0): stamp(e, 4)
            if (kind, k) == ('P', 9): stamp(e, 5)
            have_next = si + 1 < len(STEPS)
            reads = []
            if si == B0 - 1:
                reads = [self.frag_read(B0 + j, f, h, self.blk_buf(f) + 4 * j) for f in range(2) for j in range(NB) for h in range(2)]
            elif have_next:
                reads = self.frag_reads(si + 1)
                nkind, nk = STEPS[si + 1]
                if nkind == 'A':
                    xr = self.x_reads(nk)
                    reads = reads[:2] + xr[:1] + reads[2:4] + xr[1:] + reads[4:]
            per = [[] for _ in range(ngap)]
            nr = len(reads)
            for i_, r in enumerate(reads):
                per[(i_ * ngap) // nr if nr > ngap else i_].append(r)
            if si == B0 - 2: self.push_tail_setup(g0)
            pre0 = []
            if opt("stepstamp"):
                a_, b_ = [int(v) for v in opt("stepstamp").split("_")]
                if a_ <= si <= b_:
                    pre0 = [f"v_writelane_b32 v63, s90, {si - a_}", "s_memtime s[90:91]"]
            if have_next and ks == 1:
                nC = C + 1
                pre0 = ["s_barrier"] + pre0
                if opt("chunkstamp") and not opt("stepstamp"):
                    pre0 = pre0 + [f"v_writelane_b32 v63, s90, {nC-1}", "s_memtime s[90:91]"]
                if nC - 2 >= 0: self.free.append(self.wslot[nC - 2])
                if kind == 'A' and C + 3 < 9:
                    self.push_dma(self.x_items(C + 3), g0 + 1, need(C + 3), CX)
                if kind == 'A' and C >= 6:
                    self.free.append(5 + C % 3)
                nissue = 0
                while self.free and nextW < 36 and nextW <= nC + LOOK:
                    if kind == 'A' and nextW >= 9 and nissue >= iopt("wA", 1): break
                    nissue += 1
                    cand = [s_ for s_ in self.free if (nextW >= 9 or s_ < 5)]
                    if not cand: break
                    early = g0 + 1
                    if nextW >= 18 + iopt("w2_in_window", 0):
                        if self.pf_gap is None: break
                        early = max(early, self.pf_gap + iopt("pf_window", 140))
                    sl = cand[0]; self.free.remove(sl)
                    self.wslot[nextW] = sl
                    nd = need(nextW)
                    if 9 <= nextW < 18 + iopt("w2_in_window", 0):
                        asap = max(g0 + iopt("dmin", 40) + int(6 * wcost(nextW)), getattr(self, "last_asap", 0) + int(6 * wcost(nextW)))
                        nd = min(nd, asap); self.last_asap = nd
                    cost = wcost(nextW)
                    lin0 = iopt("lin0", 25)
                    if nextW >= lin0:
                        lper = iopt("linper", 49)
                        early = max(early, GOS[36] + (nextW - lin0) * lper)
                        pass
                        nd = min(nd, early + lper + iopt("dmin", 40))
                    self.push_dma(self.w_items(nextW), early, max(nd, early + iopt("dmin", 40) + 30), cost)
                    nextW += 1
                    if nextW == 18: self.push_pf2(g0 + 1)
                self.after_barrier_hooks(si, g0)
            self.step_hooks(si, kind, k, g0, ngap)
            def waits_for(sj, gi):
                kj, kk = STEPS[sj]; nfj = nfrag(kj)
                w = []
                f, t = gi // 2, gi % 2
                G = 4 if kj == 'A' else 5
                if t == 0 and f % G == 0:
                    tags = [('WF', sj, min(f + G - 1, nfj - 1))]
                    if f == 0 and kj == 'A': tags.append(('XF', kk))
                    w.append(('lg', tags))
                if gi == 0 and kj == 'P' and SEQ2[kk][0] != 0:
                    w.append(('vm', [('H', kk)]))
                return w
            for f in range(nf):
                for t in range(2):
                    gi = 2 * f + t
                    A = f"a[{cur+4*f}:{cur+4*f+3}]"
                    if kind in 'AB':
                        B = f"a[{AX+8*k+4*t}:{AX+8*k+4*t+3}]"
                        acc = (ACC_A if kind == 'A' else ACC_B) + 8 * f + 4 * t
                        D = f"v[{acc}:{acc+3}]"
                        if k == 0:
                            bq = (ACC_B if kind == 'A' else BIASB) + 4 * f
                            Cc = f"v[{bq}:{bq+3}]"
                        else: Cc = D
                    else:
                        d, i = SEQ2[k]
                        if d == 0:
                            hb = (ACC_A + 16 * i if i < 4 else ACC_B + 16 * (i - 4)) + 4 * t
                            B = f"v[{hb}:{hb+3}]"
                        else:
                            hb = AH + 8 * RING[k] + 4 * t
                            B = f"a[{hb}:{hb+3}]"
                        acc = acc2(f, t)
                        D = f"v[{acc}:{acc+3}]"
                        Cc = "0" if k == 0 else D
                    if si == 0 and gi == 0:
                        e.wait_lg([('WF', 0, 3), ('XF', 0)])
                    post = []
                    if gi + 1 < ngap: post += waits_for(si, gi + 1)
                    elif have_next:
                        if si == B0 - 1:
                            post.append(('lg', [('FB', B0 + NB - 1, 0)]))
                            post.append(('vm', [('H', 35)]))
                        else:
                            post += waits_for(si + 1, 0)
                        if ks == 0 and si + 2 < len(STEPS):
                            nC = C + 1
                            tags = [('W', nC)]
                            if si + 1 == B0 - 1: tags += [('W', c_) for c_ in range(nC, 36)]
                            if kind == 'A' and nC < 9: tags.append(('X', nC))
                            tags += self.extra_barrier_tags(si + 1)
                            post.append(('vm', tags))
                    e.mfma_gap(f"v_mfma_f32_16x16x32_bf16 {D}, {A}, {B}, {Cc}", pre=pre0 if gi == 0 else (), dss=per[gi], post=post)
        if MERGE:
            import copy
            assert e.pending() == 0 or all(nm not in ('dma', 'hld') or not q for nm, q in e.streams.items())
            e.flush_streams()
            e.raw(f"s_cmp_eq_u32 s{S_W}, s{S_KQ}\ns_cbranch_scc1 L_owner")
            eo = Emitter()
            eo.vm, eo.vm_gap, eo.vm_done = list(e.vm), list(e.vm_gap), e.vm_done
            eo.lg, eo.lg_done = list(e.lg), e.lg_done
            eo.gap = e.gap
            eo.raw("L_owner:")
            self.final_block(eo, False)
            self.tail_owner(eo)
            self.slow.append(eo.text())
            self.final_block(e, True)
            if opt("chunkstamp"):
                e.raw("s_waitcnt lgkmcnt(0)\nv_writelane_b32 v63, s90, 35\ns_memtime s[90:91]\ns_waitcnt lgkmcnt(0)\nv_writelane_b32 v63, s90, 36")
            stamp(e, 6)
            self.tail_sender()
        else:
            raise SystemExit("only the merged tail is generated")
        e.raw("L_end:\ns_endpgm")
        for s_ in self.slow: e.raw(s_)
        e.raw("L_code_end:")
        print(e.stats, "slots:", self.wslot, file=sys.stderr)
        if opt("vmlog"):
            for (g, tags, n, newly) in e.log:
                y = newly[-1] if newly else None
                summary = {}
                for (t, gg) in newly: summary.setdefault(str(t), []).append(gg)
                print(f"gap {g:5d} wait {tags} vmcnt({n}) youngest {y} dist {g - y[1] if y else 0}  covers " + ", ".join(f"{k}@{v[0]}-{v[-1]}" for k, v in summary.items()), file=sys.stderr)
        return e.text()

    PUB = tuple(x[1] for x in PARTS)
    def extra_barrier_tags(self, si):
        return [('HS', p) for p in range(len(PARTS)) if self.PUB[p] == si]
    def after_barrier_hooks(self, si, g0):
        e = self.e
        if si in self.PUB:
            part = self.PUB.index(si)
            e.push('flag', f"buffer_store_dword v{V_NP}, v{V_FS}, s[{S_WS}:{S_WS+3}], 0 offen offset:{4*part} sc1", 'm', ('FS', part), early=g0 + 2, late=g0 + 2)

    def push_pf2(self, g):
        e = self.e; t = V_T
        for n_, tx in enumerate([f"s_and_b32 s100, s{S_M}, 7", f"s_lshl_b32 s100, s100, 2", f"s_add_u32 s100, s100, s{S_J}", f"s_mul_i32 s100, s100, {36*1152}",
                   f"s_mul_i32 s101, s{S_KQ}, {1152*1152}", f"s_add_u32 s100, s100, s101", f"s_mul_i32 s101, s{S_W}, {81*128}", f"s_add_u32 s100, s100, s101",
                   f"v_lshlrev_b32 v{t}, 7, v1", f"v_mov_b32 v{t+2}, {OOB}", f"v_add_u32 v{t+1}, {64*128}, v{t}",
                   f"v_cmp_gt_u32 vcc, 17, v1\n    s_nop 1\n    v_cndmask_b32 v{t+1}, v{t+2}, v{t+1}, vcc"]):
            e.push('pf', tx, 's', early=g, late=g + 2 + n_)
        burst0 = max(g, GOS[18 + iopt("pf_at", 5)], GOS[18 + iopt("epiA1_late", 6)] + 14)
        slack = max(0, (e.streams['dma'][-1].late if e.streams['dma'] else g) - burst0) + 2
        def rec():
            self.pf_gap = e.gap
            return f"buffer_load_dword v255, v{t}, s[{S_W2}:{S_W2+3}], s100 offen"
        e.push('dma', rec, 'm', 'PF', early=burst0, late=burst0 + slack + 2, cost=10)
        e.push('dma', f"buffer_load_dword v255, v{t+1}, s[{S_W2}:{S_W2+3}], s100 offen", 'm', 'PF', early=burst0, late=burst0 + slack + 8, cost=5)

    def step_hooks(self, si, kind, k, g0, ngap):
        e = self.e
        if (kind, k) == ('A', iopt("ep_at", 4)):
            e.push('nonce', lambda: e.vm_wait_text('EP'), 'w', early=g0, late=g0 + 2)
            for t in [f"v_add_u32 v{V_P}, 1, v{V_P}", f"v_or_b32 v{V_P}, 0x80000000, v{V_P}"]:
                e.push('nonce', t, 'v', early=g0, late=g0 + 4)
            e.push('nonce', f"buffer_store_dword v{V_P}, v{V_NP}, s[{S_WS}:{S_WS+3}], 0 offen sc1", 'm', 'EPW', early=g0, late=g0 + 6)
            e.push('nonce', f"v_subrev_u32 v{V_NP}, {EP_OFF}, v{V_NP}", 'v', early=g0, late=g0 + 8)
            e.push('nonce', f"buffer_store_dword v{V_P}, v{V_NP}, s[{S_DBG}:{S_DBG+3}], 0 offen sc1", 'm', 'NW', early=g0, late=g0 + 10)
        NR = iopt("nr_at", 12); NC = iopt("nc_at", 16)
        ldn = f"buffer_load_dword v{V_P}, v{V_NP}, s[{S_DBG}:{S_DBG+3}], 0 offen sc1"
        if (kind, k) == ('A', NR):
            e.push('nonce', f"v_mov_b32 v{V_NP}, 0", 'v', early=g0, late=g0 + 2)
            e.push('nonce', ldn, 'm', 'NR', early=g0 + 1, late=g0 + 4)
        if (kind, k) == ('A', NC):
            e.push('nonce', lambda: e.vm_wait_text('NR'), 'w', early=g0, late=g0 + 2)
            e.push('nonce', self.poll_check(ldn, f"v_cmp_eq_u32 vcc, 0, v{V_P}", "nonce"), 's', early=g0, late=g0 + 5)
            e.push('nonce', f"v_readfirstlane_b32 s{S_N}, v{V_P}\n    s_nop 3", 'v', early=g0, late=g0 + 8)
            e.push('nonce', f"v_mov_b32 v{V_NP}, s{S_N}", 'v', early=g0, late=g0 + 10)
        if (kind, k) == ('B', iopt("p2_at", 6)) and self.setup_p2:
            end = GOS[18 + iopt("p2_end", 13)]
            for n, x in enumerate(self.setup_p2):
                e.push('setup', x, 's', early=g0, late=g0 + ((n + 1) * (end - g0)) // len(self.setup_p2))
        SPS = float(opt('spS', 3.5))
        if (kind, k) == ('B', 0):
            st = g0 + 8
            e1 = GOS[18 + iopt("epiA1_late", 6)] + 8; e2 = GOS[18 + iopt("epiA2_late", 11)]
            self.storesA2 = []
            nA1 = iopt("nA1", 4)
            for (frs, a, b) in ((tuple(range(nA1)), st, e1), (tuple(range(nA1, 4)), e1, e2)):
                its = [x for i in frs for t in range(2) for x in self.epi_items(ACC_A, i, i, t)]
                nv = sum(1 for x in its if x[1] == 'v'); n = 0; late = a
                for (tx, kk, tag) in its:
                    if kk == 'v':
                        n += 1; late = a + (n * (b - a)) // nv
                        e.push('epi', tx, kk, tag, early=st, late=late)
                    elif frs[0] == 0:
                        e.push('stA', tx, kk, tag, early=late + 1, late=late + 4, cost=SPS if kk == 'm' else 0)
                    else:
                        self.storesA2.append((tx, kk, tag, late))
        if getattr(self, "storesA2", None) and kind == 'B' and self.pf_gap is not None and k >= iopt("epiA2_late", 11) - 1:
            early = self.pf_gap + iopt("pf_window", 140); sp = iopt("stA2_sp", 10)
            for (tx, kk, tag, late) in self.storesA2:
                early = max(early, late + 1)
                e.push('stA', tx, kk, tag, early=early, late=early + 3, cost=SPS if kk == 'm' else 0)
                if kk == 'm': early += sp
            self.storesA2 = []
        if (kind, k) == ('P', 0):
            prev = g0 + 2
            for (frs, vend, burst) in (((4, 5, 6), iopt("vB1", 80), iopt("bB1", 84)), ((7, 8), iopt("vB2", 150), iopt("bB2", 230))):
                its = [(i, x) for i in frs for t in range(2) for x in self.epi_items(ACC_B, i - 4, i, t)]
                end = g0 + vend
                nv = sum(1 for (_, x) in its if x[1] == 'v'); n = 0; early = g0 + burst
                for (i, (tx, kk, tag)) in its:
                    if kk == 'v':
                        n += 1
                        late = min(prev + (n * (end - prev)) // nv, GOS[36 + OWNB[i]] - 4)
                        e.push('epi', tx, kk, tag, early=g0 + 2, late=late)
                    else:
                        e.push('stB', tx, kk, tag, early=early if kk == 'm' else early - 2, late=early - 30, cost=float(opt("spSB", 4.0)) if kk == 'm' else 0)
                prev = end
        if kind == 'P' or (kind == 'B' and k >= 14):
            LA = iopt("LA", 4)
            q = k if kind == 'P' else k - 18
            c0, c1, c2 = PARTS[0][3], PARTS[1][3], PARTS[2][3]
            ea = iopt("earlyA", 1)
            FIRST = {9: c0, 10: c0, 11: c0 + ea, 12: c0 + ea, 21: c1, 22: c1, 23: c1 + 1, 30: c2, 31: c2 + 1}
            if iopt("early6", 0): FIRST.update({13: c0 + 1, 14: c0 + 1})
            if self.NB == 4: FIRST.update({32: 27, 33: 28, 34: 28, 35: 29})
            def issue_at(qn):
                if qn in FIRST: return FIRST[qn]
                return max(qn - LA, PARTS[part_of(SEQ2[qn][1])][3], qn - HD + 1)
            for part, (_, _, pol, chk) in enumerate(PARTS):
                ld = f"buffer_load_dword v{V_P}, v{V_FL}, s[{S_WS}:{S_WS+3}], 0 offen offset:{4*part} sc1"
                if q == pol:
                    e.push('poll', ld, 'm', ('FP', part), early=g0 + 1, late=g0 + 2, cost=1)
                if q == chk:
                    e.push('poll', (lambda part=part: e.vm_wait_text(('FP', part))), 'w', early=g0, late=g0)
                    if not opt("x_nochk"): e.push('poll', self.poll_check(ld, f"v_cmp_ne_u32 vcc, s{S_N}, v{V_P}", f"flag{part}"), 's', early=g0, late=g0 + 1)
            assert LA < HD
            for qn in PEERS:
                if issue_at(qn) != q: continue
                d, i = SEQ2[qn]
                SH = S_HSO if opt("x_hhot") else S_T
                FLH = "" if (opt("x_hhot") or opt("hplain")) else " sc1"
                dst = AH + 8 * RING[qn]
                nd = min(GOS[36 + qn] - 1 - iopt("dminH", 36), g0 + ngap + 2)
                e.push('hld', f"s_add_u32 s{S_T}, s{S_HB+d}, {i*8192}", 's', early=g0 + 3, late=max(g0 + 4, nd - 6))
                for t in range(2):
                    e.push('hld', f"buffer_load_dwordx4 a[{dst+4*t}:{dst+4*t+3}], v{V_HS}, s[{S_WS}:{S_WS+3}], s{SH} offen offset:{t*1024}" + FLH, 'm', ('H', qn), early=g0 + 4, late=max(g0 + 5 + t, nd - 5 + 5 * t), cost=float(opt('spH', 3.0)))

    NG = 12
    BOX = 12 * 1024
    @staticmethod
    def val(v): return acc2((v // 4) // 2, (v // 4) % 2) + v % 4
    QUADS = [V_TA + 4 * i for i in range(4)]

    def push_tail_setup(self, g0):
        e = self.e; t = V_T
        items = lines(f"""
        s_lshl_b32 s84, s{S_M}, 2
        s_add_u32 s84, s84, s{S_J}
        s_lshl_b32 s84, s84, 2
        v_lshlrev_b32 v{t}, 4, v1
        s_add_u32 s85, s84, s{S_W}
        s_lshl_b32 s85, s85, 2
        s_add_u32 s85, s85, s{S_KQ}
        s_mul_i32 s85, s85, {self.BOX}
        s_add_u32 s85, s85, {P_OFF}
        s_add_u32 s86, s85, 4096
        s_add_u32 s87, s85, 8192""") + [f"v_mov_b32 v{q+3}, s{S_N}" for q in self.QUADS]
        for n, x in enumerate(items):
            e.push('misc', x, 's', early=g0 + 1, late=g0 + 4 + 2 * n)

    def granule_items(self, g):
        t = V_T; q = self.QUADS[g % 4]
        it = [(f"v_cvt_pk_bf16_f32 v{q+w_}, v{self.val(6*g+2*w_)}, v{self.val(6*g+2*w_+1)}", 'v') for w_ in range(3)]
        it.append((f"buffer_store_dwordx4 v[{q}:{q+3}], v{t}, s[{S_WS}:{S_WS+3}], s{85 + g // 4} offen offset:{(g%4)*1024} sc1", 'm'))
        return it

    def blk_buf(self, nt):
        return AW + (0, 16, 40, 56)[nt % 4] if self.NB == 4 else AW + (0, 8, 40, 48)[nt % 4]
    def final_block(self, e, sender):
        NB, B0 = self.NB, self.B0
        g0 = e.gap
        e.streams = {}; e.prio_streams = set(); e.strict = False; e.force_prio = False
        self.sent = set()
        G = 2 * NB
        if sender:
            for g in range(self.NG):
                k1 = (6 * g + 5) // 4
                start = G * (k1 // 2) + G - 2 + (k1 % 2) + (5 if k1 // 2 <= 5 else 8)
                if start > 9 * G - 2: continue
                self.sent.add(g)
                for n, (tx, kk) in enumerate(self.granule_items(g)):
                    e.push('snd', tx, kk, ('PS', g), early=g0 + start, late=g0 + start + 2 + n)
        for nt in range(9):
            rd = [self.frag_read(B0 + j, nt + 2, h, self.blk_buf(nt + 2) + 4 * j) for j in range(NB) for h in range(2)] if nt + 2 < 9 else []
            for sub in range(G):
                j, tt = sub // 2, sub % 2
                q = 36 - NB + j
                A = self.blk_buf(nt) + 4 * j
                hb = AH + 8 * RING[q] + 4 * tt
                acc = acc2(nt, tt)
                dss = [rd[sub]] if rd else []
                post = []
                if sub == G - 1 and nt + 1 < 9: post.append(('lg', [('FB', B0 + NB - 1, nt + 1)]))
                e.mfma_gap(f"v_mfma_f32_16x16x32_bf16 v[{acc}:{acc+3}], a[{A}:{A+3}], a[{hb}:{hb+3}], v[{acc}:{acc+3}]", dss=dss, post=post)
        if e.pending(): e.raw("s_nop 7")
        e.flush_streams()

    def tail_owner(self, e):
        t = V_T
        V_PA = t + 6
        OWN_LDS = self.wslot[32] * SLOT
        e.raw(f"v_add_u32 v{V_PA}, {OWN_LDS}, v{t}")
        for nt in range(9):
            e.raw(f"""
            v_accvgpr_read_b32 v{t+7}, a{AB2+2*nt}
            v_accvgpr_read_b32 v{t+8}, a{AB2+2*nt+1}
            v_lshlrev_b32 v{V_FL}, 16, v{t+7}
            v_and_b32 v{t+7}, 0xffff0000, v{t+7}
            v_lshlrev_b32 v{V_FS}, 16, v{t+8}
            v_and_b32 v{t+8}, 0xffff0000, v{t+8}""")
            if nt == 8: e.raw("s_nop 3")
            for tt in range(2):
                r = acc2(nt, tt)
                e.raw(f"v_add_f32 v{r}, v{r}, v{V_FL}\nv_add_f32 v{r+1}, v{r+1}, v{t+7}\nv_add_f32 v{r+2}, v{r+2}, v{V_FS}\nv_add_f32 v{r+3}, v{r+3}, v{t+8}")
                e.raw(f"ds_write_b128 v{V_PA}, v[{r}:{r+3}] offset:{(2*nt+tt)*1024}")
        MB = OWN_LDS + 18 * 1024
        BOX = self.BOX
        e.raw(f"""
        v_mov_b32 v{t+7}, {MB}
        v_mov_b32 v{t+8}, 0
        ds_write_b32 v{t+7}, v{t+8}
        s_waitcnt lgkmcnt(0)
        s_barrier""")
        if opt("ownpoll", "0") != "1":
            e.raw("s_branch L_end"); return
        e.raw(f"s_add_u32 s85, s84, s{S_KQ}\ns_lshl_b32 s85, s85, 2")
        for d in range(1, 4):
            e.raw(f"""
            s_add_u32 s86, s{S_KQ}, {d}
            s_and_b32 s86, s86, 3
            s_add_u32 s86, s86, s85
            s_mul_i32 s86, s86, {BOX}
            s_add_u32 s{S_TW+d}, s86, {P_OFF}""")
        e.raw(f"""
        v_mul_u32_u24 v{V_PA}, 43, v1
        v_lshrrev_b32 v{V_PA}, 7, v{V_PA}
        v_mul_u32_u24 v{V_FL}, 3, v{V_PA}
        v_sub_u32 v{V_FL}, v1, v{V_FL}
        v_mul_u32_u24 v{V_PA}, 4096, v{V_PA}
        v_add_u32 v{V_PA}, {3*1024+1020}, v{V_PA}
        v_mov_b32 v{t+8}, s{S_TW+1}
        v_mov_b32 v{V_FS}, s{S_TW+2}
        v_cmp_eq_u32 vcc, 1, v{V_FL}
        s_nop 1
        v_cndmask_b32 v{t+8}, v{t+8}, v{V_FS}, vcc
        v_mov_b32 v{V_FS}, s{S_TW+3}
        v_cmp_eq_u32 vcc, 2, v{V_FL}
        s_nop 1
        v_cndmask_b32 v{t+8}, v{t+8}, v{V_FS}, vcc
        v_add_u32 v{V_PA}, v{V_PA}, v{t+8}
        v_mov_b32 v{V_FS}, {OOB}
        v_cmp_gt_u32 vcc, 9, v1
        s_and_b32 s89, s{S_N}, 0xfffffff8
        s_mov_b32 s91, {SPIN_LIMIT}
        v_cndmask_b32 v{V_PA}, v{V_FS}, v{V_PA}, vcc
        L_own_poll:
        buffer_load_dword v{V_P}, v{V_PA}, s[{S_WS}:{S_WS+3}], 0 offen sc1
        s_waitcnt vmcnt(0)
        v_cmp_eq_u32 vcc, s{S_N}, v{V_P}
        s_nop 3
        s_mov_b32 s87, vcc_lo
        s_mov_b32 s88, s89
        s_and_b32 s85, s87, 7
        s_cmp_eq_u32 s85, 7
        s_cselect_b32 s85, 1, 0
        s_or_b32 s88, s88, s85
        s_and_b32 s85, s87, 56
        s_cmp_eq_u32 s85, 56
        s_cselect_b32 s85, 2, 0
        s_or_b32 s88, s88, s85
        s_and_b32 s85, s87, 448
        s_cmp_eq_u32 s85, 448
        s_cselect_b32 s85, 4, 0
        s_or_b32 s88, s88, s85
        s_sub_u32 s91, s91, 1
        s_cmp_le_i32 s91, 0
        s_cselect_b32 s85, 7, 0
        s_or_b32 s88, s88, s85
        v_mov_b32 v{t+8}, s88
        ds_write_b32 v{t+7}, v{t+8}
        s_and_b32 s85, s88, 7
        s_cmp_eq_u32 s85, 7
        s_cbranch_scc0 L_own_poll
        s_branch L_end""")

    def tail_sender(self):
        e = self.e
        t = V_T
        NG, BOX = self.NG, self.BOX
        V_BAD, V_PA, V_O = t + 5, t + 6, t + 1
        OWN_LDS = self.wslot[32] * SLOT
        e.raw("s_nop 7")
        for g in range(NG):
            if g in self.sent: continue
            for (tx, kk) in self.granule_items(g): e.raw(tx)
        e.raw(f"""
        s_sub_u32 s88, s{S_W}, s{S_KQ}
        s_sub_u32 s88, s88, 1
        s_and_b32 s88, s88, 3
        s_add_u32 s85, s84, s{S_KQ}
        s_lshl_b32 s85, s85, 2
        s_lshl_b32 s87, s88, 12
        s_add_u32 s87, s87, {P_OFF}
        """)
        for d in range(1, 4):
            e.raw(f"""
            s_add_u32 s86, s{S_KQ}, {d}
            s_and_b32 s86, s86, 3
            s_add_u32 s86, s86, s85
            s_mul_i32 s86, s86, {BOX}
            s_add_u32 s{S_TW+d}, s86, s87""")
        e.raw(f"""
        v_min_u32 v{t+7}, 2, v1
        v_mov_b32 v{t+8}, s{S_TW+1}
        v_mov_b32 v{V_BAD}, s{S_TW+2}
        v_cmp_eq_u32 vcc, 1, v{t+7}
        s_mul_i32 s87, s88, 6144
        s_add_u32 s87, s87, {OWN_LDS}
        v_cndmask_b32 v{t+8}, v{t+8}, v{V_BAD}, vcc
        v_mov_b32 v{V_BAD}, s{S_TW+3}
        v_cmp_eq_u32 vcc, 2, v{t+7}
        s_lshl_b32 s86, s{S_M}, 7
        s_lshl_b32 s85, s{S_KQ}, 5
        v_cndmask_b32 v{t+8}, v{t+8}, v{V_BAD}, vcc
        v_add_u32 v{V_PA}, {3*1024+1020}, v{t+8}
        s_add_u32 s86, s86, s85
        s_mul_i32 s86, s86, 1152
        s_mul_i32 s85, s{S_J}, 288
        s_add_u32 s86, s86, s85
        s_mul_i32 s85, s88, 96
        s_add_u32 s86, s86, s85
        v_and_b32 v{V_O}, 15, v1
        v_mul_u32_u24 v{V_O}, 1152, v{V_O}
        v_add_u32 v{V_O}, v{V_O}, v{V_BI}
        v_add_u32 v{V_O+1}, {16*1152}, v{V_O}
        v_add_u32 v{V_FL}, s87, v{t}
        s_mov_b32 s89, 0xffff0000
        """)
        POLL = f"buffer_load_dword v{V_P}, v{V_PA}, s[{S_WS}:{S_WS+3}], 0 offen sc1"
        OPT_ = opt("optim", "0") == "1"
        OWNP = opt("ownpoll", "0") == "1"
        if not OPT_ and not OWNP: e.raw(POLL)
        e.raw("s_barrier")
        OWN = [ACC_B + 4 * i for i in range(6)]
        zones = [ACC_B + 24 + 4 * i for i in range(12)]
        for kl in range(6): e.raw(f"ds_read_b128 v[{OWN[kl]}:{OWN[kl]+3}], v{V_FL} offset:{kl*1024}")
        zone = lambda g, d: zones[3 * g + d]
        S = [36, 37, 38, 39]; U = [40, 41, 42]; X = [43, 44]
        e.raw(f"s_mov_b32 s91, {SPIN_LIMIT}\ns_mov_b32 s3, 64")
        if OWNP:
            MB = OWN_LDS + 18 * 1024
            e.raw(f"""
            s_and_b32 s85, s{S_N}, 0xfffffff8
            s_lshl_b32 s87, 1, s88
            s_or_b32 s85, s85, s87
            s_or_b32 s87, s87, 0xfffffff8
            v_mov_b32 v{t+7}, {MB}
            L_mb:
            ds_read_b32 v{t+8}, v{t+7}
            s_waitcnt lgkmcnt(0)
            v_readfirstlane_b32 s90, v{t+8}
            s_sub_u32 s91, s91, 1
            s_cmp_le_i32 s91, 0
            s_cbranch_scc1 L_tw_go
            s_and_b32 s90, s90, s87
            s_cmp_eq_u32 s90, s85
            s_cbranch_scc0 L_mb
            s_branch L_tw_go""")
        elif OPT_:
            e.raw("s_waitcnt vmcnt(0)\ns_branch L_tw_go")
        e.raw(f"L_redo:\ns_mov_b32 s91, {SPIN_LIMIT}")
        e.raw(f"""
        L_tw_chk:
        s_waitcnt vmcnt(0)
        v_cmp_ne_u32 vcc, s{S_N}, v{V_P}
        s_nop 3
        s_cmp_eq_u64 vcc, 0
        s_cbranch_scc1 L_tw_go
        s_sub_u32 s91, s91, 1
        s_cmp_le_i32 s91, 0
        s_cbranch_scc1 L_tw_go
        {POLL}
        s_branch L_tw_chk
        L_tw_go:""")
        stamp(e, 7) if opt("stamp7", "poll") == "poll" and not opt("pstamp") else None
        e.raw(f"v_mov_b32 v{V_BAD}, 0")
        vm = []
        for g in range(4):
            for d in range(3):
                r = zone(g, d)
                e.raw(f"buffer_load_dwordx4 v[{r}:{r+3}], v{t}, s[{S_WS}:{S_WS+3}], s{S_TW+1+d} offen offset:{g*1024} sc1")
                vm.append(('L', g))
        e.raw("s_waitcnt lgkmcnt(0)")
        done_g = set()
        def need_granule(g):
            if g in done_g: return
            done_g.add(g)
            last = max(i for i, v in enumerate(vm) if v == ('L', g))
            e.raw(f"s_waitcnt vmcnt({min(len(vm) - 1 - last, 63)})")
            z = [zone(g, d) + 3 for d in range(3)]
            e.raw(f"""
            v_xor_b32 v{X[0]}, s{S_N}, v{z[0]}
            v_xor_b32 v{X[1]}, s{S_N}, v{z[1]}
            v_or3_b32 v{V_BAD}, v{X[0]}, v{X[1]}, v{V_BAD}
            v_xor_b32 v{X[0]}, s{S_N}, v{z[2]}
            v_or_b32 v{V_BAD}, v{X[0]}, v{V_BAD}""")
        if opt("earlychk", "0") == "1":
            for g in range(4): need_granule(g)
            e.raw(f"""
            v_cmp_ne_u32 vcc, 0, v{V_BAD}
            s_nop 3
            s_cmp_eq_u64 vcc, 0
            s_cbranch_scc1 L_tags_ok
            s_sub_u32 s3, s3, 1
            s_cmp_eq_u32 s3, 0
            s_cbranch_scc1 L_tags_ok
            {POLL}
            s_branch L_redo
            L_tags_ok:""")
        for kl in range(6):
            ntl, tt = kl // 2, kl % 2
            for v in range(4 * kl, 4 * kl + 4): need_granule(v // 6)
            for x in range(4):
                v = 4 * kl + x; g, pos = v // 6, v % 6
                for d in range(3):
                    src = zone(g, d) + pos // 2
                    e.raw(f"v_lshlrev_b32 v{U[d]}, 16, v{src}" if pos % 2 == 0 else f"v_and_b32 v{U[d]}, s89, v{src}")
                e.raw(f"v_add_f32 v{S[x]}, v{OWN[kl]+x}, v{U[0]}\nv_add_f32 v{U[1]}, v{U[1]}, v{U[2]}\nv_add_f32 v{S[x]}, v{S[x]}, v{U[1]}")
            o = (46 if kl % 2 == 0 else 2)
            e.raw(f"v_cvt_pk_bf16_f32 v{o}, v{S[0]}, v{S[1]}\nv_cvt_pk_bf16_f32 v{o+1}, v{S[2]}, v{S[3]}")
            e.raw(f"buffer_store_dwordx2 v[{o}:{o+1}], v{V_O+tt}, s[{S_OUT}:{S_OUT+3}], s86 offen offset:{32*ntl}" + (" sc1" if opt("outsc1") else ""))
            vm.append(('S', kl))
        if opt("earlychk", "0") != "1":
            e.raw(f"""
            v_cmp_ne_u32 vcc, 0, v{V_BAD}
            s_nop 3
            s_cmp_eq_u64 vcc, 0
            s_cbranch_scc1 L_tdone
            s_sub_u32 s3, s3, 1
            s_cmp_eq_u32 s3, 0
            s_cbranch_scc1 L_tdone
            s_waitcnt vmcnt(0)
            {POLL}
            s_branch L_redo
            L_tdone:
            """)
        if STAMP:
            e.raw(f"s_sub_u32 s85, s{S_W}, s{S_KQ}\ns_and_b32 s85, s85, 3\ns_cmp_eq_u32 s85, 1\ns_cbranch_scc0 L_end")
            e.raw("s_waitcnt vmcnt(0)")
            if opt("stamp7") == "end" and not opt("pstamp"): stamp(e, 7)
            e.raw(f"""
            s_lshl_b32 s84, s2, 5
            s_add_u32 s84, s84, {STAMP_OFF}
            v_lshlrev_b32 v{t+1}, 2, v1
            v_mov_b32 v{t+2}, {OOB}
            v_cmp_gt_u32 vcc, 8, v1
            s_nop 1
            v_cndmask_b32 v{t+1}, v{t+2}, v{t+1}, vcc
            buffer_store_dword v{V_ST}, v{t+1}, s[{S_WS}:{S_WS+3}], s84 offen sc1""")
            if opt("chunkstamp") or opt("both"):
                e.raw(f"s_lshl_b32 s84, s2, 8\ns_add_u32 s84, s84, {STAMP_OFF + 65536}\nv_lshlrev_b32 v{t+1}, 2, v1\nbuffer_store_dword v63, v{t+1}, s[{S_WS}:{S_WS+3}], s84 offen sc1")
            e.raw("s_waitcnt vmcnt(0)")

def kd(name, vgpr, accum, sgpr=102):
    return f""".section .rodata,"a"
.p2align 6
.amdhsa_kernel {name}
  .amdhsa_next_free_vgpr {vgpr}
  .amdhsa_next_free_sgpr {sgpr}
  .amdhsa_accum_offset {accum}
  .amdhsa_group_segment_fixed_size 0
  .amdhsa_kernarg_size 64
  .amdhsa_user_sgpr_count 2
  .amdhsa_user_sgpr_kernarg_segment_ptr 1
  .amdhsa_system_sgpr_workgroup_id_x 1
.end_amdhsa_kernel
"""

def gen_amp(name, a, b, amp, wg):
    return f""".globl {name}
.p2align 8
.type {name},@function
{name}:
    s_cmp_ge_u32 s2, 1
    s_cbranch_scc1 L_{name}_end
    s_load_dwordx2 s[4:5], s[0:1], 56
    s_waitcnt lgkmcnt(0)
    s_mov_b32 s8, s4
    s_mov_b32 s9, s5
    s_mov_b32 s10, {WS_BYTES}
    s_mov_b32 s11, 0x20000
    v_mov_b32 v1, {STAMP_OFF + 32 * wg}
    buffer_load_dword v2, v1, s[8:11], 0 offen offset:{4*a} sc1
    buffer_load_dword v3, v1, s[8:11], 0 offen offset:{4*b} sc1
    s_waitcnt vmcnt(0)
    v_sub_u32 v2, v3, v2
    s_nop 1
    v_readfirstlane_b32 s12, v2
    s_nop 3
    s_min_u32 s12, s12, 20000
    s_mul_i32 s12, s12, {amp}
    s_memrealtime s[14:15]
    s_waitcnt lgkmcnt(0)
    s_mov_b32 s13, s14
L_{name}_spin:
    s_memrealtime s[14:15]
    s_waitcnt lgkmcnt(0)
    s_sub_u32 s16, s14, s13
    s_cmp_lt_u32 s16, s12
    s_cbranch_scc1 L_{name}_spin
L_{name}_end:
    s_endpgm
""" + kd(name, 8, 8, 32) + ".text\n"

def main(path):
    g = Gen()
    body = g.build()
    launch = f"; @launch grid=(256,1,1) block=(256,1,1) lds={LDS_BYTES}"
    if opt("amp"):
        launch = f"; @launch kernel={KNAME} grid=(256,1,1) block=(256,1,1) lds={LDS_BYTES}\n; @launch kernel=mlp_amp_kernel grid=(1,1,1) block=(64,1,1) lds=0"
    txt = f"""; Fused MLP:  out = relu(x @ w1 + b1)^2 @ w2 + b2      x[2048,576] w1[576,4608] w2[4608,576], all bf16
; Kernarg (64 bytes, pointers only): 0 x | 8 w1 | 16 b1 | 24 w2 | 32 b2 | 40 out | 48 d_debug | 56 d_ws
;
; One launch, 256 workgroups of 4 waves, one per CU (160 KB of LDS each, all co-resident).
; Workgroup = (128-row tile m, 288-column slice s = 4*kq + j of the hidden dimension).
;  phase 1  h^T = w1^T x^T for the tile, two passes over K (8 + 10 f-tiles); x fragments stay in AGPRs, w1 streams through an
;           LDS ring (LDS-DMA + ds_read_b64_tr_b16), bias = first C operand, relu^2 + bf16 rounding in the MFMA shadow.
;           h stays in registers and is published (write-through, fragment order) for the 3 other slices of the K quarter kq.
;  phase 2  out^T[144 columns j, 128 rows] over the K quarter (own slice from registers, 3 slices from d_ws), w2 through the ring.
;  tail     4-way split-K reduction: wave w sends its 32 rows to workgroup (m, kq = w, j) as 16-byte granules
;           (6 x bf16 + launch tag); the three sender waves then reduce this workgroup's own rows and write the output.
; Hand-offs are placement independent (sc1 stores, vmcnt, barrier, sc1 flag / tag; sc1 loads).  The launch tag N is derived from
; an epoch word in d_ws by workgroup 0 and published through d_debug[0]; it only tells this launch's words from older ones.
; Generated by the author's own scheduling script (gen14.py): every MFMA gap is filled by hand-set rules, waits are counted.
{launch}
.amdgcn_target "amdgcn-amd-amdhsa--gfx950"
.text
.globl {KNAME}
.p2align 8
.type {KNAME},@function
{KNAME}:
""" + body + kd(KNAME, 512, 256)
    if opt("amp"):
        a, b = [int(v) for v in opt("amp").split("_")]
        txt += ".text\n" + gen_amp("mlp_amp_kernel", a, b, iopt("ampx", 20), iopt("ampwg", 37))
    open(path, "w").write(txt)

if __name__ == "__main__":
    main(sys.argv[1] if len(sys.argv) > 1 else "f4.s")
```

```python
import sys, os
from emit import Emitter

OPT = dict(kv.split("=") if "=" in kv else (kv, 1) for kv in os.environ.get("GOPT", "").split(",") if kv)
def opt(k, d=None): return OPT.get(k, d)
def iopt(k, d): return int(OPT.get(k, d))

KNAME = "standalone__dense_activation_squared_relu__prompt_kernel"
X_BYTES, W1_BYTES, B1_BYTES, W2_BYTES, B2_BYTES, OUT_BYTES = 2359296, 5308416, 9216, 5308416, 1152, 2359296
WS_BYTES = 268435456
H_OFF = 0
P_OFF = 20 << 20
FL_OFF = 40 << 20
EP_OFF = 41 << 20
STAMP_OFF = 128 << 20
OOB = 0x40000000
SLOT = 20480
NSLOT = 8
LDS_BYTES = NSLOT * SLOT
BIAS_LDS = 4 * SLOT + 16384
SPIN_LIMIT = 1 << 16
TAGMASK = 0xFFF

S_X, S_W1, S_B1, S_WS, S_W2, S_OUT = 4, 8, 12, 16, 20, 24
S_W, S_M, S_S, S_PAR, S_KQ, S_J = 28, 29, 30, 31, 32, 33
S_CBA, S_CBB, S_WSO, S_MW, S_MX = 34, 35, 36, 38, 39
S_HSO, S_T, S_T2, S_N = 40, 41, 42, 43
S_TW, S_TX = 44, 53
S_SO2 = 62
S_HB = 80
S_DBG = 92
KA = 64
V_WA, V_WB, V_X, V_W2 = 2, 6, 11, 15
V_TA, V_TB, V_T2, V_XR = 20, 36, 42, 45
V_HS, V_BI, V_FL, V_FS, V_P, V_NP = 47, 48, 49, 50, 51, 52
V_T = 53
V_ST = 62
ACC_A, ACC_B, BIASB = 64, 128, 208
AX, AW, AH, AB2 = 0, 144, 0, 224
HD = iopt("HD", 8)
STAMP = bool(opt("stamp"))
NT1 = " nt" if opt("ntw1", "0") == "1" else ""
NTX = " nt" if opt("ntx", "0") == "1" else ""

def acc2(nt, t):
    return (BIASB + 8 * nt + 4 * t) if nt < 5 else (ACC_A + 16 * (nt - 5) + 8 + 4 * t)
def srd(dst, ptr, nbytes):
    return [f"s_mov_b32 s{dst}, s{ptr}", f"s_mov_b32 s{dst+1}, s{ptr+1}", f"s_mov_b32 s{dst+2}, {nbytes}", f"s_mov_b32 s{dst+3}, 0x20000"]
def lines(s): return [x.strip() for x in s.strip().split("\n") if x.strip()]
def stamp(e, idx, pro=False):
    if not STAMP or (opt("chunkstamp") and idx != 0): return
    if opt("pstamp") and (pro != (idx >= 3)) and idx not in (0,):
        if not (pro and idx < 3): return
    ins = "s_memtime" if opt("cyc") else "s_memrealtime"
    e.raw(f"{ins} s[90:91]\ns_waitcnt lgkmcnt(0)\nv_writelane_b32 v{V_ST}, s90, {idx}")
    if opt("both"):
        e.raw(f"s_memtime s[90:91]\ns_waitcnt lgkmcnt(0)\nv_writelane_b32 v63, s90, {idx}")

def ksteps2():
    grp = lambda frs: [(d, i) for d in (1, 2, 3) for i in frs]
    seq = [(0, i) for i in range(9)] + grp((0, 1, 2, 3)) + grp((4, 5, 6)) + grp((7, 8))
    assert len(seq) == 36
    return seq
SEQ2 = ksteps2()
PEERS = [q for q, (d, i) in enumerate(SEQ2) if d != 0]
RING = {q: n % HD for n, q in enumerate(PEERS)}
PARTS = [((0, 1, 2, 3), iopt("pub0", 33), iopt("pol0", 0), iopt("chk0", 3)),
         ((4, 5, 6), iopt("pub1", 47), iopt("pol1", 15), iopt("chk1", 17)),
         ((7, 8), iopt("pub2", 55), iopt("pol2", 23), iopt("chk2", 25))]
def part_of(i): return [p for p, x in enumerate(PARTS) if i in x[0]][0]
OWNB = {SEQ2[q][1]: q for q in range(36) if SEQ2[q][0] == 0 and SEQ2[q][1] >= 4}
STEPS = [('A', k) for k in range(18)] + [('B', k) for k in range(18)] + [('P', q) for q in range(36)]
def nfrag(kind): return {'A': 8, 'B': 10, 'P': 9}[kind]
GOS = []
_g = 0
for (_k, _) in STEPS:
    GOS.append(_g); _g += 2 * nfrag(_k)
GOS.append(_g)

class Gen:
    def __init__(self):
        self.e = Emitter()
        self.wslot = {}
        self.free = []
        self.slow = []
        self.nlabel = 0

    def setup_first(self):
        t = V_T
        L = lines(f"""
        s_and_b32 s84, s2, 7
        s_lshr_b32 s85, s2, 3
        v_lshrrev_b32 v{t}, 6, v0
        v_and_b32 v1, 63, v0
        s_and_b32 s{S_KQ}, s84, 3
        v_readfirstlane_b32 s{S_W}, v{t}
        s_lshr_b32 s86, s84, 2
        s_lshr_b32 s87, s85, 2
        s_and_b32 s{S_J}, s85, 3
        s_lshl_b32 s86, s86, 3
        s_add_u32 s{S_M}, s86, s87
        s_lshl_b32 s{S_S}, s{S_KQ}, 2
        s_add_u32 s{S_S}, s{S_S}, s{S_J}
        s_and_b32 s{S_PAR}, s{S_J}, 1
        """)
        rot = opt("rot", "jm")
        if rot == "0": L += ["s_mov_b32 s84, 0"]
        elif rot == "j": L += lines(f"s_mul_i32 s84, s{S_J}, 9\ns_lshr_b32 s84, s84, 2")
        elif rot == "jm": L += lines(f"s_lshl_b32 s84, s{S_J}, 1\ns_add_u32 s84, s84, s87\ns_cmp_ge_u32 s84, 9\ns_cselect_b32 s85, 9, 0\ns_sub_u32 s84, s84, s85")
        elif rot == "jm2": L += lines(f"s_lshl_b32 s84, s{S_J}, 1\ns_and_b32 s85, s87, 1\ns_mul_i32 s85, s85, 5\ns_add_u32 s84, s84, s85\ns_cmp_ge_u32 s84, 9\ns_cselect_b32 s85, 9, 0\ns_sub_u32 s84, s84, s85")
        L += [f"s_mov_b32 s88, s84", f"s_mul_i32 s89, s{S_M}, 147456", f"s_mul_i32 s{S_TW}, s84, 589824",
              "s_lshl_b32 s86, s84, 7", f"s_add_u32 s{S_TX}, s89, s86"]
        L += lines(f"""
        s_mul_i32 s{S_CBA}, s{S_S}, 576
        s_mul_i32 s{S_T}, s{S_PAR}, 320
        s_add_u32 s{S_CBB}, s{S_CBA}, 256
        s_add_u32 s{S_CBA}, s{S_CBA}, s{S_T}
        s_lshl_b32 s{S_T}, s{S_PAR}, 8
        s_sub_u32 s{S_CBB}, s{S_CBB}, s{S_T}
        s_lshl_b32 s{S_MX}, s{S_W}, 12
        s_mul_i32 s{S_MW}, s{S_W}, 5120
        s_mul_i32 s{S_T}, s{S_W}, {32*1152}
        v_lshrrev_b32 v{t}, 3, v1
        v_lshrrev_b32 v{t+1}, 4, v1
        v_and_b32 v{t+2}, 7, v1
        v_mul_u32_u24 v{t}, 1152, v{t}
        v_add_u32 v{t}, s{S_T}, v{t}
        """)
        for q in range(4):
            L += lines(f"""
            v_add_u32 v{t+3}, {4*q}, v{t+1}
            v_and_b32 v{t+3}, 7, v{t+3}
            v_xor_b32 v{t+3}, v{t+2}, v{t+3}
            v_lshl_add_u32 v{t+3}, v{t+3}, 4, v{t}
            v_add_u32 v{V_X+q}, {q*(8*1152-1024)}, v{t+3}""")
        L += lines(f"""
        s_mul_i32 s{S_T}, s{S_W}, {16*9216}
        v_and_b32 v{t+2}, 15, v1
        v_mul_u32_u24 v{t}, 9216, v{t+1}
        v_add_u32 v{t}, s{S_T}, v{t}
        v_lshlrev_b32 v{t+3}, 1, v{t+1}
        v_xor_b32 v{t+3}, v{t+2}, v{t+3}
        v_xor_b32 v{t+4}, 8, v{t+3}
        v_lshl_add_u32 v{V_WA}, v{t+3}, 4, v{t}
        v_lshl_add_u32 v{t+4}, v{t+4}, 4, v{t}
        v_add_u32 v{V_WA+1}, {4*9216-1024}, v{V_WA}
        v_add_u32 v{V_WA+2}, {8*9216-2048}, v{t+4}
        v_add_u32 v{V_WA+3}, {12*9216-3072}, v{t+4}
        v_lshlrev_b32 v{V_BI}, 3, v{t+1}
        """)
        L += lines(f"""
        v_lshlrev_b32 v{t+4}, 4, v1
        v_mov_b32 v{t+3}, {OOB}
        v_cmp_gt_u32 vcc, 36, v1
        s_mul_i32 s86, s{S_S}, 576
        s_mul_i32 s87, s{S_J}, 288
        v_cndmask_b32 v{t+5}, v{t+3}, v{t+4}, vcc
        v_cmp_gt_u32 vcc, 18, v1
        s_nop 1
        v_cndmask_b32 v{t+6}, v{t+3}, v{t+4}, vcc
        """)
        return L

    def setup_tables(self):
        L = []
        for c in range(1, 9):
            L += ["s_add_u32 s88, s88, 1", "s_cmp_eq_u32 s88, 9", "s_cselect_b32 s88, 0, s88",
                  f"s_mul_i32 s{S_TW+c}, s88, 589824", "s_lshl_b32 s84, s88, 7", f"s_add_u32 s{S_TX+c}, s89, s84"]
        return L
    def setup_reads_A(self):
        t = V_T
        L = lines(f"""
        v_lshrrev_b32 v{t}, 4, v1
        v_and_b32 v{t+1}, 1, v{t}
        v_lshrrev_b32 v{t+2}, 1, v{t}
        v_and_b32 v{t+3}, 15, v1
        v_lshrrev_b32 v{t+4}, 2, v{t+3}
        v_and_b32 v{t+3}, 3, v{t+3}
        v_lshl_add_u32 v{V_TB+4}, v{t+1}, 3, v{t+4}
        v_lshlrev_b32 v{V_TB+5}, 8, v{V_TB+4}
        v_lshl_add_u32 v{V_TB+5}, v{t+2}, 12, v{V_TB+5}
        v_lshl_add_u32 v{V_TB+5}, v{t+3}, 3, v{V_TB+5}
        v_lshl_add_u32 v{V_TA}, v{t+1}, 2, v{t+4}
        v_lshl_add_u32 v{V_TB+5}, v{V_TA}, 5, v{V_TB+5}
        """)
        for ft in range(8): L.append(f"v_xor_b32 v{V_TA+ft}, {ft*32}, v{V_TB+5}")
        for ft in range(8): L.append(f"v_add_u32 v{V_TA+8+ft}, {3*SLOT}, v{V_TA+ft}")
        L += lines(f"""
        v_and_b32 v{t}, 15, v1
        v_lshrrev_b32 v{t+1}, 4, v1
        v_lshrrev_b32 v{t+2}, 1, v{t}
        v_xor_b32 v{t+1}, v{t+1}, v{t+2}
        v_lshlrev_b32 v{t+1}, 4, v{t+1}
        v_lshl_add_u32 v{t+1}, v{t}, 7, v{t+1}
        v_add_u32 v{t+1}, {5*SLOT}, v{t+1}
        v_add_u32 v{V_XR}, s{S_MX}, v{t+1}
        v_xor_b32 v{t+1}, 64, v{t+1}
        v_add_u32 v{V_XR+1}, s{S_MX}, v{t+1}
        """)
        return L

    def setup_late(self):
        t = V_T + 3
        L = lines(f"s_mul_i32 s84, s{S_W}, {16*9216}")
        for q in range(5):
            L += lines(f"""
            v_add_u32 v{t}, {64*q}, v1
            v_mul_u32_u24 v{t+1}, 205, v{t}
            v_lshrrev_b32 v{t+1}, 12, v{t+1}
            v_mul_u32_u24 v{t+2}, 20, v{t+1}
            v_sub_u32 v{t+2}, v{t}, v{t+2}
            v_lshrrev_b32 v{t+3}, 2, v{t+1}
            v_and_b32 v{t+3}, 2, v{t+3}
            v_xor_b32 v{t+2}, v{t+2}, v{t+3}
            v_mul_u32_u24 v{t+3}, 9216, v{t+1}
            v_lshl_add_u32 v{t+3}, v{t+2}, 4, v{t+3}
            v_add_u32 v{V_WB+q}, s84, v{t+3}""")
            if q & 3: L.append(f"v_subrev_u32 v{V_WB+q}, {(q&3)*1024}, v{V_WB+q}")
        L += lines(f"""
        s_lshl_b32 s84, s{S_W}, 11
        s_lshl_b32 s85, s{S_M}, 4
        s_add_u32 s85, s85, s{S_S}
        s_mul_i32 s{S_HSO}, s85, 73728
        v_lshl_add_u32 v{V_HS}, v1, 4, s84
        s_lshl_b32 s85, s85, 7
        s_add_u32 s85, s85, {FL_OFF}
        v_mov_b32 v{t}, s85
        v_mov_b32 v{t+1}, {OOB}""")
        L.append(f"v_cmp_eq_u32 vcc, 0, v1\n    s_nop 1\n    v_cndmask_b32 v{V_FS}, v{t+1}, v{t}, vcc")
        L += lines(f"""
        v_lshrrev_b32 v{t}, 4, v1
        v_and_b32 v{t+1}, 1, v{t}
        v_lshrrev_b32 v{t+2}, 1, v{t}
        v_and_b32 v{t+3}, 15, v1
        v_lshrrev_b32 v{t+4}, 2, v{t+3}
        v_and_b32 v{t+3}, 3, v{t+3}
        v_lshl_add_u32 v{V_TB+4}, v{t+1}, 3, v{t+4}
        v_mul_u32_u24 v{V_TB+4}, 320, v{V_TB+4}
        v_mul_u32_u24 v{V_TB+5}, 5120, v{t+2}
        v_add_u32 v{V_TB+4}, v{V_TB+4}, v{V_TB+5}
        v_lshl_add_u32 v{V_TB+4}, v{t+3}, 3, v{V_TB+4}
        v_lshlrev_b32 v{t+1}, 5, v{t+1}
        v_add_u32 v{V_TB}, v{V_TB+4}, v{t+1}
        v_sub_u32 v{V_TB+1}, v{V_TB+4}, v{t+1}
        v_add_u32 v{V_TB+2}, {3*SLOT}, v{V_TB}
        v_add_u32 v{V_TB+3}, {3*SLOT}, v{V_TB+1}
        v_add_u32 v{V_TB+4}, {6*SLOT}, v{V_TB}
        v_add_u32 v{V_TB+5}, {6*SLOT}, v{V_TB+1}
        v_lshl_add_u32 v{t+4}, v{t}, 2, v{t+4}
        v_mul_u32_u24 v{t+4}, 288, v{t+4}
        v_lshl_add_u32 v{V_T2}, v{t+3}, 3, v{t+4}
        v_add_u32 v{V_T2+1}, {3*SLOT}, v{V_T2}
        v_add_u32 v{V_T2+2}, {6*SLOT}, v{V_T2}""")
        L.append("@P2")
        L += lines(f"""
        s_lshl_b32 s85, s{S_M}, 2
        s_add_u32 s85, s85, s{S_KQ}
        s_lshl_b32 s85, s85, 9
        s_add_u32 s85, s85, {FL_OFF}
        v_and_b32 v{t}, 3, v1
        v_min_u32 v{t}, 2, v{t}
        v_add_u32 v{t}, 1, v{t}
        v_add_u32 v{t}, s{S_J}, v{t}
        v_and_b32 v{t}, 3, v{t}
        v_lshlrev_b32 v{t}, 7, v{t}
        v_add_u32 v{V_FL}, s85, v{t}
        s_and_b32 s84, s{S_W}, 1
        s_mul_i32 s84, s84, {16*1152}
        """)
        for q in range(5):
            L += lines(f"""
            v_add_u32 v{t}, {64*q}, v1
            v_mul_u32_u24 v{t+1}, 57, v{t}
            v_lshrrev_b32 v{t+1}, 10, v{t+1}
            v_mul_u32_u24 v{t+2}, 18, v{t+1}
            v_sub_u32 v{t+2}, v{t}, v{t+2}
            v_mul_u32_u24 v{t+3}, 1152, v{t+1}
            v_lshl_add_u32 v{t+3}, v{t+2}, 4, v{t+3}
            v_add_u32 v{V_W2+q}, s84, v{t+3}""")
            if q & 3: L.append(f"v_subrev_u32 v{V_W2+q}, {(q&3)*1024}, v{V_W2+q}")
        L.append(f"v_mov_b32 v{t}, {OOB}")
        L.append(f"v_cmp_gt_u32 vcc, 32, v1\n    s_nop 1\n    v_cndmask_b32 v{V_W2+4}, v{t}, v{V_W2+4}, vcc")
        L += lines(f"""
        s_mul_i32 s0, s{S_PAR}, {160*1152}
        s_sub_u32 s1, {160*1152}, s0
        s_mul_i32 s3, s{S_PAR}, {-128*1152}
        s_sub_u32 s37, {-128*1152}, s3
        s_mul_i32 s88, s{S_J}, 288
        """)
        for d in range(4):
            L += lines(f"""
            s_add_u32 s{84+d}, s{S_J}, {d}
            s_and_b32 s{84+d}, s{84+d}, 3
            s_lshl_b32 s89, s{S_KQ}, 2
            s_add_u32 s{84+d}, s{84+d}, s89
            s_lshl_b32 s89, s{S_M}, 4
            s_add_u32 s89, s89, s{84+d}
            s_mul_i32 s{S_HB+d}, s89, 73728
            s_mul_i32 s{84+d}, s{84+d}, {288*1152}
            s_add_u32 s{84+d}, s{84+d}, s88""")
        for c in range(18):
            (d0, i0), (d1, i1) = SEQ2[2 * c], SEQ2[2 * c + 1]
            def corr(d, i): return (0 if d % 2 == 0 else 1) if i < 4 else (3 if d % 2 == 0 else 37)
            L += lines(f"""
            s_add_u32 s88, s{84+d0}, s{corr(d0,i0)}
            s_add_u32 s88, s88, {32*i0*1152}
            s_add_u32 s89, s{84+d1}, s{corr(d1,i1)}
            s_add_u32 s89, s89, {32*i1*1152}""")
            L.append(f"s_cmp_lt_u32 s{S_W}, 2\n    s_cselect_b32 s{S_SO2+c}, s88, s89")
        return L

    def pf1_setup(self):
        t = V_T
        return lines(f"""
        s_and_b32 s84, s{S_M}, 7
        s_lshl_b32 s84, s84, 2
        s_add_u32 s84, s84, s{S_J}
        s_lshl_b32 s84, s84, 2
        s_add_u32 s84, s84, s{S_W}
        s_lshr_b32 s85, s{S_M}, 3
        s_lshl_b32 s85, s85, 10
        s_lshl_b32 s86, s84, 3
        s_add_u32 s85, s85, s86
        s_mul_i32 s85, s85, 1152
        v_lshrrev_b32 v{t+2}, 3, v1
        v_and_b32 v{t+3}, 7, v1
        v_mul_u32_u24 v{t+3}, 1152, v{t+3}
        v_lshl_add_u32 v{t+3}, v{t+2}, 7, v{t+3}
        v_add_u32 v{t+3}, 256, v{t+3}
        v_add_u32 v{t+3}, s85, v{t+3}
        v_mov_b32 v{t+4}, {OOB}
        v_cmp_gt_u32 vcc, 56, v1
        s_lshl_b32 s84, s84, 2
        s_mul_i32 s85, s{S_KQ}, {4*576}
        v_cndmask_b32 v{t}, v{t+4}, v{t+3}, vcc
        v_and_b32 v{t+2}, 3, v1
        v_add_u32 v{t+2}, s84, v{t+2}
        v_lshrrev_b32 v{t+3}, 3, v{t+2}
        v_lshrrev_b32 v{t+1}, 2, v1
        v_lshl_add_u32 v{t+3}, v{t+1}, 6, v{t+3}
        v_add_u32 v{t+3}, 128, v{t+3}
        v_mul_u32_u24 v{t+3}, 9216, v{t+3}
        v_and_b32 v{t+2}, 7, v{t+2}
        v_lshrrev_b32 v{t+1}, 1, v{t+2}
        v_mul_u32_u24 v{t+5}, 576, v{t+1}
        v_add_u32 v{t+3}, v{t+3}, v{t+5}
        v_and_b32 v{t+1}, 1, v{t+1}
        v_mul_u32_u24 v{t+1}, 320, v{t+1}
        v_add_u32 v{t+3}, v{t+3}, v{t+1}
        v_and_b32 v{t+2}, 1, v{t+2}
        v_lshl_add_u32 v{t+3}, v{t+2}, 7, v{t+3}
        v_add_u32 v{t+3}, s85, v{t+3}
        v_cmp_gt_u32 vcc, 28, v1
        s_nop 1
        v_cndmask_b32 v{t+1}, v{t+4}, v{t+3}, vcc
        """)
    def w_items(self, C):
        slot = self.wslot[C]
        if C < 9:
            it = [(f"s_add_u32 s{S_WSO}, s{S_CBA}, s{S_TW+C}", 's', None),
                  (f"s_add_u32 m0, s{S_MX}, {slot*SLOT}", 's', None)]
            for q in range(4):
                it.append((f"buffer_load_dwordx4 v{V_WA+q}, s[{S_W1}:{S_W1+3}], s{S_WSO} offen offset:{q*1024}" + NT1 + " lds", 'm', ('W', C)))
            return it
        if C < 18:
            vb, sr, so = V_WB, S_W1, S_WSO
            it = [(f"s_add_u32 s{S_WSO}, s{S_CBB}, s{S_TW+C-9}", 's', None)]
        else:
            vb, sr, so = V_W2, S_W2, S_SO2 + C - 18
            it = []
        nt = NT1 if C < 18 else ""
        it.append((f"s_add_u32 m0, s{S_MW}, {slot*SLOT}", 's', None))
        for q in range(4):
            it.append((f"buffer_load_dwordx4 v{vb+q}, s[{sr}:{sr+3}], s{so} offen offset:{q*1024}{nt} lds", 'm', ('W', C)))
        it.append((f"s_add_u32 m0, s{S_MW}, {slot*SLOT+4096}", 's', None))
        it.append((f"buffer_load_dwordx4 v{vb+4}, s[{sr}:{sr+3}], s{so} offen{nt} lds", 'm', ('W', C)))
        return it
    def x_items(self, c):
        slot = 5 + c % 3
        it = [(f"s_add_u32 m0, s{S_MX}, {slot*SLOT}", 's', None)]
        for q in range(4):
            it.append((f"buffer_load_dwordx4 v{V_X+q}, s[{S_X}:{S_X+3}], s{S_TX+c} offen offset:{q*1024}" + NTX + " lds", 'm', ('X', c)))
        return it
    def push_dma(self, items, early, need, cost):
        e = self.e
        nm = sum(1 for it in items if it[1] == 'm')
        dmin = iopt("dmin", 40)
        k = 0
        for (t, kind, tag) in items:
            late = max(early + 1 + k, int(need - dmin - (nm - 1 - min(k, nm - 1)) * cost))
            if kind == 'm':
                e.push('dma', t, kind, tag, early=early, late=late, cost=cost)
                k += 1
            else:
                e.push('dma', t, kind, tag, early=early, late=max(early, late - 1))
        self.tighten('dma')
    def tighten(self, stream):
        q = self.e.streams.get(stream, [])
        for i in range(len(q) - 2, -1, -1):
            sp = q[i].cost if q[i].kind == 'm' else 1
            lim = q[i + 1].late - sp
            if q[i].late > lim: q[i].late = max(q[i].early, int(lim))

    def frag_reads(self, si):
        kind, k = STEPS[si]
        C, ks = si // 2, si % 2
        slot = self.wslot[C]
        dst0 = AW + 40 * (si % 2)
        out = []
        for f in range(nfrag(kind)):
            for h in range(2):
                d = dst0 + 4 * f + 2 * h
                if kind == 'A':
                    vb = V_TA + f + (8 if slot >= 3 else 0)
                    off = (slot % 3) * SLOT + ks * 8192 + h * 1024
                elif kind == 'B':
                    vb = V_TB + (f & 1) + 2 * (slot // 3)
                    off = (slot % 3) * SLOT + ks * 10240 + h * 1280 + f * 32
                else:
                    vb = V_T2 + slot // 3
                    off = (slot % 3) * SLOT + ks * 10240 + h * 5120 + f * 32
                out.append((f"ds_read_b64_tr_b16 a[{d}:{d+1}], v{vb} offset:{off}", ('WF', si, f)))
        return out
    def frag_read(self, si, f, h, dst):
        C, ks = si // 2, si % 2
        slot = self.wslot[C]
        off = (slot % 3) * SLOT + ks * 10240 + h * 5120 + f * 32
        d = dst + 2 * h
        return (f"ds_read_b64_tr_b16 a[{d}:{d+1}], v{V_T2 + slot // 3} offset:{off}", ('FB', si, f))
    def x_reads(self, kt):
        c, p = kt // 2, kt % 2
        return [(f"ds_read_b128 a[{AX+8*kt+4*t}:{AX+8*kt+4*t+3}], v{V_XR+p} offset:{(c%3)*SLOT + t*2048}", ('XF', kt)) for t in range(2)]

    def bias_cvt(self, n, base):
        out = []
        for ft in range(n):
            q = base + 4 * ft
            out += [f"v_lshlrev_b32 v{q}, 16, v{q+2}", f"v_and_b32 v{q+1}, 0xffff0000, v{q+2}",
                    f"v_lshlrev_b32 v{q+2}, 16, v{q+3}", f"v_and_b32 v{q+3}, 0xffff0000, v{q+3}"]
        return out
    def epi_items(self, acc, il, istore, t):
        P = acc + 16 * il + 4 * t; Q = P + 8
        it = []
        for r in range(4): it.append((f"v_mul_f32 v{P+r}, v{P+r}, |v{P+r}|", 'v', None))
        for r in range(4): it.append((f"v_mul_f32 v{Q+r}, v{Q+r}, |v{Q+r}|", 'v', None))
        it += [(f"v_cvt_pk_bf16_f32 v{P}, v{P}, v{P+1}", 'v', None), (f"v_cvt_pk_bf16_f32 v{P+1}, v{P+2}, v{P+3}", 'v', None),
               (f"v_cvt_pk_bf16_f32 v{P+2}, v{Q}, v{Q+1}", 'v', None), (f"v_cvt_pk_bf16_f32 v{P+3}, v{Q+2}, v{Q+3}", 'v', None)]
        for r in range(4): it.append((f"v_pk_max_i16 v{P+r}, v{P+r}, 0", 'v', None))
        if t == 0: it.append((f"s_add_u32 s{S_T2}, s{S_HSO}, {istore*8192}", 's', None))
        st = f"buffer_store_dwordx4 v[{P}:{P+3}], v{V_HS}, s[{S_WS}:{S_WS+3}], s{S_T2} offen offset:{t*1024}" + {"nt": " sc1 nt", "sc01": " sc0 sc1", "sc01nt": " sc0 sc1 nt"}.get(opt("hstf", ""), " sc1")
        if opt("x_nostB") and istore >= 4: st = f"buffer_load_dword v255, v{V_FS}, s[{S_WS}:{S_WS+3}], 0 offen offset:24"
        if opt("x_noepiB") and istore >= 4: it = [x for x in it if x[1] != 'v']
        it.append((st, 'm', ('HS', part_of(istore))))
        return it

    def poll_check(self, load_text, cond_bad, name):
        self.nlabel += 1
        lb = f"L_{name}_{self.nlabel}"
        self.slow.append(f"""
        {lb}_slow:
        s_mov_b32 s91, {SPIN_LIMIT}
        {lb}_spin:
        {load_text}
        s_waitcnt vmcnt(0)
        {cond_bad}
        s_nop 1
        s_cbranch_vccz {lb}_back
        s_sub_u32 s91, s91, 1
        s_cmp_lg_u32 s91, 0
        s_cbranch_scc1 {lb}_spin
        s_branch {lb}_back
        """)
        return f"{cond_bad}\n    s_nop 1\n    s_cbranch_vccnz {lb}_slow\n{lb}_back:"

    def prologue(self):
        e = self.e
        t = V_T
        stamp(e, 0)
        e.raw(f"""
        s_cmp_ge_u32 s2, 256
        s_cbranch_scc1 L_end
        s_load_dwordx16 s[{KA}:{KA+15}], s[0:1], 0
        """)
        if opt("icpf", "1") == "1":
            e.raw(f"""
            s_getpc_b64 s[90:91]
            L_pc:
            v_lshlrev_b32 v{t}, 7, v0
            v_min_u32 v{t+1}, L_code_end-L_pc-4, v{t}""")
            e.vmem(f"global_load_dword v255, v{t+1}, s[90:91]", 'IC')
            e.raw(f"v_add_u32 v{t}, 32768, v{t}\nv_min_u32 v{t+1}, L_code_end-L_pc-4, v{t}")
            e.vmem(f"global_load_dword v255, v{t+1}, s[90:91]", 'IC')
        for x in self.setup_first(): e.raw(x)
        stamp(e, 3, True) if opt("pstamp") else None
        e.raw("s_waitcnt lgkmcnt(0)")
        stamp(e, 4, True) if opt("pstamp") else None
        for x in srd(S_X, KA, X_BYTES) + srd(S_W1, KA + 2, W1_BYTES) + srd(S_B1, KA + 4, B1_BYTES) + srd(S_DBG, KA + 8, B2_BYTES): e.raw(x)
        self.wslot = {0: 0, 1: 1, 2: 2, 3: 3, 4: 4}
        def emit_items(items):
            for (tx, k, tag) in items:
                if k == 'm': e.vmem(tx, tag)
                else: e.raw(tx)
        emit_items([(f"s_mov_b32 m0, {BIAS_LDS}", 's', None),
                    (f"buffer_load_dwordx4 v{t+5}, s[{S_B1}:{S_B1+3}], s86 offen lds", 'm', 'BI'),
                    (f"s_mov_b32 m0, {BIAS_LDS+1024}", 's', None),
                    (f"buffer_load_dwordx4 v{t+6}, s[{S_DBG}:{S_DBG+3}], s87 offen lds", 'm', 'BI')])
        emit_items(self.x_items(0) + self.w_items(0))
        stamp(e, 5, True) if opt("pstamp") else None
        for x in srd(S_WS, KA + 14, WS_BYTES) + srd(S_W2, KA + 6, W2_BYTES) + srd(S_OUT, KA + 10, OUT_BYTES): e.raw(x)
        e.raw(f"s_mov_b32 s100, s{KA+12}\ns_mov_b32 s101, s{KA+13}\ns_nop 0")
        for x in self.setup_tables(): e.raw(x)
        for x in self.setup_reads_A(): e.raw(x)
        late = self.setup_late(); cut = late.index("@P2")
        for x in late[:cut]: e.raw(x)
        self.setup_p2 = late[cut + 1:]
        if opt("p2pro", "1") == "1":
            for x in self.setup_p2: e.raw(x)
            self.setup_p2 = []
        e.raw(f"""
        s_or_b32 s88, s2, s{S_W}
        v_mov_b32 v{t}, {OOB}
        v_mov_b32 v{t+1}, {EP_OFF}
        v_or_b32 v{t+2}, s88, v1
        v_cmp_eq_u32 vcc, 0, v{t+2}
        s_nop 1
        v_cndmask_b32 v{V_NP}, v{t}, v{t+1}, vcc""")
        e.raw(f"""
        s_mul_i32 s84, s{S_S}, 576
        s_sub_u32 s85, s{S_CBA}, s84
        s_sub_u32 s86, s{S_CBB}, s84
        s_add_u32 s85, s85, {BIAS_LDS}
        s_add_u32 s86, s86, {BIAS_LDS}
        v_add_u32 v{t}, s85, v{V_BI}
        v_add_u32 v{t+1}, s86, v{V_BI}
        v_add_u32 v{t+2}, {BIAS_LDS+1024}, v{V_BI}
        """)
        stamp(e, 6, True) if opt("pstamp") else None
        e.wait_vm('BI')
        stamp(e, 7, True) if opt("pstamp") else None
        for ft in range(8): e.ds(f"ds_read_b64 v[{ACC_B+4*ft+2}:{ACC_B+4*ft+3}], v{t} offset:{32*ft}", 'BR')
        for ft in range(10): e.ds(f"ds_read_b64 v[{BIASB+4*ft+2}:{BIASB+4*ft+3}], v{t+1} offset:{32*ft}", 'BR')
        for nt in range(9): e.ds(f"ds_read_b64 a[{AB2+2*nt}:{AB2+2*nt+1}], v{t+2} offset:{32*nt}", 'BR')
        e.raw(f"s_mov_b32 s{S_DBG}, s100\ns_mov_b32 s{S_DBG+1}, s101\ns_mov_b32 s{S_DBG+2}, 256")
        e.wait_lg_all()
        for x in self.bias_cvt(8, ACC_B) + self.bias_cvt(10, BIASB): e.raw(x)
        emit_items(self.x_items(1) + self.w_items(1))
        stamp(e, 1, bool(opt("pstamp")))
        e.wait_vm([('W', 0), ('X', 0)])
        e.raw("s_barrier")
        stamp(e, 2, bool(opt("pstamp")))
        self.pro_rest = [self.x_items(2), self.w_items(2),
                         [(f"buffer_load_dword v{V_P}, v{V_NP}, s[{S_WS}:{S_WS+3}], 0 offen sc1", 'm', 'EP')], self.w_items(3), self.w_items(4)]
        for (tx, tag) in self.frag_reads(0): e.ds(tx, tag)
        for (tx, tag) in self.x_reads(0): e.ds(tx, tag)
    @staticmethod
    def _glued(prev):
        return prev.startswith("s_cmp") or prev.startswith("v_cmp") or prev.startswith("s_nop")

    def build(self):
        e = self.e
        self.prologue()
        if opt("noAst"): e.raw(f"v_mov_b32 v255, {OOB}")
        e.prio_streams = {'dma', 'hld', 'stB'}
        e.force_prio = True
        e.strict = opt('strict', '1') == '1'
        e.ta_slack = float(opt('ta_slack', 1.0))
        if e.strict: e.prio_streams = {'dma', 'hld', 'stA', 'stB', 'poll', 'flag'}
        e.min_sp = iopt('min_sp', 3)
        self.pf_gap = None
        NBq = iopt("nb", 4)
        def need(C): return min(GOS[2 * C - 1] - 1, GOS[72 - NBq - 1] - 1)
        CX = CA = float(opt("spA", 3.0)); CB_ = float(opt("spB", 4.5)); C2 = float(opt("sp2", 3.5))
        def wcost(C): return CA if C < 9 else (CB_ if C < 18 else C2)
        pr = self.pro_rest
        self.push_dma(pr[0], 0, need(2), CX); self.push_dma(pr[1], 0, need(2), CA)
        self.push_dma(pr[2], 0, GOS[3], 1.0)
        self.push_dma(pr[3], 0, need(3), CA); self.push_dma(pr[4], 0, need(4), CA)
        nextW = 5
        LOOK = iopt("look", 8)
        MERGE = True
        NB = iopt("nb", 4); B0 = 72 - NB
        self.NB, self.B0 = NB, B0
        for si, (kind, k) in enumerate(STEPS):
            if si == B0: break
            nf = nfrag(kind); ngap = 2 * nf
            C, ks = si // 2, si % 2
            g0 = e.gap
            assert g0 == GOS[si]
            cur = AW + 40 * (si % 2)
            if (kind, k) == ('B', 0): stamp(e, 3)
            if (kind, k) == ('P', 0): stamp(e, 4)
            if (kind, k) == ('P', 9): stamp(e, 5)
            have_next = si + 1 < len(STEPS)
            reads = []
            if si == B0 - 1:
                reads = [self.frag_read(B0 + j, f, h, self.blk_buf(f) + 4 * j) for f in range(2) for j in range(NB) for h in range(2)]
            elif have_next:
                reads = self.frag_reads(si + 1)
                nkind, nk = STEPS[si + 1]
                if nkind == 'A':
                    xr = self.x_reads(nk)
                    reads = reads[:2] + xr[:1] + reads[2:4] + xr[1:] + reads[4:]
            per = [[] for _ in range(ngap)]
            nr = len(reads)
            for i_, r in enumerate(reads):
                per[(i_ * ngap) // nr if nr > ngap else i_].append(r)
            if si == B0 - 2: self.push_tail_setup(g0)
            pre0 = []
            if opt("stepstamp"):
                a_, b_ = [int(v) for v in opt("stepstamp").split("_")]
                if a_ <= si <= b_:
                    pre0 = [f"v_writelane_b32 v63, s90, {si - a_}", "s_memtime s[90:91]"]
            if have_next and ks == 1:
                nC = C + 1
                pre0 = ["s_barrier"] + pre0
                if opt("chunkstamp") and not opt("stepstamp"):
                    pre0 = pre0 + [f"v_writelane_b32 v63, s90, {nC-1}", "s_memtime s[90:91]"]
                if nC - 2 >= 0: self.free.append(self.wslot[nC - 2])
                if kind == 'A' and C + 3 < 9:
                    self.push_dma(self.x_items(C + 3), g0 + 1, need(C + 3), CX)
                if kind == 'A' and C >= 6:
                    self.free.append(5 + C % 3)
                nissue = 0
                while self.free and nextW < 36 and nextW <= nC + LOOK:
                    if kind == 'A' and nextW >= 9 and nissue >= iopt("wA", 2): break
                    nissue += 1
                    cand = [s_ for s_ in self.free if (nextW >= 9 or s_ < 5)]
                    if not cand: break
                    early = g0 + 1
                    if nextW >= 18 + iopt("w2_in_window", 0):
                        if self.pf_gap is None: break
                        early = max(early, self.pf_gap + iopt("pf_window", 140))
                    sl = cand[0]; self.free.remove(sl)
                    self.wslot[nextW] = sl
                    nd = need(nextW)
                    if 9 <= nextW < 18 + iopt("w2_in_window", 0):
                        asap = max(g0 + iopt("dmin", 40) + int(6 * wcost(nextW)), getattr(self, "last_asap", 0) + int(6 * wcost(nextW)))
                        nd = min(nd, asap); self.last_asap = nd
                    cost = wcost(nextW)
                    lin0 = iopt("lin0", 25)
                    if nextW >= lin0:
                        lper = iopt("linper", 49)
                        early = max(early, GOS[36] + (nextW - lin0) * lper)
                        pass
                        nd = min(nd, early + lper + iopt("dmin", 40))
                    self.push_dma(self.w_items(nextW), early, max(nd, early + iopt("dmin", 40) + 30), cost)
                    nextW += 1
                    if nextW == 18: self.push_pf2(g0 + 1)
                self.after_barrier_hooks(si, g0)
            self.step_hooks(si, kind, k, g0, ngap)
            def waits_for(sj, gi):
                kj, kk = STEPS[sj]; nfj = nfrag(kj)
                w = []
                f, t = gi // 2, gi % 2
                G = 4 if kj == 'A' else 5
                if t == 0 and f % G == 0:
                    tags = [('WF', sj, min(f + G - 1, nfj - 1))]
                    if f == 0 and kj == 'A': tags.append(('XF', kk))
                    w.append(('lg', tags))
                if gi == 0 and kj == 'P' and SEQ2[kk][0] != 0:
                    w.append(('vm', [('H', kk)]))
                return w
            for f in range(nf):
                for t in range(2):
                    gi = 2 * f + t
                    A = f"a[{cur+4*f}:{cur+4*f+3}]"
                    if kind in 'AB':
                        B = f"a[{AX+8*k+4*t}:{AX+8*k+4*t+3}]"
                        acc = (ACC_A if kind == 'A' else ACC_B) + 8 * f + 4 * t
                        D = f"v[{acc}:{acc+3}]"
                        if k == 0:
                            bq = (ACC_B if kind == 'A' else BIASB) + 4 * f
                            Cc = f"v[{bq}:{bq+3}]"
                        else: Cc = D
                    else:
                        d, i = SEQ2[k]
                        if d == 0:
                            hb = (ACC_A + 16 * i if i < 4 else ACC_B + 16 * (i - 4)) + 4 * t
                            B = f"v[{hb}:{hb+3}]"
                        else:
                            hb = AH + 8 * RING[k] + 4 * t
                            B = f"a[{hb}:{hb+3}]"
                        acc = acc2(f, t)
                        D = f"v[{acc}:{acc+3}]"
                        Cc = "0" if k == 0 else D
                    if si == 0 and gi == 0:
                        e.wait_lg([('WF', 0, 3), ('XF', 0)])
                    post = []
                    if gi + 1 < ngap: post += waits_for(si, gi + 1)
                    elif have_next:
                        if si == B0 - 1:
                            post.append(('lg', [('FB', B0 + NB - 1, 0)]))
                            post.append(('vm', [('H', 35)]))
                        else:
                            post += waits_for(si + 1, 0)
                        if ks == 0 and si + 2 < len(STEPS):
                            nC = C + 1
                            tags = [('W', nC)]
                            if si + 1 == B0 - 1: tags += [('W', c_) for c_ in range(nC, 36)]
                            if kind == 'A' and nC < 9: tags.append(('X', nC))
                            tags += self.extra_barrier_tags(si + 1)
                            post.append(('vm', tags))
                    e.mfma_gap(f"v_mfma_f32_16x16x32_bf16 {D}, {A}, {B}, {Cc}", pre=pre0 if gi == 0 else (), dss=per[gi], post=post)
        if MERGE:
            import copy
            assert e.pending() == 0 or all(nm not in ('dma', 'hld') or not q for nm, q in e.streams.items())
            e.flush_streams()
            e.raw(f"s_cmp_eq_u32 s{S_W}, s{S_KQ}\ns_cbranch_scc1 L_owner")
            eo = Emitter()
            eo.vm, eo.vm_gap, eo.vm_done = list(e.vm), list(e.vm_gap), e.vm_done
            eo.lg, eo.lg_done = list(e.lg), e.lg_done
            eo.gap = e.gap
            eo.raw("L_owner:")
            self.final_block(eo, False)
            self.tail_owner(eo)
            self.slow.append(eo.text())
            self.final_block(e, True)
            if opt("chunkstamp"):
                e.raw("s_waitcnt lgkmcnt(0)\nv_writelane_b32 v63, s90, 35\ns_memtime s[90:91]\ns_waitcnt lgkmcnt(0)\nv_writelane_b32 v63, s90, 36")
            stamp(e, 6)
            self.tail_sender()
        else:
            raise SystemExit("only the merged tail is generated")
        e.raw("L_end:\ns_endpgm")
        for s_ in self.slow: e.raw(s_)
        e.raw("L_code_end:")
        print(e.stats, "slots:", self.wslot, file=sys.stderr)
        if opt("vmlog"):
            for (g, tags, n, newly) in e.log:
                y = newly[-1] if newly else None
                summary = {}
                for (t, gg) in newly: summary.setdefault(str(t), []).append(gg)
                print(f"gap {g:5d} wait {tags} vmcnt({n}) youngest {y} dist {g - y[1] if y else 0}  covers " + ", ".join(f"{k}@{v[0]}-{v[-1]}" for k, v in summary.items()), file=sys.stderr)
        return e.text()

    PUB = tuple(x[1] for x in PARTS)
    def extra_barrier_tags(self, si):
        return [('HS', p) for p in range(len(PARTS)) if self.PUB[p] == si]
    def after_barrier_hooks(self, si, g0):
        e = self.e
        if si in self.PUB:
            part = self.PUB.index(si)
            e.push('flag', f"buffer_store_dword v{V_NP}, v{V_FS}, s[{S_WS}:{S_WS+3}], 0 offen offset:{4*part} sc1", 'm', ('FS', part), early=g0 + 2, late=g0 + 2)

    def push_pf2(self, g):
        e = self.e; t = V_T
        for n_, tx in enumerate([f"s_and_b32 s100, s{S_M}, 7", f"s_lshl_b32 s100, s100, 2", f"s_add_u32 s100, s100, s{S_J}", f"s_mul_i32 s100, s100, {36*1152}",
                   f"s_mul_i32 s101, s{S_KQ}, {1152*1152}", f"s_add_u32 s100, s100, s101", f"s_mul_i32 s101, s{S_W}, {81*128}", f"s_add_u32 s100, s100, s101",
                   f"v_lshlrev_b32 v{t}, 7, v1", f"v_mov_b32 v{t+2}, {OOB}", f"v_add_u32 v{t+1}, {64*128}, v{t}",
                   f"v_cmp_gt_u32 vcc, 17, v1\n    s_nop 1\n    v_cndmask_b32 v{t+1}, v{t+2}, v{t+1}, vcc"]):
            e.push('pf', tx, 's', early=g, late=g + 2 + n_)
        burst0 = max(g, GOS[18 + iopt("pf_at", 5)], GOS[18 + iopt("epiA1_late", 6)] + 14)
        slack = max(0, (e.streams['dma'][-1].late if e.streams['dma'] else g) - burst0) + 2
        def rec():
            self.pf_gap = e.gap
            return f"buffer_load_dword v255, v{t}, s[{S_W2}:{S_W2+3}], s100 offen"
        e.push('dma', rec, 'm', 'PF', early=burst0, late=burst0 + slack + 2, cost=10)
        e.push('dma', f"buffer_load_dword v255, v{t+1}, s[{S_W2}:{S_W2+3}], s100 offen", 'm', 'PF', early=burst0, late=burst0 + slack + 8, cost=5)

    def step_hooks(self, si, kind, k, g0, ngap):
        e = self.e
        if (kind, k) == ('A', iopt("ep_at", 4)):
            e.push('nonce', lambda: e.vm_wait_text('EP'), 'w', early=g0, late=g0 + 2)
            for t in [f"v_add_u32 v{V_P}, 1, v{V_P}", f"v_or_b32 v{V_P}, 0x80000000, v{V_P}"]:
                e.push('nonce', t, 'v', early=g0, late=g0 + 4)
            e.push('nonce', f"buffer_store_dword v{V_P}, v{V_NP}, s[{S_WS}:{S_WS+3}], 0 offen sc1", 'm', 'EPW', early=g0, late=g0 + 6)
            e.push('nonce', f"v_subrev_u32 v{V_NP}, {EP_OFF}, v{V_NP}", 'v', early=g0, late=g0 + 8)
            e.push('nonce', f"buffer_store_dword v{V_P}, v{V_NP}, s[{S_DBG}:{S_DBG+3}], 0 offen sc1", 'm', 'NW', early=g0, late=g0 + 10)
        NR = iopt("nr_at", 12); NC = iopt("nc_at", 16)
        ldn = f"buffer_load_dword v{V_P}, v{V_NP}, s[{S_DBG}:{S_DBG+3}], 0 offen sc1"
        if (kind, k) == ('A', NR):
            e.push('nonce', f"v_mov_b32 v{V_NP}, 0", 'v', early=g0, late=g0 + 2)
            e.push('nonce', ldn, 'm', 'NR', early=g0 + 1, late=g0 + 4)
        if (kind, k) == ('A', NC):
            e.push('nonce', lambda: e.vm_wait_text('NR'), 'w', early=g0, late=g0 + 2)
            e.push('nonce', self.poll_check(ldn, f"v_cmp_eq_u32 vcc, 0, v{V_P}", "nonce"), 's', early=g0, late=g0 + 5)
            e.push('nonce', f"v_readfirstlane_b32 s{S_N}, v{V_P}\n    s_nop 3", 'v', early=g0, late=g0 + 8)
            e.push('nonce', f"v_mov_b32 v{V_NP}, s{S_N}", 'v', early=g0, late=g0 + 10)
        if (kind, k) == ('B', iopt("p2_at", 6)) and self.setup_p2:
            end = GOS[18 + iopt("p2_end", 13)]
            for n, x in enumerate(self.setup_p2):
                e.push('setup', x, 's', early=g0, late=g0 + ((n + 1) * (end - g0)) // len(self.setup_p2))
        SPS = float(opt('spS', 3.5))
        if (kind, k) == ('B', 0):
            st = g0 + 8
            e1 = GOS[18 + iopt("epiA1_late", 6)] + 8; e2 = GOS[18 + iopt("epiA2_late", 11)]
            self.storesA2 = []
            nA1 = iopt("nA1", 4)
            for (frs, a, b) in ((tuple(range(nA1)), st, e1), (tuple(range(nA1, 4)), e1, e2)):
                its = [x for i in frs for t in range(2) for x in self.epi_items(ACC_A, i, i, t)]
                nv = sum(1 for x in its if x[1] == 'v'); n = 0; late = a
                for (tx, kk, tag) in its:
                    if kk == 'v':
                        n += 1; late = a + (n * (b - a)) // nv
                        e.push('epi', tx, kk, tag, early=st, late=late)
                    elif frs[0] == 0:
                        e.push('stA', tx, kk, tag, early=late + 1, late=late + 4, cost=SPS if kk == 'm' else 0)
                    else:
                        self.storesA2.append((tx, kk, tag, late))
        if getattr(self, "storesA2", None) and kind == 'B' and self.pf_gap is not None and k >= iopt("epiA2_late", 11) - 1:
            early = self.pf_gap + iopt("pf_window", 140); sp = iopt("stA2_sp", 10)
            for (tx, kk, tag, late) in self.storesA2:
                early = max(early, late + 1)
                e.push('stA', tx, kk, tag, early=early, late=early + 3, cost=SPS if kk == 'm' else 0)
                if kk == 'm': early += sp
            self.storesA2 = []
        if (kind, k) == ('P', 0):
            prev = g0 + 2
            for (frs, vend, burst) in (((4, 5, 6), iopt("vB1", 80), iopt("bB1", 84)), ((7, 8), iopt("vB2", 150), iopt("bB2", 230))):
                its = [(i, x) for i in frs for t in range(2) for x in self.epi_items(ACC_B, i - 4, i, t)]
                end = g0 + vend
                nv = sum(1 for (_, x) in its if x[1] == 'v'); n = 0; early = g0 + burst
                for (i, (tx, kk, tag)) in its:
                    if kk == 'v':
                        n += 1
                        late = min(prev + (n * (end - prev)) // nv, GOS[36 + OWNB[i]] - 4)
                        e.push('epi', tx, kk, tag, early=g0 + 2, late=late)
                    else:
                        e.push('stB', tx, kk, tag, early=early if kk == 'm' else early - 2, late=early - 30, cost=float(opt("spSB", 4.0)) if kk == 'm' else 0)
                prev = end
        if kind == 'P' or (kind == 'B' and k >= 14):
            LA = iopt("LA", 4)
            q = k if kind == 'P' else k - 18
            c0, c1, c2 = PARTS[0][3], PARTS[1][3], PARTS[2][3]
            ea = iopt("earlyA", 1)
            FIRST = {9: c0, 10: c0, 11: c0 + ea, 12: c0 + ea, 21: c1, 22: c1, 23: c1 + 1, 30: c2, 31: c2 + 1}
            if iopt("early6", 0): FIRST.update({13: c0 + 1, 14: c0 + 1})
            if self.NB == 4: FIRST.update({32: 27, 33: 28, 34: 28, 35: 29})
            def issue_at(qn):
                if qn in FIRST: return FIRST[qn]
                return max(qn - LA, PARTS[part_of(SEQ2[qn][1])][3], qn - HD + 1)
            for part, (_, _, pol, chk) in enumerate(PARTS):
                ld = f"buffer_load_dword v{V_P}, v{V_FL}, s[{S_WS}:{S_WS+3}], 0 offen offset:{4*part} sc1"
                if q == pol:
                    e.push('poll', ld, 'm', ('FP', part), early=g0 + 1, late=g0 + 2, cost=1)
                if q == chk:
                    e.push('poll', (lambda part=part: e.vm_wait_text(('FP', part))), 'w', early=g0, late=g0)
                    if not opt("x_nochk"): e.push('poll', self.poll_check(ld, f"v_cmp_ne_u32 vcc, s{S_N}, v{V_P}", f"flag{part}"), 's', early=g0, late=g0 + 1)
            assert LA < HD
            for qn in PEERS:
                if issue_at(qn) != q: continue
                d, i = SEQ2[qn]
                SH = S_HSO if opt("x_hhot") else S_T
                FLH = "" if (opt("x_hhot") or opt("hplain")) else " sc1"
                dst = AH + 8 * RING[qn]
                nd = min(GOS[36 + qn] - 1 - iopt("dminH", 36), g0 + ngap + 2)
                e.push('hld', f"s_add_u32 s{S_T}, s{S_HB+d}, {i*8192}", 's', early=g0 + 3, late=max(g0 + 4, nd - 6))
                for t in range(2):
                    e.push('hld', f"buffer_load_dwordx4 a[{dst+4*t}:{dst+4*t+3}], v{V_HS}, s[{S_WS}:{S_WS+3}], s{SH} offen offset:{t*1024}" + FLH, 'm', ('H', qn), early=g0 + 4, late=max(g0 + 5 + t, nd - 5 + 5 * t), cost=float(opt('spH', 3.0)))

    NG = 12
    BOX = 12 * 1024
    @staticmethod
    def val(v): return acc2((v // 4) // 2, (v // 4) % 2) + v % 4
    QUADS = [V_TA + 4 * i for i in range(4)]

    def push_tail_setup(self, g0):
        e = self.e; t = V_T
        items = lines(f"""
        s_lshl_b32 s84, s{S_M}, 2
        s_add_u32 s84, s84, s{S_J}
        s_lshl_b32 s84, s84, 2
        v_lshlrev_b32 v{t}, 4, v1
        s_add_u32 s85, s84, s{S_W}
        s_lshl_b32 s85, s85, 2
        s_add_u32 s85, s85, s{S_KQ}
        s_mul_i32 s85, s85, {self.BOX}
        s_add_u32 s85, s85, {P_OFF}
        s_add_u32 s86, s85, 4096
        s_add_u32 s87, s85, 8192""") + [f"v_mov_b32 v{q+3}, s{S_N}" for q in self.QUADS]
        for n, x in enumerate(items):
            e.push('misc', x, 's', early=g0 + 1, late=g0 + 4 + 2 * n)

    def granule_items(self, g):
        t = V_T; q = self.QUADS[g % 4]
        it = [(f"v_cvt_pk_bf16_f32 v{q+w_}, v{self.val(6*g+2*w_)}, v{self.val(6*g+2*w_+1)}", 'v') for w_ in range(3)]
        it.append((f"buffer_store_dwordx4 v[{q}:{q+3}], v{t}, s[{S_WS}:{S_WS+3}], s{85 + g // 4} offen offset:{(g%4)*1024} sc1", 'm'))
        return it

    def blk_buf(self, nt):
        return AW + (0, 16, 40, 56)[nt % 4] if self.NB == 4 else AW + (0, 8, 40, 48)[nt % 4]
    def final_block(self, e, sender):
        NB, B0 = self.NB, self.B0
        g0 = e.gap
        e.streams = {}; e.prio_streams = set(); e.strict = False; e.force_prio = False
        self.sent = set()
        G = 2 * NB
        if sender:
            for g in range(self.NG):
                k1 = (6 * g + 5) // 4
                start = G * (k1 // 2) + G - 2 + (k1 % 2) + (5 if k1 // 2 <= 5 else 8)
                if start > 9 * G - 2: continue
                self.sent.add(g)
                for n, (tx, kk) in enumerate(self.granule_items(g)):
                    e.push('snd', tx, kk, ('PS', g), early=g0 + start, late=g0 + start + 2 + n)
        for nt in range(9):
            rd = [self.frag_read(B0 + j, nt + 2, h, self.blk_buf(nt + 2) + 4 * j) for j in range(NB) for h in range(2)] if nt + 2 < 9 else []
            for sub in range(G):
                j, tt = sub // 2, sub % 2
                q = 36 - NB + j
                A = self.blk_buf(nt) + 4 * j
                hb = AH + 8 * RING[q] + 4 * tt
                acc = acc2(nt, tt)
                dss = [rd[sub]] if rd else []
                post = []
                if sub == G - 1 and nt + 1 < 9: post.append(('lg', [('FB', B0 + NB - 1, nt + 1)]))
                e.mfma_gap(f"v_mfma_f32_16x16x32_bf16 v[{acc}:{acc+3}], a[{A}:{A+3}], a[{hb}:{hb+3}], v[{acc}:{acc+3}]", dss=dss, post=post)
        if e.pending(): e.raw("s_nop 7")
        e.flush_streams()

    def tail_owner(self, e):
        t = V_T
        V_PA = t + 6
        OWN_LDS = self.wslot[32] * SLOT
        e.raw(f"v_add_u32 v{V_PA}, {OWN_LDS}, v{t}")
        for nt in range(9):
            e.raw(f"""
            v_accvgpr_read_b32 v{t+7}, a{AB2+2*nt}
            v_accvgpr_read_b32 v{t+8}, a{AB2+2*nt+1}
            v_lshlrev_b32 v{V_FL}, 16, v{t+7}
            v_and_b32 v{t+7}, 0xffff0000, v{t+7}
            v_lshlrev_b32 v{V_FS}, 16, v{t+8}
            v_and_b32 v{t+8}, 0xffff0000, v{t+8}""")
            if nt == 8: e.raw("s_nop 3")
            for tt in range(2):
                r = acc2(nt, tt)
                e.raw(f"v_add_f32 v{r}, v{r}, v{V_FL}\nv_add_f32 v{r+1}, v{r+1}, v{t+7}\nv_add_f32 v{r+2}, v{r+2}, v{V_FS}\nv_add_f32 v{r+3}, v{r+3}, v{t+8}")
                e.raw(f"ds_write_b128 v{V_PA}, v[{r}:{r+3}] offset:{(2*nt+tt)*1024}")
        MB = OWN_LDS + 18 * 1024
        BOX = self.BOX
        e.raw(f"""
        v_mov_b32 v{t+7}, {MB}
        v_mov_b32 v{t+8}, 0
        ds_write_b32 v{t+7}, v{t+8}
        s_waitcnt lgkmcnt(0)
        s_barrier""")
        if opt("ownpoll", "0") != "1":
            e.raw("s_branch L_end"); return
        e.raw(f"s_add_u32 s85, s84, s{S_KQ}\ns_lshl_b32 s85, s85, 2")
        for d in range(1, 4):
            e.raw(f"""
            s_add_u32 s86, s{S_KQ}, {d}
            s_and_b32 s86, s86, 3
            s_add_u32 s86, s86, s85
            s_mul_i32 s86, s86, {BOX}
            s_add_u32 s{S_TW+d}, s86, {P_OFF}""")
        e.raw(f"""
        v_mul_u32_u24 v{V_PA}, 43, v1
        v_lshrrev_b32 v{V_PA}, 7, v{V_PA}
        v_mul_u32_u24 v{V_FL}, 3, v{V_PA}
        v_sub_u32 v{V_FL}, v1, v{V_FL}
        v_mul_u32_u24 v{V_PA}, 4096, v{V_PA}
        v_add_u32 v{V_PA}, {3*1024+1020}, v{V_PA}
        v_mov_b32 v{t+8}, s{S_TW+1}
        v_mov_b32 v{V_FS}, s{S_TW+2}
        v_cmp_eq_u32 vcc, 1, v{V_FL}
        s_nop 1
        v_cndmask_b32 v{t+8}, v{t+8}, v{V_FS}, vcc
        v_mov_b32 v{V_FS}, s{S_TW+3}
        v_cmp_eq_u32 vcc, 2, v{V_FL}
        s_nop 1
        v_cndmask_b32 v{t+8}, v{t+8}, v{V_FS}, vcc
        v_add_u32 v{V_PA}, v{V_PA}, v{t+8}
        v_mov_b32 v{V_FS}, {OOB}
        v_cmp_gt_u32 vcc, 9, v1
        s_and_b32 s89, s{S_N}, 0xfffffff8
        s_mov_b32 s91, {SPIN_LIMIT}
        v_cndmask_b32 v{V_PA}, v{V_FS}, v{V_PA}, vcc
        L_own_poll:
        buffer_load_dword v{V_P}, v{V_PA}, s[{S_WS}:{S_WS+3}], 0 offen sc1
        s_waitcnt vmcnt(0)
        v_cmp_eq_u32 vcc, s{S_N}, v{V_P}
        s_nop 3
        s_mov_b32 s87, vcc_lo
        s_mov_b32 s88, s89
        s_and_b32 s85, s87, 7
        s_cmp_eq_u32 s85, 7
        s_cselect_b32 s85, 1, 0
        s_or_b32 s88, s88, s85
        s_and_b32 s85, s87, 56
        s_cmp_eq_u32 s85, 56
        s_cselect_b32 s85, 2, 0
        s_or_b32 s88, s88, s85
        s_and_b32 s85, s87, 448
        s_cmp_eq_u32 s85, 448
        s_cselect_b32 s85, 4, 0
        s_or_b32 s88, s88, s85
        s_sub_u32 s91, s91, 1
        s_cmp_le_i32 s91, 0
        s_cselect_b32 s85, 7, 0
        s_or_b32 s88, s88, s85
        v_mov_b32 v{t+8}, s88
        ds_write_b32 v{t+7}, v{t+8}
        s_and_b32 s85, s88, 7
        s_cmp_eq_u32 s85, 7
        s_cbranch_scc0 L_own_poll
        s_branch L_end""")

    def tail_sender(self):
        e = self.e
        t = V_T
        NG, BOX = self.NG, self.BOX
        V_BAD, V_PA, V_O = t + 5, t + 6, t + 1
        OWN_LDS = self.wslot[32] * SLOT
        e.raw("s_nop 7")
        for g in range(NG):
            if g in self.sent: continue
            for (tx, kk) in self.granule_items(g): e.raw(tx)
        e.raw(f"""
        s_sub_u32 s88, s{S_W}, s{S_KQ}
        s_sub_u32 s88, s88, 1
        s_and_b32 s88, s88, 3
        s_add_u32 s85, s84, s{S_KQ}
        s_lshl_b32 s85, s85, 2
        s_lshl_b32 s87, s88, 12
        s_add_u32 s87, s87, {P_OFF}
        """)
        for d in range(1, 4):
            e.raw(f"""
            s_add_u32 s86, s{S_KQ}, {d}
            s_and_b32 s86, s86, 3
            s_add_u32 s86, s86, s85
            s_mul_i32 s86, s86, {BOX}
            s_add_u32 s{S_TW+d}, s86, s87""")
        e.raw(f"""
        v_min_u32 v{t+7}, 2, v1
        v_mov_b32 v{t+8}, s{S_TW+1}
        v_mov_b32 v{V_BAD}, s{S_TW+2}
        v_cmp_eq_u32 vcc, 1, v{t+7}
        s_mul_i32 s87, s88, 6144
        s_add_u32 s87, s87, {OWN_LDS}
        v_cndmask_b32 v{t+8}, v{t+8}, v{V_BAD}, vcc
        v_mov_b32 v{V_BAD}, s{S_TW+3}
        v_cmp_eq_u32 vcc, 2, v{t+7}
        s_lshl_b32 s86, s{S_M}, 7
        s_lshl_b32 s85, s{S_KQ}, 5
        v_cndmask_b32 v{t+8}, v{t+8}, v{V_BAD}, vcc
        v_add_u32 v{V_PA}, {3*1024+1020}, v{t+8}
        s_add_u32 s86, s86, s85
        s_mul_i32 s86, s86, 1152
        s_mul_i32 s85, s{S_J}, 288
        s_add_u32 s86, s86, s85
        s_mul_i32 s85, s88, 96
        s_add_u32 s86, s86, s85
        v_and_b32 v{V_O}, 15, v1
        v_mul_u32_u24 v{V_O}, 1152, v{V_O}
        v_add_u32 v{V_O}, v{V_O}, v{V_BI}
        v_add_u32 v{V_O+1}, {16*1152}, v{V_O}
        v_add_u32 v{V_FL}, s87, v{t}
        s_mov_b32 s89, 0xffff0000
        """)
        POLL = f"buffer_load_dword v{V_P}, v{V_PA}, s[{S_WS}:{S_WS+3}], 0 offen sc1"
        OPT_ = opt("optim", "0") == "1"
        OWNP = opt("ownpoll", "0") == "1"
        PA_ = opt("pollafter", "0")
        if not OPT_ and not OWNP and PA_ == "0": e.raw(POLL)
        e.raw("s_barrier")
        if PA_ == "1": e.raw(POLL)
        OWN = [ACC_B + 4 * i for i in range(6)]
        zones = [ACC_B + 24 + 4 * i for i in range(12)]
        for kl in range(6): e.raw(f"ds_read_b128 v[{OWN[kl]}:{OWN[kl]+3}], v{V_FL} offset:{kl*1024}")
        zone = lambda g, d: zones[3 * g + d]
        S = [36, 37, 38, 39]; U = [40, 41, 42]; X = [43, 44]
        if PA_ == "2": e.raw("s_waitcnt lgkmcnt(0)\n" + POLL)
        if PA_ == "3": e.raw("s_waitcnt vmcnt(4)\n" + POLL)
        e.raw(f"s_mov_b32 s91, {SPIN_LIMIT}\ns_mov_b32 s3, 64")
        if OWNP:
            MB = OWN_LDS + 18 * 1024
            e.raw(f"""
            s_and_b32 s85, s{S_N}, 0xfffffff8
            s_lshl_b32 s87, 1, s88
            s_or_b32 s85, s85, s87
            s_or_b32 s87, s87, 0xfffffff8
            v_mov_b32 v{t+7}, {MB}
            L_mb:
            ds_read_b32 v{t+8}, v{t+7}
            s_waitcnt lgkmcnt(0)
            v_readfirstlane_b32 s90, v{t+8}
            s_sub_u32 s91, s91, 1
            s_cmp_le_i32 s91, 0
            s_cbranch_scc1 L_tw_go
            s_and_b32 s90, s90, s87
            s_cmp_eq_u32 s90, s85
            s_cbranch_scc0 L_mb
            s_branch L_tw_go""")
        elif OPT_:
            e.raw("s_waitcnt vmcnt(0)\ns_branch L_tw_go")
        e.raw(f"L_redo:\ns_mov_b32 s91, {SPIN_LIMIT}")
        e.raw(f"""
        L_tw_chk:
        s_waitcnt vmcnt(0)
        v_cmp_ne_u32 vcc, s{S_N}, v{V_P}
        s_nop 3
        s_cmp_eq_u64 vcc, 0
        s_cbranch_scc1 L_tw_go
        s_sub_u32 s91, s91, 1
        s_cmp_le_i32 s91, 0
        s_cbranch_scc1 L_tw_go
        {POLL}
        s_branch L_tw_chk
        L_tw_go:""")
        stamp(e, 7) if opt("stamp7", "poll") == "poll" and not opt("pstamp") else None
        e.raw(f"v_mov_b32 v{V_BAD}, 0")
        vm = []
        for g in range(4):
            for d in range(3):
                r = zone(g, d)
                e.raw(f"buffer_load_dwordx4 v[{r}:{r+3}], v{t}, s[{S_WS}:{S_WS+3}], s{S_TW+1+d} offen offset:{g*1024} sc1")
                vm.append(('L', g))
        e.raw("s_waitcnt lgkmcnt(0)")
        done_g = set()
        def need_granule(g):
            if g in done_g: return
            done_g.add(g)
            last = max(i for i, v in enumerate(vm) if v == ('L', g))
            e.raw(f"s_waitcnt vmcnt({min(len(vm) - 1 - last, 63)})")
            z = [zone(g, d) + 3 for d in range(3)]
            e.raw(f"""
            v_xor_b32 v{X[0]}, s{S_N}, v{z[0]}
            v_xor_b32 v{X[1]}, s{S_N}, v{z[1]}
            v_or3_b32 v{V_BAD}, v{X[0]}, v{X[1]}, v{V_BAD}
            v_xor_b32 v{X[0]}, s{S_N}, v{z[2]}
            v_or_b32 v{V_BAD}, v{X[0]}, v{V_BAD}""")
        if opt("earlychk", "0") == "1":
            for g in range(4): need_granule(g)
            e.raw(f"""
            v_cmp_ne_u32 vcc, 0, v{V_BAD}
            s_nop 3
            s_cmp_eq_u64 vcc, 0
            s_cbranch_scc1 L_tags_ok
            s_sub_u32 s3, s3, 1
            s_cmp_eq_u32 s3, 0
            s_cbranch_scc1 L_tags_ok
            {POLL}
            s_branch L_redo
            L_tags_ok:""")
        for kl in range(6):
            ntl, tt = kl // 2, kl % 2
            for v in range(4 * kl, 4 * kl + 4): need_granule(v // 6)
            for x in range(4):
                v = 4 * kl + x; g, pos = v // 6, v % 6
                for d in range(3):
                    src = zone(g, d) + pos // 2
                    e.raw(f"v_lshlrev_b32 v{U[d]}, 16, v{src}" if pos % 2 == 0 else f"v_and_b32 v{U[d]}, s89, v{src}")
                e.raw(f"v_add_f32 v{S[x]}, v{OWN[kl]+x}, v{U[0]}\nv_add_f32 v{U[1]}, v{U[1]}, v{U[2]}\nv_add_f32 v{S[x]}, v{S[x]}, v{U[1]}")
            o = (46 if kl % 2 == 0 else 2)
            e.raw(f"v_cvt_pk_bf16_f32 v{o}, v{S[0]}, v{S[1]}\nv_cvt_pk_bf16_f32 v{o+1}, v{S[2]}, v{S[3]}")
            e.raw(f"buffer_store_dwordx2 v[{o}:{o+1}], v{V_O+tt}, s[{S_OUT}:{S_OUT+3}], s86 offen offset:{32*ntl}" + (" sc1" if opt("outsc1") else ""))
            vm.append(('S', kl))
        if opt("earlychk", "0") != "1":
            e.raw(f"""
            v_cmp_ne_u32 vcc, 0, v{V_BAD}
            s_nop 3
            s_cmp_eq_u64 vcc, 0
            s_cbranch_scc1 L_tdone
            s_sub_u32 s3, s3, 1
            s_cmp_eq_u32 s3, 0
            s_cbranch_scc1 L_tdone
            s_waitcnt vmcnt(0)
            {POLL}
            s_branch L_redo
            L_tdone:
            """)
        if STAMP:
            e.raw(f"s_sub_u32 s85, s{S_W}, s{S_KQ}\ns_and_b32 s85, s85, 3\ns_cmp_eq_u32 s85, 1\ns_cbranch_scc0 L_end")
            e.raw("s_waitcnt vmcnt(0)")
            if opt("stamp7") == "end" and not opt("pstamp"): stamp(e, 7)
            e.raw(f"""
            s_lshl_b32 s84, s2, 5
            s_add_u32 s84, s84, {STAMP_OFF}
            v_lshlrev_b32 v{t+1}, 2, v1
            v_mov_b32 v{t+2}, {OOB}
            v_cmp_gt_u32 vcc, 8, v1
            s_nop 1
            v_cndmask_b32 v{t+1}, v{t+2}, v{t+1}, vcc
            buffer_store_dword v{V_ST}, v{t+1}, s[{S_WS}:{S_WS+3}], s84 offen sc1""")
            if opt("chunkstamp") or opt("both"):
                e.raw(f"s_lshl_b32 s84, s2, 8\ns_add_u32 s84, s84, {STAMP_OFF + 65536}\nv_lshlrev_b32 v{t+1}, 2, v1\nbuffer_store_dword v63, v{t+1}, s[{S_WS}:{S_WS+3}], s84 offen sc1")
            e.raw("s_waitcnt vmcnt(0)")

def kd(name, vgpr, accum, sgpr=102):
    return f""".section .rodata,"a"
.p2align 6
.amdhsa_kernel {name}
  .amdhsa_next_free_vgpr {vgpr}
  .amdhsa_next_free_sgpr {sgpr}
  .amdhsa_accum_offset {accum}
  .amdhsa_group_segment_fixed_size 0
  .amdhsa_kernarg_size 64
  .amdhsa_user_sgpr_count 2
  .amdhsa_user_sgpr_kernarg_segment_ptr 1
  .amdhsa_system_sgpr_workgroup_id_x 1
.end_amdhsa_kernel
"""

def gen_amp(name, a, b, amp, wg):
    return f""".globl {name}
.p2align 8
.type {name},@function
{name}:
    s_cmp_ge_u32 s2, 1
    s_cbranch_scc1 L_{name}_end
    s_load_dwordx2 s[4:5], s[0:1], 56
    s_waitcnt lgkmcnt(0)
    s_mov_b32 s8, s4
    s_mov_b32 s9, s5
    s_mov_b32 s10, {WS_BYTES}
    s_mov_b32 s11, 0x20000
    v_mov_b32 v1, {STAMP_OFF + 32 * wg}
    buffer_load_dword v2, v1, s[8:11], 0 offen offset:{4*a} sc1
    buffer_load_dword v3, v1, s[8:11], 0 offen offset:{4*b} sc1
    s_waitcnt vmcnt(0)
    v_sub_u32 v2, v3, v2
    s_nop 1
    v_readfirstlane_b32 s12, v2
    s_nop 3
    s_min_u32 s12, s12, 20000
    s_mul_i32 s12, s12, {amp}
    s_memrealtime s[14:15]
    s_waitcnt lgkmcnt(0)
    s_mov_b32 s13, s14
L_{name}_spin:
    s_memrealtime s[14:15]
    s_waitcnt lgkmcnt(0)
    s_sub_u32 s16, s14, s13
    s_cmp_lt_u32 s16, s12
    s_cbranch_scc1 L_{name}_spin
L_{name}_end:
    s_endpgm
""" + kd(name, 8, 8, 32) + ".text\n"

def main(path):
    g = Gen()
    body = g.build()
    launch = f"; @launch grid=(256,1,1) block=(256,1,1) lds={LDS_BYTES}"
    if opt("amp"):
        launch = f"; @launch kernel={KNAME} grid=(256,1,1) block=(256,1,1) lds={LDS_BYTES}\n; @launch kernel=mlp_amp_kernel grid=(1,1,1) block=(64,1,1) lds=0"
    txt = f"""; Fused MLP:  out = relu(x @ w1 + b1)^2 @ w2 + b2      x[2048,576] w1[576,4608] w2[4608,576], all bf16
; Kernarg (64 bytes, pointers only): 0 x | 8 w1 | 16 b1 | 24 w2 | 32 b2 | 40 out | 48 d_debug | 56 d_ws
;
; One launch, 256 workgroups of 4 waves, one per CU (160 KB of LDS each, all co-resident).
; Workgroup = (128-row tile m, 288-column slice s = 4*kq + j of the hidden dimension).
;  phase 1  h^T = w1^T x^T for the tile, two passes over K (8 + 10 f-tiles); x fragments stay in AGPRs, w1 streams through an
;           LDS ring (LDS-DMA + ds_read_b64_tr_b16), bias = first C operand, relu^2 + bf16 rounding in the MFMA shadow.
;           h stays in registers and is published (write-through, fragment order) for the 3 other slices of the K quarter kq.
;  phase 2  out^T[144 columns j, 128 rows] over the K quarter (own slice from registers, 3 slices from d_ws), w2 through the ring.
;  tail     4-way split-K reduction: wave w sends its 32 rows to workgroup (m, kq = w, j) as 16-byte granules
;           (6 x bf16 + launch tag); the three sender waves then reduce this workgroup's own rows and write the output.
; Hand-offs are placement independent (sc1 stores, vmcnt, barrier, sc1 flag / tag; sc1 loads).  The launch tag N is derived from
; an epoch word in d_ws by workgroup 0 and published through d_debug[0]; it only tells this launch's words from older ones.
; Generated by the author's own scheduling script (gen14.py): every MFMA gap is filled by hand-set rules, waits are counted.
{launch}
.amdgcn_target "amdgcn-amd-amdhsa--gfx950"
.text
.globl {KNAME}
.p2align 8
.type {KNAME},@function
{KNAME}:
""" + body + kd(KNAME, 512, 256)
    if opt("amp"):
        a, b = [int(v) for v in opt("amp").split("_")]
        txt += ".text\n" + gen_amp("mlp_amp_kernel", a, b, iopt("ampx", 20), iopt("ampwg", 37))
    open(path, "w").write(txt)

if __name__ == "__main__":
    main(sys.argv[1] if len(sys.argv) > 1 else "f4.s")
```

```python
import sys, os
from emit import Emitter

OPT = dict(kv.split("=") if "=" in kv else (kv, 1) for kv in os.environ.get("GOPT", "").split(",") if kv)
def opt(k, d=None): return OPT.get(k, d)
def iopt(k, d): return int(OPT.get(k, d))

KNAME = "standalone__dense_activation_squared_relu__prompt_kernel"
X_BYTES, W1_BYTES, B1_BYTES, W2_BYTES, B2_BYTES, OUT_BYTES = 2359296, 5308416, 9216, 5308416, 1152, 2359296
WS_BYTES = 268435456
H_OFF = 0
P_OFF = 20 << 20
FL_OFF = 40 << 20
EP_OFF = 41 << 20
STAMP_OFF = 128 << 20
OOB = 0x40000000
SLOT = 20480
NSLOT = 8
LDS_BYTES = NSLOT * SLOT
BIAS_LDS = 4 * SLOT + 16384
SPIN_LIMIT = 1 << 16
TAGMASK = 0xFFF

S_X, S_W1, S_B1, S_WS, S_W2, S_OUT = 4, 8, 12, 16, 20, 24
S_W, S_M, S_S, S_PAR, S_KQ, S_J = 28, 29, 30, 31, 32, 33
S_CBA, S_CBB, S_WSO, S_MW, S_MX = 34, 35, 36, 38, 39
S_HSO, S_T, S_T2, S_N = 40, 41, 42, 43
S_TW, S_TX = 44, 53
S_SO2 = 62
S_HB = 80
S_DBG = 92
KA = 64
V_WA, V_WB, V_X, V_W2 = 2, 6, 11, 15
V_TA, V_TB, V_T2, V_XR = 20, 36, 42, 45
V_HS, V_BI, V_FL, V_FS, V_P, V_NP = 47, 48, 49, 50, 51, 52
V_T = 53
V_ST = 62
ACC_A, ACC_B, BIASB = 64, 128, 208
AX, AW, AH, AB2 = 0, 144, 0, 224
HD = iopt("HD", 8)
STAMP = bool(opt("stamp"))
NT1 = " nt" if opt("ntw1", "0") == "1" else ""
NTX = " nt" if opt("ntx", "0") == "1" else ""

def acc2(nt, t):
    return (BIASB + 8 * nt + 4 * t) if nt < 5 else (ACC_A + 16 * (nt - 5) + 8 + 4 * t)
def srd(dst, ptr, nbytes):
    return [f"s_mov_b32 s{dst}, s{ptr}", f"s_mov_b32 s{dst+1}, s{ptr+1}", f"s_mov_b32 s{dst+2}, {nbytes}", f"s_mov_b32 s{dst+3}, 0x20000"]
def lines(s): return [x.strip() for x in s.strip().split("\n") if x.strip()]
def stamp(e, idx, pro=False):
    if not STAMP or (opt("chunkstamp") and idx != 0): return
    if opt("pstamp") and (pro != (idx >= 3)) and idx not in (0,):
        if not (pro and idx < 3): return
    ins = "s_memtime" if opt("cyc") else "s_memrealtime"
    e.raw(f"{ins} s[90:91]\ns_waitcnt lgkmcnt(0)\nv_writelane_b32 v{V_ST}, s90, {idx}")
    if opt("both"):
        e.raw(f"s_memtime s[90:91]\ns_waitcnt lgkmcnt(0)\nv_writelane_b32 v63, s90, {idx}")

B1F = tuple(range(4, 4 + iopt("nB1", 3))); B2F = tuple(range(4 + iopt("nB1", 3), 9))
def ksteps2():
    grp = lambda frs: [(d, i) for d in (1, 2, 3) for i in frs]
    seq = [(0, i) for i in range(9)] + grp((0, 1, 2, 3)) + grp(B1F) + grp(B2F)
    assert len(seq) == 36
    return seq
SEQ2 = ksteps2()
PEERS = [q for q, (d, i) in enumerate(SEQ2) if d != 0]
RING = {q: n % HD for n, q in enumerate(PEERS)}
PARTS = [((0, 1, 2, 3), iopt("pub0", 33), iopt("pol0", 0), iopt("chk0", 3)),
         (B1F, iopt("pub1", 47), iopt("pol1", 15), iopt("chk1", 17)),
         (B2F, iopt("pub2", 55), iopt("pol2", 23), iopt("chk2", 25))]
def part_of(i): return [p for p, x in enumerate(PARTS) if i in x[0]][0]
OWNB = {SEQ2[q][1]: q for q in range(36) if SEQ2[q][0] == 0 and SEQ2[q][1] >= 4}
STEPS = [('A', k) for k in range(18)] + [('B', k) for k in range(18)] + [('P', q) for q in range(36)]
def nfrag(kind): return {'A': 8, 'B': 10, 'P': 9}[kind]
GOS = []
_g = 0
for (_k, _) in STEPS:
    GOS.append(_g); _g += 2 * nfrag(_k)
GOS.append(_g)

class Gen:
    def __init__(self):
        self.e = Emitter()
        self.wslot = {}
        self.free = []
        self.slow = []
        self.nlabel = 0

    def setup_first(self):
        t = V_T
        L = lines(f"""
        s_and_b32 s84, s2, 7
        s_lshr_b32 s85, s2, 3
        v_lshrrev_b32 v{t}, 6, v0
        v_and_b32 v1, 63, v0
        s_and_b32 s{S_KQ}, s84, 3
        v_readfirstlane_b32 s{S_W}, v{t}
        s_lshr_b32 s86, s84, 2
        s_lshr_b32 s87, s85, 2
        s_and_b32 s{S_J}, s85, 3
        s_lshl_b32 s86, s86, 3
        s_add_u32 s{S_M}, s86, s87
        s_lshl_b32 s{S_S}, s{S_KQ}, 2
        s_add_u32 s{S_S}, s{S_S}, s{S_J}
        s_and_b32 s{S_PAR}, s{S_J}, 1
        """)
        rot = opt("rot", "jm")
        if rot == "0": L += ["s_mov_b32 s84, 0"]
        elif rot == "j": L += lines(f"s_mul_i32 s84, s{S_J}, 9\ns_lshr_b32 s84, s84, 2")
        elif rot == "jm": L += lines(f"s_lshl_b32 s84, s{S_J}, 1\ns_add_u32 s84, s84, s87\ns_cmp_ge_u32 s84, 9\ns_cselect_b32 s85, 9, 0\ns_sub_u32 s84, s84, s85")
        elif rot == "sum": L += lines(f"s_add_u32 s84, s{S_J}, s87\ns_cmp_ge_u32 s84, 9\ns_cselect_b32 s85, 9, 0\ns_sub_u32 s84, s84, s85")
        elif rot == "j2m4": L += lines(f"s_lshl_b32 s84, s{S_J}, 1\ns_lshl_b32 s85, s87, 2\ns_add_u32 s84, s84, s85\ns_mul_hi_u32 s85, s84, 0x1c71c71d\ns_mul_i32 s85, s85, 9\ns_sub_u32 s84, s84, s85")
        elif rot == "jm2": L += lines(f"s_lshl_b32 s84, s{S_J}, 1\ns_and_b32 s85, s87, 1\ns_mul_i32 s85, s85, 5\ns_add_u32 s84, s84, s85\ns_cmp_ge_u32 s84, 9\ns_cselect_b32 s85, 9, 0\ns_sub_u32 s84, s84, s85")
        L += [f"s_mov_b32 s88, s84", f"s_mul_i32 s89, s{S_M}, 147456", f"s_mul_i32 s{S_TW}, s84, 589824",
              "s_lshl_b32 s86, s84, 7", f"s_add_u32 s{S_TX}, s89, s86"]
        L += lines(f"""
        s_mul_i32 s{S_CBA}, s{S_S}, 576
        s_mul_i32 s{S_T}, s{S_PAR}, 320
        s_add_u32 s{S_CBB}, s{S_CBA}, 256
        s_add_u32 s{S_CBA}, s{S_CBA}, s{S_T}
        s_lshl_b32 s{S_T}, s{S_PAR}, 8
        s_sub_u32 s{S_CBB}, s{S_CBB}, s{S_T}
        s_lshl_b32 s{S_MX}, s{S_W}, 12
        s_mul_i32 s{S_MW}, s{S_W}, 5120
        s_mul_i32 s{S_T}, s{S_W}, {32*1152}
        v_lshrrev_b32 v{t}, 3, v1
        v_lshrrev_b32 v{t+1}, 4, v1
        v_and_b32 v{t+2}, 7, v1
        v_mul_u32_u24 v{t}, 1152, v{t}
        v_add_u32 v{t}, s{S_T}, v{t}
        """)
        for q in range(4):
            L += lines(f"""
            v_add_u32 v{t+3}, {4*q}, v{t+1}
            v_and_b32 v{t+3}, 7, v{t+3}
            v_xor_b32 v{t+3}, v{t+2}, v{t+3}
            v_lshl_add_u32 v{t+3}, v{t+3}, 4, v{t}
            v_add_u32 v{V_X+q}, {q*(8*1152-1024)}, v{t+3}""")
        L += lines(f"""
        s_mul_i32 s{S_T}, s{S_W}, {16*9216}
        v_and_b32 v{t+2}, 15, v1
        v_mul_u32_u24 v{t}, 9216, v{t+1}
        v_add_u32 v{t}, s{S_T}, v{t}
        v_lshlrev_b32 v{t+3}, 1, v{t+1}
        v_xor_b32 v{t+3}, v{t+2}, v{t+3}
        v_xor_b32 v{t+4}, 8, v{t+3}
        v_lshl_add_u32 v{V_WA}, v{t+3}, 4, v{t}
        v_lshl_add_u32 v{t+4}, v{t+4}, 4, v{t}
        v_add_u32 v{V_WA+1}, {4*9216-1024}, v{V_WA}
        v_add_u32 v{V_WA+2}, {8*9216-2048}, v{t+4}
        v_add_u32 v{V_WA+3}, {12*9216-3072}, v{t+4}
        v_lshlrev_b32 v{V_BI}, 3, v{t+1}
        """)
        L += lines(f"""
        v_lshlrev_b32 v{t+4}, 4, v1
        v_mov_b32 v{t+3}, {OOB}
        v_cmp_gt_u32 vcc, 36, v1
        s_mul_i32 s86, s{S_S}, 576
        s_mul_i32 s87, s{S_J}, 288
        v_cndmask_b32 v{t+5}, v{t+3}, v{t+4}, vcc
        v_cmp_gt_u32 vcc, 18, v1
        s_nop 1
        v_cndmask_b32 v{t+6}, v{t+3}, v{t+4}, vcc
        """)
        return L

    def setup_tables(self):
        L = []
        for c in range(1, 9):
            L += ["s_add_u32 s88, s88, 1", "s_cmp_eq_u32 s88, 9", "s_cselect_b32 s88, 0, s88",
                  f"s_mul_i32 s{S_TW+c}, s88, 589824", "s_lshl_b32 s84, s88, 7", f"s_add_u32 s{S_TX+c}, s89, s84"]
        return L
    def setup_reads_A(self):
        t = V_T
        L = lines(f"""
        v_lshrrev_b32 v{t}, 4, v1
        v_and_b32 v{t+1}, 1, v{t}
        v_lshrrev_b32 v{t+2}, 1, v{t}
        v_and_b32 v{t+3}, 15, v1
        v_lshrrev_b32 v{t+4}, 2, v{t+3}
        v_and_b32 v{t+3}, 3, v{t+3}
        v_lshl_add_u32 v{V_TB+4}, v{t+1}, 3, v{t+4}
        v_lshlrev_b32 v{V_TB+5}, 8, v{V_TB+4}
        v_lshl_add_u32 v{V_TB+5}, v{t+2}, 12, v{V_TB+5}
        v_lshl_add_u32 v{V_TB+5}, v{t+3}, 3, v{V_TB+5}
        v_lshl_add_u32 v{V_TA}, v{t+1}, 2, v{t+4}
        v_lshl_add_u32 v{V_TB+5}, v{V_TA}, 5, v{V_TB+5}
        """)
        for ft in range(8): L.append(f"v_xor_b32 v{V_TA+ft}, {ft*32}, v{V_TB+5}")
        for ft in range(8): L.append(f"v_add_u32 v{V_TA+8+ft}, {3*SLOT}, v{V_TA+ft}")
        L += lines(f"""
        v_and_b32 v{t}, 15, v1
        v_lshrrev_b32 v{t+1}, 4, v1
        v_lshrrev_b32 v{t+2}, 1, v{t}
        v_xor_b32 v{t+1}, v{t+1}, v{t+2}
        v_lshlrev_b32 v{t+1}, 4, v{t+1}
        v_lshl_add_u32 v{t+1}, v{t}, 7, v{t+1}
        v_add_u32 v{t+1}, {5*SLOT}, v{t+1}
        v_add_u32 v{V_XR}, s{S_MX}, v{t+1}
        v_xor_b32 v{t+1}, 64, v{t+1}
        v_add_u32 v{V_XR+1}, s{S_MX}, v{t+1}
        """)
        return L

    def setup_late(self):
        t = V_T + 3
        L = lines(f"s_mul_i32 s84, s{S_W}, {16*9216}")
        for q in range(5):
            L += lines(f"""
            v_add_u32 v{t}, {64*q}, v1
            v_mul_u32_u24 v{t+1}, 205, v{t}
            v_lshrrev_b32 v{t+1}, 12, v{t+1}
            v_mul_u32_u24 v{t+2}, 20, v{t+1}
            v_sub_u32 v{t+2}, v{t}, v{t+2}
            v_lshrrev_b32 v{t+3}, 2, v{t+1}
            v_and_b32 v{t+3}, 2, v{t+3}
            v_xor_b32 v{t+2}, v{t+2}, v{t+3}
            v_mul_u32_u24 v{t+3}, 9216, v{t+1}
            v_lshl_add_u32 v{t+3}, v{t+2}, 4, v{t+3}
            v_add_u32 v{V_WB+q}, s84, v{t+3}""")
            if q & 3: L.append(f"v_subrev_u32 v{V_WB+q}, {(q&3)*1024}, v{V_WB+q}")
        L += lines(f"""
        s_lshl_b32 s84, s{S_W}, 11
        s_lshl_b32 s85, s{S_M}, 4
        s_add_u32 s85, s85, s{S_S}
        s_mul_i32 s{S_HSO}, s85, 73728
        v_lshl_add_u32 v{V_HS}, v1, 4, s84
        s_lshl_b32 s85, s85, 7
        s_add_u32 s85, s85, {FL_OFF}
        v_mov_b32 v{t}, s85
        v_mov_b32 v{t+1}, {OOB}""")
        L.append(f"v_cmp_eq_u32 vcc, 0, v1\n    s_nop 1\n    v_cndmask_b32 v{V_FS}, v{t+1}, v{t}, vcc")
        L += lines(f"""
        v_lshrrev_b32 v{t}, 4, v1
        v_and_b32 v{t+1}, 1, v{t}
        v_lshrrev_b32 v{t+2}, 1, v{t}
        v_and_b32 v{t+3}, 15, v1
        v_lshrrev_b32 v{t+4}, 2, v{t+3}
        v_and_b32 v{t+3}, 3, v{t+3}
        v_lshl_add_u32 v{V_TB+4}, v{t+1}, 3, v{t+4}
        v_mul_u32_u24 v{V_TB+4}, 320, v{V_TB+4}
        v_mul_u32_u24 v{V_TB+5}, 5120, v{t+2}
        v_add_u32 v{V_TB+4}, v{V_TB+4}, v{V_TB+5}
        v_lshl_add_u32 v{V_TB+4}, v{t+3}, 3, v{V_TB+4}
        v_lshlrev_b32 v{t+1}, 5, v{t+1}
        v_add_u32 v{V_TB}, v{V_TB+4}, v{t+1}
        v_sub_u32 v{V_TB+1}, v{V_TB+4}, v{t+1}
        v_add_u32 v{V_TB+2}, {3*SLOT}, v{V_TB}
        v_add_u32 v{V_TB+3}, {3*SLOT}, v{V_TB+1}
        v_add_u32 v{V_TB+4}, {6*SLOT}, v{V_TB}
        v_add_u32 v{V_TB+5}, {6*SLOT}, v{V_TB+1}
        v_lshl_add_u32 v{t+4}, v{t}, 2, v{t+4}
        v_mul_u32_u24 v{t+4}, 288, v{t+4}
        v_lshl_add_u32 v{V_T2}, v{t+3}, 3, v{t+4}
        v_add_u32 v{V_T2+1}, {3*SLOT}, v{V_T2}
        v_add_u32 v{V_T2+2}, {6*SLOT}, v{V_T2}""")
        L.append("@P2")
        L += lines(f"""
        s_lshl_b32 s85, s{S_M}, 2
        s_add_u32 s85, s85, s{S_KQ}
        s_lshl_b32 s85, s85, 9
        s_add_u32 s85, s85, {FL_OFF}
        v_and_b32 v{t}, 3, v1
        v_min_u32 v{t}, 2, v{t}
        v_add_u32 v{t}, 1, v{t}
        v_add_u32 v{t}, s{S_J}, v{t}
        v_and_b32 v{t}, 3, v{t}
        v_lshlrev_b32 v{t}, 7, v{t}
        v_add_u32 v{V_FL}, s85, v{t}
        s_and_b32 s84, s{S_W}, 1
        s_mul_i32 s84, s84, {16*1152}
        """)
        for q in range(5):
            L += lines(f"""
            v_add_u32 v{t}, {64*q}, v1
            v_mul_u32_u24 v{t+1}, 57, v{t}
            v_lshrrev_b32 v{t+1}, 10, v{t+1}
            v_mul_u32_u24 v{t+2}, 18, v{t+1}
            v_sub_u32 v{t+2}, v{t}, v{t+2}
            v_mul_u32_u24 v{t+3}, 1152, v{t+1}
            v_lshl_add_u32 v{t+3}, v{t+2}, 4, v{t+3}
            v_add_u32 v{V_W2+q}, s84, v{t+3}""")
            if q & 3: L.append(f"v_subrev_u32 v{V_W2+q}, {(q&3)*1024}, v{V_W2+q}")
        L.append(f"v_mov_b32 v{t}, {OOB}")
        L.append(f"v_cmp_gt_u32 vcc, 32, v1\n    s_nop 1\n    v_cndmask_b32 v{V_W2+4}, v{t}, v{V_W2+4}, vcc")
        L += lines(f"""
        s_mul_i32 s0, s{S_PAR}, {160*1152}
        s_sub_u32 s1, {160*1152}, s0
        s_mul_i32 s3, s{S_PAR}, {-128*1152}
        s_sub_u32 s37, {-128*1152}, s3
        s_mul_i32 s88, s{S_J}, 288
        """)
        for d in range(4):
            L += lines(f"""
            s_add_u32 s{84+d}, s{S_J}, {d}
            s_and_b32 s{84+d}, s{84+d}, 3
            s_lshl_b32 s89, s{S_KQ}, 2
            s_add_u32 s{84+d}, s{84+d}, s89
            s_lshl_b32 s89, s{S_M}, 4
            s_add_u32 s89, s89, s{84+d}
            s_mul_i32 s{S_HB+d}, s89, 73728
            s_mul_i32 s{84+d}, s{84+d}, {288*1152}
            s_add_u32 s{84+d}, s{84+d}, s88""")
        for c in range(18):
            (d0, i0), (d1, i1) = SEQ2[2 * c], SEQ2[2 * c + 1]
            def corr(d, i): return (0 if d % 2 == 0 else 1) if i < 4 else (3 if d % 2 == 0 else 37)
            L += lines(f"""
            s_add_u32 s88, s{84+d0}, s{corr(d0,i0)}
            s_add_u32 s88, s88, {32*i0*1152}
            s_add_u32 s89, s{84+d1}, s{corr(d1,i1)}
            s_add_u32 s89, s89, {32*i1*1152}""")
            L.append(f"s_cmp_lt_u32 s{S_W}, 2\n    s_cselect_b32 s{S_SO2+c}, s88, s89")
        return L

    def pf1_setup(self):
        t = V_T
        return lines(f"""
        s_and_b32 s84, s{S_M}, 7
        s_lshl_b32 s84, s84, 2
        s_add_u32 s84, s84, s{S_J}
        s_lshl_b32 s84, s84, 2
        s_add_u32 s84, s84, s{S_W}
        s_lshr_b32 s85, s{S_M}, 3
        s_lshl_b32 s85, s85, 10
        s_lshl_b32 s86, s84, 3
        s_add_u32 s85, s85, s86
        s_mul_i32 s85, s85, 1152
        v_lshrrev_b32 v{t+2}, 3, v1
        v_and_b32 v{t+3}, 7, v1
        v_mul_u32_u24 v{t+3}, 1152, v{t+3}
        v_lshl_add_u32 v{t+3}, v{t+2}, 7, v{t+3}
        v_add_u32 v{t+3}, 256, v{t+3}
        v_add_u32 v{t+3}, s85, v{t+3}
        v_mov_b32 v{t+4}, {OOB}
        v_cmp_gt_u32 vcc, 56, v1
        s_lshl_b32 s84, s84, 2
        s_mul_i32 s85, s{S_KQ}, {4*576}
        v_cndmask_b32 v{t}, v{t+4}, v{t+3}, vcc
        v_and_b32 v{t+2}, 3, v1
        v_add_u32 v{t+2}, s84, v{t+2}
        v_lshrrev_b32 v{t+3}, 3, v{t+2}
        v_lshrrev_b32 v{t+1}, 2, v1
        v_lshl_add_u32 v{t+3}, v{t+1}, 6, v{t+3}
        v_add_u32 v{t+3}, 128, v{t+3}
        v_mul_u32_u24 v{t+3}, 9216, v{t+3}
        v_and_b32 v{t+2}, 7, v{t+2}
        v_lshrrev_b32 v{t+1}, 1, v{t+2}
        v_mul_u32_u24 v{t+5}, 576, v{t+1}
        v_add_u32 v{t+3}, v{t+3}, v{t+5}
        v_and_b32 v{t+1}, 1, v{t+1}
        v_mul_u32_u24 v{t+1}, 320, v{t+1}
        v_add_u32 v{t+3}, v{t+3}, v{t+1}
        v_and_b32 v{t+2}, 1, v{t+2}
        v_lshl_add_u32 v{t+3}, v{t+2}, 7, v{t+3}
        v_add_u32 v{t+3}, s85, v{t+3}
        v_cmp_gt_u32 vcc, 28, v1
        s_nop 1
        v_cndmask_b32 v{t+1}, v{t+4}, v{t+3}, vcc
        """)
    def w_items(self, C):
        slot = self.wslot[C]
        if C < 9:
            it = [(f"s_add_u32 s{S_WSO}, s{S_CBA}, s{S_TW+C}", 's', None),
                  (f"s_add_u32 m0, s{S_MX}, {slot*SLOT}", 's', None)]
            for q in range(4):
                it.append((f"buffer_load_dwordx4 v{V_WA+q}, s[{S_W1}:{S_W1+3}], s{S_WSO} offen offset:{q*1024}" + NT1 + " lds", 'm', ('W', C)))
            return it
        if C < 18:
            vb, sr, so = V_WB, S_W1, S_WSO
            it = [(f"s_add_u32 s{S_WSO}, s{S_CBB}, s{S_TW+C-9}", 's', None)]
        else:
            vb, sr, so = V_W2, S_W2, S_SO2 + C - 18
            it = []
        nt = NT1 if C < 18 else ""
        it.append((f"s_add_u32 m0, s{S_MW}, {slot*SLOT}", 's', None))
        for q in range(4):
            it.append((f"buffer_load_dwordx4 v{vb+q}, s[{sr}:{sr+3}], s{so} offen offset:{q*1024}{nt} lds", 'm', ('W', C)))
        it.append((f"s_add_u32 m0, s{S_MW}, {slot*SLOT+4096}", 's', None))
        it.append((f"buffer_load_dwordx4 v{vb+4}, s[{sr}:{sr+3}], s{so} offen{nt} lds", 'm', ('W', C)))
        return it
    def x_items(self, c):
        slot = 5 + c % 3
        it = [(f"s_add_u32 m0, s{S_MX}, {slot*SLOT}", 's', None)]
        for q in range(4):
            it.append((f"buffer_load_dwordx4 v{V_X+q}, s[{S_X}:{S_X+3}], s{S_TX+c} offen offset:{q*1024}" + NTX + " lds", 'm', ('X', c)))
        return it
    def push_dma(self, items, early, need, cost):
        e = self.e
        nm = sum(1 for it in items if it[1] == 'm')
        dmin = iopt("dmin", 40)
        k = 0
        for (t, kind, tag) in items:
            late = max(early + 1 + k, int(need - dmin - (nm - 1 - min(k, nm - 1)) * cost))
            if kind == 'm':
                e.push('dma', t, kind, tag, early=early, late=late, cost=cost)
                k += 1
            else:
                e.push('dma', t, kind, tag, early=early, late=max(early, late - 1))
        self.tighten('dma')
    def tighten(self, stream):
        q = self.e.streams.get(stream, [])
        for i in range(len(q) - 2, -1, -1):
            sp = q[i].cost if q[i].kind == 'm' else 1
            lim = q[i + 1].late - sp
            if q[i].late > lim: q[i].late = max(q[i].early, int(lim))

    def frag_reads(self, si):
        kind, k = STEPS[si]
        C, ks = si // 2, si % 2
        slot = self.wslot[C]
        dst0 = AW + 40 * (si % 2)
        out = []
        for f in range(nfrag(kind)):
            for h in range(2):
                d = dst0 + 4 * f + 2 * h
                if kind == 'A':
                    vb = V_TA + f + (8 if slot >= 3 else 0)
                    off = (slot % 3) * SLOT + ks * 8192 + h * 1024
                elif kind == 'B':
                    vb = V_TB + (f & 1) + 2 * (slot // 3)
                    off = (slot % 3) * SLOT + ks * 10240 + h * 1280 + f * 32
                else:
                    vb = V_T2 + slot // 3
                    off = (slot % 3) * SLOT + ks * 10240 + h * 5120 + f * 32
                out.append((f"ds_read_b64_tr_b16 a[{d}:{d+1}], v{vb} offset:{off}", ('WF', si, f)))
        return out
    def frag_read(self, si, f, h, dst):
        C, ks = si // 2, si % 2
        slot = self.wslot[C]
        off = (slot % 3) * SLOT + ks * 10240 + h * 5120 + f * 32
        d = dst + 2 * h
        return (f"ds_read_b64_tr_b16 a[{d}:{d+1}], v{V_T2 + slot // 3} offset:{off}", ('FB', si, f))
    def x_reads(self, kt):
        c, p = kt // 2, kt % 2
        return [(f"ds_read_b128 a[{AX+8*kt+4*t}:{AX+8*kt+4*t+3}], v{V_XR+p} offset:{(c%3)*SLOT + t*2048}", ('XF', kt)) for t in range(2)]

    def bias_cvt(self, n, base):
        out = []
        for ft in range(n):
            q = base + 4 * ft
            out += [f"v_lshlrev_b32 v{q}, 16, v{q+2}", f"v_and_b32 v{q+1}, 0xffff0000, v{q+2}",
                    f"v_lshlrev_b32 v{q+2}, 16, v{q+3}", f"v_and_b32 v{q+3}, 0xffff0000, v{q+3}"]
        return out
    def epi_items(self, acc, il, istore, t):
        P = acc + 16 * il + 4 * t; Q = P + 8
        it = []
        for r in range(4): it.append((f"v_mul_f32 v{P+r}, v{P+r}, |v{P+r}|", 'v', None))
        for r in range(4): it.append((f"v_mul_f32 v{Q+r}, v{Q+r}, |v{Q+r}|", 'v', None))
        it += [(f"v_cvt_pk_bf16_f32 v{P}, v{P}, v{P+1}", 'v', None), (f"v_cvt_pk_bf16_f32 v{P+1}, v{P+2}, v{P+3}", 'v', None),
               (f"v_cvt_pk_bf16_f32 v{P+2}, v{Q}, v{Q+1}", 'v', None), (f"v_cvt_pk_bf16_f32 v{P+3}, v{Q+2}, v{Q+3}", 'v', None)]
        for r in range(4): it.append((f"v_pk_max_i16 v{P+r}, v{P+r}, 0", 'v', None))
        if t == 0: it.append((f"s_add_u32 s{S_T2}, s{S_HSO}, {istore*8192}", 's', None))
        st = f"buffer_store_dwordx4 v[{P}:{P+3}], v{V_HS}, s[{S_WS}:{S_WS+3}], s{S_T2} offen offset:{t*1024}" + {"nt": " sc1 nt", "sc01": " sc0 sc1", "sc01nt": " sc0 sc1 nt"}.get(opt("hstf", ""), " sc1")
        if opt("x_nostB") and istore >= 4: st = f"buffer_load_dword v255, v{V_FS}, s[{S_WS}:{S_WS+3}], 0 offen offset:24"
        if opt("x_noepiB") and istore >= 4: it = [x for x in it if x[1] != 'v']
        it.append((st, 'm', ('HS', part_of(istore))))
        return it

    def poll_check(self, load_text, cond_bad, name):
        self.nlabel += 1
        lb = f"L_{name}_{self.nlabel}"
        self.slow.append(f"""
        {lb}_slow:
        s_mov_b32 s91, {SPIN_LIMIT}
        {lb}_spin:
        {load_text}
        s_waitcnt vmcnt(0)
        {cond_bad}
        s_nop 1
        s_cbranch_vccz {lb}_back
        s_sub_u32 s91, s91, 1
        s_cmp_lg_u32 s91, 0
        s_cbranch_scc1 {lb}_spin
        s_branch {lb}_back
        """)
        return f"{cond_bad}\n    s_nop 1\n    s_cbranch_vccnz {lb}_slow\n{lb}_back:"

    def prologue(self):
        e = self.e
        t = V_T
        stamp(e, 0)
        e.raw(f"""
        s_cmp_ge_u32 s2, 256
        s_cbranch_scc1 L_end
        s_load_dwordx16 s[{KA}:{KA+15}], s[0:1], 0
        """)
        def icpf():
            e.raw(f"""
            s_getpc_b64 s[90:91]
            L_pc:
            v_lshlrev_b32 v{t+7}, 7, v0
            v_min_u32 v{t+8}, L_code_end-L_pc-4, v{t+7}""")
            e.vmem(f"global_load_dword v255, v{t+8}, s[90:91]", 'IC')
            e.raw(f"v_add_u32 v{t+7}, 32768, v{t+7}\nv_min_u32 v{t+8}, L_code_end-L_pc-4, v{t+7}")
            e.vmem(f"global_load_dword v255, v{t+8}, s[90:91]", 'IC')
        if opt("icpf", "1") == "1": icpf()
        for x in self.setup_first(): e.raw(x)
        stamp(e, 3, True) if opt("pstamp") else None
        e.raw("s_waitcnt lgkmcnt(0)")
        stamp(e, 4, True) if opt("pstamp") else None
        for x in srd(S_X, KA, X_BYTES) + srd(S_W1, KA + 2, W1_BYTES) + srd(S_B1, KA + 4, B1_BYTES) + srd(S_DBG, KA + 8, B2_BYTES): e.raw(x)
        self.wslot = {0: 0, 1: 1, 2: 2, 3: 3, 4: 4}
        def emit_items(items):
            for (tx, k, tag) in items:
                if k == 'm': e.vmem(tx, tag)
                else: e.raw(tx)
        emit_items([(f"s_mov_b32 m0, {BIAS_LDS}", 's', None),
                    (f"buffer_load_dwordx4 v{t+5}, s[{S_B1}:{S_B1+3}], s86 offen lds", 'm', 'BI'),
                    (f"s_mov_b32 m0, {BIAS_LDS+1024}", 's', None),
                    (f"buffer_load_dwordx4 v{t+6}, s[{S_DBG}:{S_DBG+3}], s87 offen lds", 'm', 'BI')])
        emit_items(self.x_items(0) + self.w_items(0))
        if opt("icpf", "1") == "2": icpf()
        stamp(e, 5, True) if opt("pstamp") else None
        for x in srd(S_WS, KA + 14, WS_BYTES) + srd(S_W2, KA + 6, W2_BYTES) + srd(S_OUT, KA + 10, OUT_BYTES): e.raw(x)
        e.raw(f"s_mov_b32 s100, s{KA+12}\ns_mov_b32 s101, s{KA+13}\ns_nop 0")
        for x in self.setup_tables(): e.raw(x)
        for x in self.setup_reads_A(): e.raw(x)
        late = self.setup_late(); cut = late.index("@P2")
        for x in late[:cut]: e.raw(x)
        self.setup_p2 = late[cut + 1:]
        if opt("p2pro", "1") == "1":
            for x in self.setup_p2: e.raw(x)
            self.setup_p2 = []
        e.raw(f"""
        s_or_b32 s88, s2, s{S_W}
        v_mov_b32 v{t}, {OOB}
        v_mov_b32 v{t+1}, {EP_OFF}
        v_or_b32 v{t+2}, s88, v1
        v_cmp_eq_u32 vcc, 0, v{t+2}
        s_nop 1
        v_cndmask_b32 v{V_NP}, v{t}, v{t+1}, vcc""")
        e.raw(f"""
        s_mul_i32 s84, s{S_S}, 576
        s_sub_u32 s85, s{S_CBA}, s84
        s_sub_u32 s86, s{S_CBB}, s84
        s_add_u32 s85, s85, {BIAS_LDS}
        s_add_u32 s86, s86, {BIAS_LDS}
        v_add_u32 v{t}, s85, v{V_BI}
        v_add_u32 v{t+1}, s86, v{V_BI}
        v_add_u32 v{t+2}, {BIAS_LDS+1024}, v{V_BI}
        """)
        stamp(e, 6, True) if opt("pstamp") else None
        e.wait_vm('BI')
        stamp(e, 7, True) if opt("pstamp") else None
        for ft in range(8): e.ds(f"ds_read_b64 v[{ACC_B+4*ft+2}:{ACC_B+4*ft+3}], v{t} offset:{32*ft}", 'BR')
        for ft in range(10): e.ds(f"ds_read_b64 v[{BIASB+4*ft+2}:{BIASB+4*ft+3}], v{t+1} offset:{32*ft}", 'BR')
        for nt in range(9): e.ds(f"ds_read_b64 a[{AB2+2*nt}:{AB2+2*nt+1}], v{t+2} offset:{32*nt}", 'BR')
        e.raw(f"s_mov_b32 s{S_DBG}, s100\ns_mov_b32 s{S_DBG+1}, s101\ns_mov_b32 s{S_DBG+2}, 256")
        e.wait_lg_all()
        for x in self.bias_cvt(8, ACC_B) + self.bias_cvt(10, BIASB): e.raw(x)
        emit_items(self.x_items(1) + self.w_items(1))
        stamp(e, 1, bool(opt("pstamp")))
        e.wait_vm([('W', 0), ('X', 0)])
        e.raw("s_barrier")
        stamp(e, 2, bool(opt("pstamp")))
        self.pro_rest = [self.x_items(2), self.w_items(2),
                         [(f"buffer_load_dword v{V_P}, v{V_NP}, s[{S_WS}:{S_WS+3}], 0 offen sc1", 'm', 'EP')], self.w_items(3), self.w_items(4)]
        for (tx, tag) in self.frag_reads(0): e.ds(tx, tag)
        for (tx, tag) in self.x_reads(0): e.ds(tx, tag)
    @staticmethod
    def _glued(prev):
        return prev.startswith("s_cmp") or prev.startswith("v_cmp") or prev.startswith("s_nop")

    def build(self):
        e = self.e
        self.prologue()
        if opt("noAst"): e.raw(f"v_mov_b32 v255, {OOB}")
        e.prio_streams = {'dma', 'hld', 'stB'}
        e.force_prio = True
        e.strict = opt('strict', '1') == '1'
        e.ta_slack = float(opt('ta_slack', 1.0))
        if e.strict: e.prio_streams = {'dma', 'hld', 'stA', 'stB', 'poll', 'flag'}
        e.min_sp = iopt('min_sp', 3)
        self.pf_gap = None
        NBq = iopt("nb", 4)
        def need(C): return min(GOS[2 * C - 1] - 1, GOS[72 - NBq - 1] - 1)
        CX = CA = float(opt("spA", 3.0)); CB_ = float(opt("spB", 4.5)); C2 = float(opt("sp2", 3.5))
        def wcost(C): return CA if C < 9 else (CB_ if C < 18 else C2)
        pr = self.pro_rest
        self.push_dma(pr[0], 0, need(2), CX); self.push_dma(pr[1], 0, need(2), CA)
        self.push_dma(pr[2], 0, GOS[3], 1.0)
        self.push_dma(pr[3], 0, need(3), CA); self.push_dma(pr[4], 0, need(4), CA)
        nextW = 5
        LOOK = iopt("look", 8)
        MERGE = True
        NB = iopt("nb", 4); B0 = 72 - NB
        self.NB, self.B0 = NB, B0
        for si, (kind, k) in enumerate(STEPS):
            if si == B0: break
            nf = nfrag(kind); ngap = 2 * nf
            C, ks = si // 2, si % 2
            g0 = e.gap
            assert g0 == GOS[si]
            cur = AW + 40 * (si % 2)
            if (kind, k) == ('B', 0): stamp(e, 3)
            if (kind, k) == ('P', 0): stamp(e, 4)
            if (kind, k) == ('P', 9): stamp(e, 5)
            have_next = si + 1 < len(STEPS)
            reads = []
            if si == B0 - 1:
                reads = [self.frag_read(B0 + j, f, h, self.blk_buf(f) + 4 * j) for f in range(2) for j in range(NB) for h in range(2)]
            elif have_next:
                reads = self.frag_reads(si + 1)
                nkind, nk = STEPS[si + 1]
                if nkind == 'A':
                    xr = self.x_reads(nk)
                    reads = reads[:2] + xr[:1] + reads[2:4] + xr[1:] + reads[4:]
            per = [[] for _ in range(ngap)]
            nr = len(reads)
            for i_, r in enumerate(reads):
                per[(i_ * ngap) // nr if nr > ngap else i_].append(r)
            if si == B0 - 2: self.push_tail_setup(g0)
            pre0 = []
            if opt("stepstamp"):
                a_, b_ = [int(v) for v in opt("stepstamp").split("_")]
                if a_ <= si <= b_:
                    pre0 = [f"v_writelane_b32 v63, s90, {si - a_}", "s_memtime s[90:91]"]
            if have_next and ks == 1:
                nC = C + 1
                pre0 = ["s_barrier"] + pre0
                if opt("chunkstamp") and not opt("stepstamp"):
                    pre0 = pre0 + [f"v_writelane_b32 v63, s90, {nC-1}", "s_memtime s[90:91]"]
                if nC - 2 >= 0: self.free.append(self.wslot[nC - 2])
                if kind == 'A' and C + 3 < 9:
                    self.push_dma(self.x_items(C + 3), g0 + 1, need(C + 3), CX)
                if kind == 'A' and C >= 6:
                    self.free.append(5 + C % 3)
                nissue = 0
                while self.free and nextW < 36 and nextW <= nC + LOOK:
                    if kind == 'A' and nextW >= 9 and nissue >= iopt("wA", 2): break
                    nissue += 1
                    cand = [s_ for s_ in self.free if (nextW >= 9 or s_ < 5)]
                    if not cand: break
                    early = g0 + 1
                    if nextW >= 18 + iopt("w2_in_window", 0):
                        if self.pf_gap is None: break
                        early = max(early, self.pf_gap + iopt("pf_window", 140))
                    sl = cand[0]; self.free.remove(sl)
                    self.wslot[nextW] = sl
                    nd = need(nextW)
                    if 9 <= nextW < 18 + iopt("w2_in_window", 0):
                        asap = max(g0 + iopt("dmin", 40) + int(6 * wcost(nextW)), getattr(self, "last_asap", 0) + int(6 * wcost(nextW)))
                        nd = min(nd, asap); self.last_asap = nd
                    cost = wcost(nextW)
                    lin0 = iopt("lin0", 25)
                    if nextW >= lin0:
                        lper = iopt("linper", 49)
                        early = max(early, GOS[36] + (nextW - lin0) * lper)
                        pass
                        nd = min(nd, early + lper + iopt("dmin", 40))
                    self.push_dma(self.w_items(nextW), early, max(nd, early + iopt("dmin", 40) + 30), cost)
                    nextW += 1
                    if nextW == 18: self.push_pf2(g0 + 1)
                self.after_barrier_hooks(si, g0)
            self.step_hooks(si, kind, k, g0, ngap)
            def waits_for(sj, gi):
                kj, kk = STEPS[sj]; nfj = nfrag(kj)
                w = []
                f, t = gi // 2, gi % 2
                G = 4 if kj == 'A' else 5
                if t == 0 and f % G == 0:
                    tags = [('WF', sj, min(f + G - 1, nfj - 1))]
                    if f == 0 and kj == 'A': tags.append(('XF', kk))
                    w.append(('lg', tags))
                if gi == 0 and kj == 'P' and SEQ2[kk][0] != 0:
                    w.append(('vm', [('H', kk)]))
                return w
            for f in range(nf):
                for t in range(2):
                    gi = 2 * f + t
                    A = f"a[{cur+4*f}:{cur+4*f+3}]"
                    if kind in 'AB':
                        B = f"a[{AX+8*k+4*t}:{AX+8*k+4*t+3}]"
                        acc = (ACC_A if kind == 'A' else ACC_B) + 8 * f + 4 * t
                        D = f"v[{acc}:{acc+3}]"
                        if k == 0:
                            bq = (ACC_B if kind == 'A' else BIASB) + 4 * f
                            Cc = f"v[{bq}:{bq+3}]"
                        else: Cc = D
                    else:
                        d, i = SEQ2[k]
                        if d == 0:
                            hb = (ACC_A + 16 * i if i < 4 else ACC_B + 16 * (i - 4)) + 4 * t
                            B = f"v[{hb}:{hb+3}]"
                        else:
                            hb = AH + 8 * RING[k] + 4 * t
                            B = f"a[{hb}:{hb+3}]"
                        acc = acc2(f, t)
                        D = f"v[{acc}:{acc+3}]"
                        Cc = "0" if k == 0 else D
                    if si == 0 and gi == 0:
                        e.wait_lg([('WF', 0, 3), ('XF', 0)])
                    post = []
                    if gi + 1 < ngap: post += waits_for(si, gi + 1)
                    elif have_next:
                        if si == B0 - 1:
                            post.append(('lg', [('FB', B0 + NB - 1, 0)]))
                            post.append(('vm', [('H', 35)]))
                        else:
                            post += waits_for(si + 1, 0)
                        if ks == 0 and si + 2 < len(STEPS):
                            nC = C + 1
                            tags = [('W', nC)]
                            if si + 1 == B0 - 1: tags += [('W', c_) for c_ in range(nC, 36)]
                            if kind == 'A' and nC < 9: tags.append(('X', nC))
                            tags += self.extra_barrier_tags(si + 1)
                            post.append(('vm', tags))
                    e.mfma_gap(f"v_mfma_f32_16x16x32_bf16 {D}, {A}, {B}, {Cc}", pre=pre0 if gi == 0 else (), dss=per[gi], post=post)
        if MERGE:
            import copy
            assert e.pending() == 0 or all(nm not in ('dma', 'hld') or not q for nm, q in e.streams.items())
            e.flush_streams()
            e.raw(f"s_cmp_eq_u32 s{S_W}, s{S_KQ}\ns_cbranch_scc1 L_owner")
            eo = Emitter()
            eo.vm, eo.vm_gap, eo.vm_done = list(e.vm), list(e.vm_gap), e.vm_done
            eo.lg, eo.lg_done = list(e.lg), e.lg_done
            eo.gap = e.gap
            eo.raw("L_owner:")
            self.final_block(eo, False)
            self.tail_owner(eo)
            self.slow.append(eo.text())
            self.final_block(e, True)
            if opt("chunkstamp"):
                e.raw("s_waitcnt lgkmcnt(0)\nv_writelane_b32 v63, s90, 35\ns_memtime s[90:91]\ns_waitcnt lgkmcnt(0)\nv_writelane_b32 v63, s90, 36")
            stamp(e, 6)
            self.tail_sender()
        else:
            raise SystemExit("only the merged tail is generated")
        e.raw("L_end:\ns_endpgm")
        for s_ in self.slow: e.raw(s_)
        e.raw("L_code_end:")
        print(e.stats, "slots:", self.wslot, file=sys.stderr)
        if opt("vmlog"):
            for (g, tags, n, newly) in e.log:
                y = newly[-1] if newly else None
                summary = {}
                for (t, gg) in newly: summary.setdefault(str(t), []).append(gg)
                print(f"gap {g:5d} wait {tags} vmcnt({n}) youngest {y} dist {g - y[1] if y else 0}  covers " + ", ".join(f"{k}@{v[0]}-{v[-1]}" for k, v in summary.items()), file=sys.stderr)
        return e.text()

    PUB = tuple(x[1] for x in PARTS)
    def extra_barrier_tags(self, si):
        return [('HS', p) for p in range(len(PARTS)) if self.PUB[p] == si]
    def after_barrier_hooks(self, si, g0):
        e = self.e
        if si in self.PUB:
            part = self.PUB.index(si)
            e.push('flag', f"buffer_store_dword v{V_NP}, v{V_FS}, s[{S_WS}:{S_WS+3}], 0 offen offset:{4*part} sc1", 'm', ('FS', part), early=g0 + 2, late=g0 + 2)

    def push_pf2(self, g):
        e = self.e; t = V_T
        for n_, tx in enumerate([f"s_and_b32 s100, s{S_M}, 7", f"s_lshl_b32 s100, s100, 2", f"s_add_u32 s100, s100, s{S_J}", f"s_mul_i32 s100, s100, {36*1152}",
                   f"s_mul_i32 s101, s{S_KQ}, {1152*1152}", f"s_add_u32 s100, s100, s101", f"s_mul_i32 s101, s{S_W}, {81*128}", f"s_add_u32 s100, s100, s101",
                   f"v_lshlrev_b32 v{t}, 7, v1", f"v_mov_b32 v{t+2}, {OOB}", f"v_add_u32 v{t+1}, {64*128}, v{t}",
                   f"v_cmp_gt_u32 vcc, 17, v1\n    s_nop 1\n    v_cndmask_b32 v{t+1}, v{t+2}, v{t+1}, vcc"]):
            e.push('pf', tx, 's', early=g, late=g + 2 + n_)
        burst0 = max(g, GOS[18 + iopt("pf_at", 5)], GOS[18 + iopt("epiA1_late", 6)] + 14)
        slack = max(0, (e.streams['dma'][-1].late if e.streams['dma'] else g) - burst0) + 2
        def rec():
            self.pf_gap = e.gap
            return f"buffer_load_dword v255, v{t}, s[{S_W2}:{S_W2+3}], s100 offen"
        e.push('dma', rec, 'm', 'PF', early=burst0, late=burst0 + slack + 2, cost=10)
        e.push('dma', f"buffer_load_dword v255, v{t+1}, s[{S_W2}:{S_W2+3}], s100 offen", 'm', 'PF', early=burst0, late=burst0 + slack + 8, cost=5)

    def step_hooks(self, si, kind, k, g0, ngap):
        e = self.e
        if (kind, k) == ('A', iopt("ep_at", 4)):
            e.push('nonce', lambda: e.vm_wait_text('EP'), 'w', early=g0, late=g0 + 2)
            for t in [f"v_add_u32 v{V_P}, 1, v{V_P}", f"v_or_b32 v{V_P}, 0x80000000, v{V_P}"]:
                e.push('nonce', t, 'v', early=g0, late=g0 + 4)
            e.push('nonce', f"buffer_store_dword v{V_P}, v{V_NP}, s[{S_WS}:{S_WS+3}], 0 offen sc1", 'm', 'EPW', early=g0, late=g0 + 6)
            e.push('nonce', f"v_subrev_u32 v{V_NP}, {EP_OFF}, v{V_NP}", 'v', early=g0, late=g0 + 8)
            e.push('nonce', f"buffer_store_dword v{V_P}, v{V_NP}, s[{S_DBG}:{S_DBG+3}], 0 offen sc1", 'm', 'NW', early=g0, late=g0 + 10)
        NR = iopt("nr_at", 12); NC = iopt("nc_at", 16)
        ldn = f"buffer_load_dword v{V_P}, v{V_NP}, s[{S_DBG}:{S_DBG+3}], 0 offen sc1"
        if (kind, k) == ('A', NR):
            e.push('nonce', f"v_mov_b32 v{V_NP}, 0", 'v', early=g0, late=g0 + 2)
            e.push('nonce', ldn, 'm', 'NR', early=g0 + 1, late=g0 + 4)
        if (kind, k) == ('A', NC):
            e.push('nonce', lambda: e.vm_wait_text('NR'), 'w', early=g0, late=g0 + 2)
            e.push('nonce', self.poll_check(ldn, f"v_cmp_eq_u32 vcc, 0, v{V_P}", "nonce"), 's', early=g0, late=g0 + 5)
            e.push('nonce', f"v_readfirstlane_b32 s{S_N}, v{V_P}\n    s_nop 3", 'v', early=g0, late=g0 + 8)
            e.push('nonce', f"v_mov_b32 v{V_NP}, s{S_N}", 'v', early=g0, late=g0 + 10)
        if (kind, k) == ('B', iopt("p2_at", 6)) and self.setup_p2:
            end = GOS[18 + iopt("p2_end", 13)]
            for n, x in enumerate(self.setup_p2):
                e.push('setup', x, 's', early=g0, late=g0 + ((n + 1) * (end - g0)) // len(self.setup_p2))
        SPS = float(opt('spS', 3.5))
        if (kind, k) == ('B', 0):
            st = g0 + 8
            e1 = GOS[18 + iopt("epiA1_late", 6)] + 8; e2 = GOS[18 + iopt("epiA2_late", 11)]
            self.storesA2 = []
            nA1 = iopt("nA1", 4)
            for (frs, a, b) in ((tuple(range(nA1)), st, e1), (tuple(range(nA1, 4)), e1, e2)):
                its = [x for i in frs for t in range(2) for x in self.epi_items(ACC_A, i, i, t)]
                nv = sum(1 for x in its if x[1] == 'v'); n = 0; late = a
                for (tx, kk, tag) in its:
                    if kk == 'v':
                        n += 1; late = a + (n * (b - a)) // nv
                        e.push('epi', tx, kk, tag, early=st, late=late)
                    elif frs[0] == 0:
                        e.push('stA', tx, kk, tag, early=late + 1, late=late + 4, cost=SPS if kk == 'm' else 0)
                    else:
                        self.storesA2.append((tx, kk, tag, late))
        if getattr(self, "storesA2", None) and kind == 'B' and self.pf_gap is not None and k >= iopt("epiA2_late", 11) - 1:
            early = self.pf_gap + iopt("pf_window", 140); sp = iopt("stA2_sp", 10)
            for (tx, kk, tag, late) in self.storesA2:
                early = max(early, late + 1)
                e.push('stA', tx, kk, tag, early=early, late=early + 3, cost=SPS if kk == 'm' else 0)
                if kk == 'm': early += sp
            self.storesA2 = []
        if (kind, k) == ('P', 0):
            prev = g0 + 2
            for (frs, vend, burst) in ((B1F, iopt("vB1", 80), iopt("bB1", 84)), (B2F, iopt("vB2", 150), iopt("bB2", 230))):
                its = [(i, x) for i in frs for t in range(2) for x in self.epi_items(ACC_B, i - 4, i, t)]
                end = g0 + vend
                nv = sum(1 for (_, x) in its if x[1] == 'v'); n = 0; early = g0 + burst
                for (i, (tx, kk, tag)) in its:
                    if kk == 'v':
                        n += 1
                        late = min(prev + (n * (end - prev)) // nv, GOS[36 + OWNB[i]] - 4)
                        e.push('epi', tx, kk, tag, early=g0 + 2, late=late)
                    else:
                        e.push('stB', tx, kk, tag, early=early if kk == 'm' else early - 2, late=early - 30, cost=float(opt("spSB", 4.0)) if kk == 'm' else 0)
                prev = end
        if kind == 'P' or (kind == 'B' and k >= 14):
            LA = iopt("LA", 4)
            q = k if kind == 'P' else k - 18
            c0, c1, c2 = PARTS[0][3], PARTS[1][3], PARTS[2][3]
            ea = iopt("earlyA", 1)
            q2 = 21 + 3 * len(B1F)
            FIRST = {9: c0, 10: c0, 11: c0 + ea, 12: c0 + ea}
            for n_ in range(len(B1F)): FIRST[21 + n_] = c1 + n_ // 2
            for n_ in range(len(B2F)): FIRST[q2 + n_] = c2 + n_ // 2 + (1 if (len(B2F) == 2 and n_ == 1) else 0)
            if iopt("early6", 0): FIRST.update({13: c0 + 1, 14: c0 + 1})
            if self.NB == 4: FIRST.update({32: 27, 33: 28, 34: 28, 35: 29})
            def issue_at(qn):
                if qn in FIRST: return FIRST[qn]
                return max(qn - LA, PARTS[part_of(SEQ2[qn][1])][3], qn - HD + 1)
            for part, (_, _, pol, chk) in enumerate(PARTS):
                ld = f"buffer_load_dword v{V_P}, v{V_FL}, s[{S_WS}:{S_WS+3}], 0 offen offset:{4*part} sc1"
                if q == pol:
                    e.push('poll', ld, 'm', ('FP', part), early=g0 + 1, late=g0 + 2, cost=1)
                if q == chk:
                    e.push('poll', (lambda part=part: e.vm_wait_text(('FP', part))), 'w', early=g0, late=g0)
                    if not opt("x_nochk"): e.push('poll', self.poll_check(ld, f"v_cmp_ne_u32 vcc, s{S_N}, v{V_P}", f"flag{part}"), 's', early=g0, late=g0 + 1)
            assert LA < HD
            for qn in PEERS:
                if issue_at(qn) != q: continue
                d, i = SEQ2[qn]
                SH = S_HSO if opt("x_hhot") else S_T
                FLH = "" if (opt("x_hhot") or opt("hplain")) else " sc1"
                dst = AH + 8 * RING[qn]
                nd = min(GOS[36 + qn] - 1 - iopt("dminH", 36), g0 + ngap + 2)
                e.push('hld', f"s_add_u32 s{S_T}, s{S_HB+d}, {i*8192}", 's', early=g0 + 3, late=max(g0 + 4, nd - 6))
                for t in range(2):
                    e.push('hld', f"buffer_load_dwordx4 a[{dst+4*t}:{dst+4*t+3}], v{V_HS}, s[{S_WS}:{S_WS+3}], s{SH} offen offset:{t*1024}" + FLH, 'm', ('H', qn), early=g0 + 4, late=max(g0 + 5 + t, nd - 5 + 5 * t), cost=float(opt('spH', 3.0)))

    NG = 12
    BOX = 12 * 1024
    @staticmethod
    def val(v): return acc2((v // 4) // 2, (v // 4) % 2) + v % 4
    QUADS = [V_TA + 4 * i for i in range(4)]

    def push_tail_setup(self, g0):
        e = self.e; t = V_T
        items = lines(f"""
        s_lshl_b32 s84, s{S_M}, 2
        s_add_u32 s84, s84, s{S_J}
        s_lshl_b32 s84, s84, 2
        v_lshlrev_b32 v{t}, 4, v1
        s_add_u32 s85, s84, s{S_W}
        s_lshl_b32 s85, s85, 2
        s_add_u32 s85, s85, s{S_KQ}
        s_mul_i32 s85, s85, {self.BOX}
        s_add_u32 s85, s85, {P_OFF}
        s_add_u32 s86, s85, 4096
        s_add_u32 s87, s85, 8192""") + [f"v_mov_b32 v{q+3}, s{S_N}" for q in self.QUADS]
        for n, x in enumerate(items):
            e.push('misc', x, 's', early=g0 + 1, late=g0 + 4 + 2 * n)

    def granule_items(self, g):
        t = V_T; q = self.QUADS[g % 4]
        it = [(f"v_cvt_pk_bf16_f32 v{q+w_}, v{self.val(6*g+2*w_)}, v{self.val(6*g+2*w_+1)}", 'v') for w_ in range(3)]
        it.append((f"buffer_store_dwordx4 v[{q}:{q+3}], v{t}, s[{S_WS}:{S_WS+3}], s{85 + g // 4} offen offset:{(g%4)*1024} sc1", 'm'))
        return it

    def blk_buf(self, nt):
        return AW + (0, 16, 40, 56)[nt % 4] if self.NB == 4 else AW + (0, 8, 40, 48)[nt % 4]
    def final_block(self, e, sender):
        NB, B0 = self.NB, self.B0
        g0 = e.gap
        e.streams = {}; e.prio_streams = set(); e.strict = False; e.force_prio = False
        self.sent = set()
        G = 2 * NB
        if sender:
            for g in range(self.NG):
                k1 = (6 * g + 5) // 4
                start = G * (k1 // 2) + G - 2 + (k1 % 2) + (5 if k1 // 2 <= 5 else 8)
                if start > 9 * G - 2: continue
                self.sent.add(g)
                for n, (tx, kk) in enumerate(self.granule_items(g)):
                    e.push('snd', tx, kk, ('PS', g), early=g0 + start, late=g0 + start + 2 + n)
        for nt in range(9):
            rd = [self.frag_read(B0 + j, nt + 2, h, self.blk_buf(nt + 2) + 4 * j) for j in range(NB) for h in range(2)] if nt + 2 < 9 else []
            for sub in range(G):
                j, tt = sub // 2, sub % 2
                q = 36 - NB + j
                A = self.blk_buf(nt) + 4 * j
                hb = AH + 8 * RING[q] + 4 * tt
                acc = acc2(nt, tt)
                dss = [rd[sub]] if rd else []
                post = []
                if sub == G - 1 and nt + 1 < 9: post.append(('lg', [('FB', B0 + NB - 1, nt + 1)]))
                e.mfma_gap(f"v_mfma_f32_16x16x32_bf16 v[{acc}:{acc+3}], a[{A}:{A+3}], a[{hb}:{hb+3}], v[{acc}:{acc+3}]", dss=dss, post=post)
        if e.pending(): e.raw("s_nop 7")
        e.flush_streams()

    def tail_owner(self, e):
        t = V_T
        V_PA = t + 6
        OWN_LDS = self.wslot[32] * SLOT
        e.raw(f"v_add_u32 v{V_PA}, {OWN_LDS}, v{t}")
        for nt in range(9):
            e.raw(f"""
            v_accvgpr_read_b32 v{t+7}, a{AB2+2*nt}
            v_accvgpr_read_b32 v{t+8}, a{AB2+2*nt+1}
            v_lshlrev_b32 v{V_FL}, 16, v{t+7}
            v_and_b32 v{t+7}, 0xffff0000, v{t+7}
            v_lshlrev_b32 v{V_FS}, 16, v{t+8}
            v_and_b32 v{t+8}, 0xffff0000, v{t+8}""")
            if nt == 8: e.raw("s_nop 3")
            for tt in range(2):
                r = acc2(nt, tt)
                e.raw(f"v_add_f32 v{r}, v{r}, v{V_FL}\nv_add_f32 v{r+1}, v{r+1}, v{t+7}\nv_add_f32 v{r+2}, v{r+2}, v{V_FS}\nv_add_f32 v{r+3}, v{r+3}, v{t+8}")
                e.raw(f"ds_write_b128 v{V_PA}, v[{r}:{r+3}] offset:{(2*nt+tt)*1024}")
        MB = OWN_LDS + 18 * 1024
        BOX = self.BOX
        e.raw(f"""
        v_mov_b32 v{t+7}, {MB}
        v_mov_b32 v{t+8}, 0
        ds_write_b32 v{t+7}, v{t+8}
        s_waitcnt lgkmcnt(0)
        s_barrier""")
        if opt("ownpoll", "0") != "1":
            e.raw("s_branch L_end"); return
        e.raw(f"s_add_u32 s85, s84, s{S_KQ}\ns_lshl_b32 s85, s85, 2")
        for d in range(1, 4):
            e.raw(f"""
            s_add_u32 s86, s{S_KQ}, {d}
            s_and_b32 s86, s86, 3
            s_add_u32 s86, s86, s85
            s_mul_i32 s86, s86, {BOX}
            s_add_u32 s{S_TW+d}, s86, {P_OFF}""")
        e.raw(f"""
        v_mul_u32_u24 v{V_PA}, 43, v1
        v_lshrrev_b32 v{V_PA}, 7, v{V_PA}
        v_mul_u32_u24 v{V_FL}, 3, v{V_PA}
        v_sub_u32 v{V_FL}, v1, v{V_FL}
        v_mul_u32_u24 v{V_PA}, 4096, v{V_PA}
        v_add_u32 v{V_PA}, {3*1024+1020}, v{V_PA}
        v_mov_b32 v{t+8}, s{S_TW+1}
        v_mov_b32 v{V_FS}, s{S_TW+2}
        v_cmp_eq_u32 vcc, 1, v{V_FL}
        s_nop 1
        v_cndmask_b32 v{t+8}, v{t+8}, v{V_FS}, vcc
        v_mov_b32 v{V_FS}, s{S_TW+3}
        v_cmp_eq_u32 vcc, 2, v{V_FL}
        s_nop 1
        v_cndmask_b32 v{t+8}, v{t+8}, v{V_FS}, vcc
        v_add_u32 v{V_PA}, v{V_PA}, v{t+8}
        v_mov_b32 v{V_FS}, {OOB}
        v_cmp_gt_u32 vcc, 9, v1
        s_and_b32 s89, s{S_N}, 0xfffffff8
        s_mov_b32 s91, {SPIN_LIMIT}
        v_cndmask_b32 v{V_PA}, v{V_FS}, v{V_PA}, vcc
        L_own_poll:
        buffer_load_dword v{V_P}, v{V_PA}, s[{S_WS}:{S_WS+3}], 0 offen sc1
        s_waitcnt vmcnt(0)
        v_cmp_eq_u32 vcc, s{S_N}, v{V_P}
        s_nop 3
        s_mov_b32 s87, vcc_lo
        s_mov_b32 s88, s89
        s_and_b32 s85, s87, 7
        s_cmp_eq_u32 s85, 7
        s_cselect_b32 s85, 1, 0
        s_or_b32 s88, s88, s85
        s_and_b32 s85, s87, 56
        s_cmp_eq_u32 s85, 56
        s_cselect_b32 s85, 2, 0
        s_or_b32 s88, s88, s85
        s_and_b32 s85, s87, 448
        s_cmp_eq_u32 s85, 448
        s_cselect_b32 s85, 4, 0
        s_or_b32 s88, s88, s85
        s_sub_u32 s91, s91, 1
        s_cmp_le_i32 s91, 0
        s_cselect_b32 s85, 7, 0
        s_or_b32 s88, s88, s85
        v_mov_b32 v{t+8}, s88
        ds_write_b32 v{t+7}, v{t+8}
        s_and_b32 s85, s88, 7
        s_cmp_eq_u32 s85, 7
        s_cbranch_scc0 L_own_poll
        s_branch L_end""")

    def tail_sender(self):
        e = self.e
        t = V_T
        NG, BOX = self.NG, self.BOX
        V_BAD, V_PA, V_O = t + 5, t + 6, t + 1
        OWN_LDS = self.wslot[32] * SLOT
        e.raw("s_nop 7")
        for g in range(NG):
            if g in self.sent: continue
            for (tx, kk) in self.granule_items(g): e.raw(tx)
        e.raw(f"""
        s_sub_u32 s88, s{S_W}, s{S_KQ}
        s_sub_u32 s88, s88, 1
        s_and_b32 s88, s88, 3
        s_add_u32 s85, s84, s{S_KQ}
        s_lshl_b32 s85, s85, 2
        s_lshl_b32 s87, s88, 12
        s_add_u32 s87, s87, {P_OFF}
        """)
        for d in range(1, 4):
            e.raw(f"""
            s_add_u32 s86, s{S_KQ}, {d}
            s_and_b32 s86, s86, 3
            s_add_u32 s86, s86, s85
            s_mul_i32 s86, s86, {BOX}
            s_add_u32 s{S_TW+d}, s86, s87""")
        e.raw(f"""
        v_min_u32 v{t+7}, 2, v1
        v_mov_b32 v{t+8}, s{S_TW+1}
        v_mov_b32 v{V_BAD}, s{S_TW+2}
        v_cmp_eq_u32 vcc, 1, v{t+7}
        s_mul_i32 s87, s88, 6144
        s_add_u32 s87, s87, {OWN_LDS}
        v_cndmask_b32 v{t+8}, v{t+8}, v{V_BAD}, vcc
        v_mov_b32 v{V_BAD}, s{S_TW+3}
        v_cmp_eq_u32 vcc, 2, v{t+7}
        s_lshl_b32 s86, s{S_M}, 7
        s_lshl_b32 s85, s{S_KQ}, 5
        v_cndmask_b32 v{t+8}, v{t+8}, v{V_BAD}, vcc
        v_add_u32 v{V_PA}, {3*1024+1020}, v{t+8}
        s_add_u32 s86, s86, s85
        s_mul_i32 s86, s86, 1152
        s_mul_i32 s85, s{S_J}, 288
        s_add_u32 s86, s86, s85
        s_mul_i32 s85, s88, 96
        s_add_u32 s86, s86, s85
        v_and_b32 v{V_O}, 15, v1
        v_mul_u32_u24 v{V_O}, 1152, v{V_O}
        v_add_u32 v{V_O}, v{V_O}, v{V_BI}
        v_add_u32 v{V_O+1}, {16*1152}, v{V_O}
        v_add_u32 v{V_FL}, s87, v{t}
        s_mov_b32 s89, 0xffff0000
        """)
        POLL = f"buffer_load_dword v{V_P}, v{V_PA}, s[{S_WS}:{S_WS+3}], 0 offen sc1"
        OPT_ = opt("optim", "0") == "1"
        OWNP = opt("ownpoll", "0") == "1"
        PA_ = opt("pollafter", "0")
        if not OPT_ and not OWNP and PA_ == "0": e.raw(POLL)
        e.raw("s_barrier")
        if PA_ == "1": e.raw(POLL)
        OWN = [ACC_B + 4 * i for i in range(6)]
        zones = [ACC_B + 24 + 4 * i for i in range(12)]
        for kl in range(6): e.raw(f"ds_read_b128 v[{OWN[kl]}:{OWN[kl]+3}], v{V_FL} offset:{kl*1024}")
        zone = lambda g, d: zones[3 * g + d]
        S = [36, 37, 38, 39]; U = [40, 41, 42]; X = [43, 44]
        if PA_ == "2": e.raw("s_waitcnt lgkmcnt(0)\n" + POLL)
        if PA_ == "3": e.raw("s_waitcnt vmcnt(4)\n" + POLL)
        e.raw(f"s_mov_b32 s91, {SPIN_LIMIT}\ns_mov_b32 s3, 64")
        if OWNP:
            MB = OWN_LDS + 18 * 1024
            e.raw(f"""
            s_and_b32 s85, s{S_N}, 0xfffffff8
            s_lshl_b32 s87, 1, s88
            s_or_b32 s85, s85, s87
            s_or_b32 s87, s87, 0xfffffff8
            v_mov_b32 v{t+7}, {MB}
            L_mb:
            ds_read_b32 v{t+8}, v{t+7}
            s_waitcnt lgkmcnt(0)
            v_readfirstlane_b32 s90, v{t+8}
            s_sub_u32 s91, s91, 1
            s_cmp_le_i32 s91, 0
            s_cbranch_scc1 L_tw_go
            s_and_b32 s90, s90, s87
            s_cmp_eq_u32 s90, s85
            s_cbranch_scc0 L_mb
            s_branch L_tw_go""")
        elif OPT_:
            e.raw("s_waitcnt vmcnt(0)\ns_branch L_tw_go")
        e.raw(f"L_redo:\ns_mov_b32 s91, {SPIN_LIMIT}")
        e.raw(f"""
        L_tw_chk:
        s_waitcnt vmcnt(0)
        v_cmp_ne_u32 vcc, s{S_N}, v{V_P}
        s_nop 3
        s_cmp_eq_u64 vcc, 0
        s_cbranch_scc1 L_tw_go
        s_sub_u32 s91, s91, 1
        s_cmp_le_i32 s91, 0
        s_cbranch_scc1 L_tw_go
        {POLL}
        s_branch L_tw_chk
        L_tw_go:""")
        stamp(e, 7) if opt("stamp7", "poll") == "poll" and not opt("pstamp") else None
        e.raw(f"v_mov_b32 v{V_BAD}, 0")
        vm = []
        for g in range(4):
            for d in range(3):
                r = zone(g, d)
                e.raw(f"buffer_load_dwordx4 v[{r}:{r+3}], v{t}, s[{S_WS}:{S_WS+3}], s{S_TW+1+d} offen offset:{g*1024} sc1")
                vm.append(('L', g))
        e.raw("s_waitcnt lgkmcnt(0)")
        done_g = set()
        def need_granule(g):
            if g in done_g: return
            done_g.add(g)
            last = max(i for i, v in enumerate(vm) if v == ('L', g))
            e.raw(f"s_waitcnt vmcnt({min(len(vm) - 1 - last, 63)})")
            z = [zone(g, d) + 3 for d in range(3)]
            e.raw(f"""
            v_xor_b32 v{X[0]}, s{S_N}, v{z[0]}
            v_xor_b32 v{X[1]}, s{S_N}, v{z[1]}
            v_or3_b32 v{V_BAD}, v{X[0]}, v{X[1]}, v{V_BAD}
            v_xor_b32 v{X[0]}, s{S_N}, v{z[2]}
            v_or_b32 v{V_BAD}, v{X[0]}, v{V_BAD}""")
        if opt("earlychk", "0") == "1":
            for g in range(4): need_granule(g)
            e.raw(f"""
            v_cmp_ne_u32 vcc, 0, v{V_BAD}
            s_nop 3
            s_cmp_eq_u64 vcc, 0
            s_cbranch_scc1 L_tags_ok
            s_sub_u32 s3, s3, 1
            s_cmp_eq_u32 s3, 0
            s_cbranch_scc1 L_tags_ok
            {POLL}
            s_branch L_redo
            L_tags_ok:""")
        for kl in range(6):
            ntl, tt = kl // 2, kl % 2
            for v in range(4 * kl, 4 * kl + 4): need_granule(v // 6)
            for x in range(4):
                v = 4 * kl + x; g, pos = v // 6, v % 6
                for d in range(3):
                    src = zone(g, d) + pos // 2
                    e.raw(f"v_lshlrev_b32 v{U[d]}, 16, v{src}" if pos % 2 == 0 else f"v_and_b32 v{U[d]}, s89, v{src}")
                e.raw(f"v_add_f32 v{S[x]}, v{OWN[kl]+x}, v{U[0]}\nv_add_f32 v{U[1]}, v{U[1]}, v{U[2]}\nv_add_f32 v{S[x]}, v{S[x]}, v{U[1]}")
            o = (46 if kl % 2 == 0 else 2)
            e.raw(f"v_cvt_pk_bf16_f32 v{o}, v{S[0]}, v{S[1]}\nv_cvt_pk_bf16_f32 v{o+1}, v{S[2]}, v{S[3]}")
            e.raw(f"buffer_store_dwordx2 v[{o}:{o+1}], v{V_O+tt}, s[{S_OUT}:{S_OUT+3}], s86 offen offset:{32*ntl}" + (" sc1" if opt("outsc1") else ""))
            vm.append(('S', kl))
        if opt("earlychk", "0") != "1":
            e.raw(f"""
            v_cmp_ne_u32 vcc, 0, v{V_BAD}
            s_nop 3
            s_cmp_eq_u64 vcc, 0
            s_cbranch_scc1 L_tdone
            s_sub_u32 s3, s3, 1
            s_cmp_eq_u32 s3, 0
            s_cbranch_scc1 L_tdone
            s_waitcnt vmcnt(0)
            {POLL}
            s_branch L_redo
            L_tdone:
            """)
        if STAMP:
            e.raw(f"s_sub_u32 s85, s{S_W}, s{S_KQ}\ns_and_b32 s85, s85, 3\ns_cmp_eq_u32 s85, 1\ns_cbranch_scc0 L_end")
            e.raw("s_waitcnt vmcnt(0)")
            if opt("stamp7") == "end" and not opt("pstamp"): stamp(e, 7)
            e.raw(f"""
            s_lshl_b32 s84, s2, 5
            s_add_u32 s84, s84, {STAMP_OFF}
            v_lshlrev_b32 v{t+1}, 2, v1
            v_mov_b32 v{t+2}, {OOB}
            v_cmp_gt_u32 vcc, 8, v1
            s_nop 1
            v_cndmask_b32 v{t+1}, v{t+2}, v{t+1}, vcc
            buffer_store_dword v{V_ST}, v{t+1}, s[{S_WS}:{S_WS+3}], s84 offen sc1""")
            if opt("chunkstamp") or opt("both"):
                e.raw(f"s_lshl_b32 s84, s2, 8\ns_add_u32 s84, s84, {STAMP_OFF + 65536}\nv_lshlrev_b32 v{t+1}, 2, v1\nbuffer_store_dword v63, v{t+1}, s[{S_WS}:{S_WS+3}], s84 offen sc1")
            e.raw("s_waitcnt vmcnt(0)")

def kd(name, vgpr, accum, sgpr=102):
    return f""".section .rodata,"a"
.p2align 6
.amdhsa_kernel {name}
  .amdhsa_next_free_vgpr {vgpr}
  .amdhsa_next_free_sgpr {sgpr}
  .amdhsa_accum_offset {accum}
  .amdhsa_group_segment_fixed_size 0
  .amdhsa_kernarg_size 64
  .amdhsa_user_sgpr_count 2
  .amdhsa_user_sgpr_kernarg_segment_ptr 1
  .amdhsa_system_sgpr_workgroup_id_x 1
.end_amdhsa_kernel
"""

def gen_amp(name, a, b, amp, wg):
    return f""".globl {name}
.p2align 8
.type {name},@function
{name}:
    s_cmp_ge_u32 s2, 1
    s_cbranch_scc1 L_{name}_end
    s_load_dwordx2 s[4:5], s[0:1], 56
    s_waitcnt lgkmcnt(0)
    s_mov_b32 s8, s4
    s_mov_b32 s9, s5
    s_mov_b32 s10, {WS_BYTES}
    s_mov_b32 s11, 0x20000
    v_mov_b32 v1, {STAMP_OFF + 32 * wg}
    buffer_load_dword v2, v1, s[8:11], 0 offen offset:{4*a} sc1
    buffer_load_dword v3, v1, s[8:11], 0 offen offset:{4*b} sc1
    s_waitcnt vmcnt(0)
    v_sub_u32 v2, v3, v2
    s_nop 1
    v_readfirstlane_b32 s12, v2
    s_nop 3
    s_min_u32 s12, s12, 20000
    s_mul_i32 s12, s12, {amp}
    s_memrealtime s[14:15]
    s_waitcnt lgkmcnt(0)
    s_mov_b32 s13, s14
L_{name}_spin:
    s_memrealtime s[14:15]
    s_waitcnt lgkmcnt(0)
    s_sub_u32 s16, s14, s13
    s_cmp_lt_u32 s16, s12
    s_cbranch_scc1 L_{name}_spin
L_{name}_end:
    s_endpgm
""" + kd(name, 8, 8, 32) + ".text\n"

def main(path):
    g = Gen()
    body = g.build()
    launch = f"; @launch grid=(256,1,1) block=(256,1,1) lds={LDS_BYTES}"
    if opt("amp"):
        launch = f"; @launch kernel={KNAME} grid=(256,1,1) block=(256,1,1) lds={LDS_BYTES}\n; @launch kernel=mlp_amp_kernel grid=(1,1,1) block=(64,1,1) lds=0"
    txt = f"""; Fused MLP:  out = relu(x @ w1 + b1)^2 @ w2 + b2      x[2048,576] w1[576,4608] w2[4608,576], all bf16
; Kernarg (64 bytes, pointers only): 0 x | 8 w1 | 16 b1 | 24 w2 | 32 b2 | 40 out | 48 d_debug | 56 d_ws
;
; One launch, 256 workgroups of 4 waves, one per CU (160 KB of LDS each, all co-resident).
; Workgroup = (128-row tile m, 288-column slice s = 4*kq + j of the hidden dimension).
;  phase 1  h^T = w1^T x^T for the tile, two passes over K (8 + 10 f-tiles); x fragments stay in AGPRs, w1 streams through an
;           LDS ring (LDS-DMA + ds_read_b64_tr_b16), bias = first C operand, relu^2 + bf16 rounding in the MFMA shadow.
;           h stays in registers and is published (write-through, fragment order) for the 3 other slices of the K quarter kq.
;  phase 2  out^T[144 columns j, 128 rows] over the K quarter (own slice from registers, 3 slices from d_ws), w2 through the ring.
;  tail     4-way split-K reduction: wave w sends its 32 rows to workgroup (m, kq = w, j) as 16-byte granules
;           (6 x bf16 + launch tag); the three sender waves then reduce this workgroup's own rows and write the output.
; Hand-offs are placement independent (sc1 stores, vmcnt, barrier, sc1 flag / tag; sc1 loads).  The launch tag N is derived from
; an epoch word in d_ws by workgroup 0 and published through d_debug[0]; it only tells this launch's words from older ones.
; Generated by the author's own scheduling script (gen14.py): every MFMA gap is filled by hand-set rules, waits are counted.
{launch}
.amdgcn_target "amdgcn-amd-amdhsa--gfx950"
.text
.globl {KNAME}
.p2align 8
.type {KNAME},@function
{KNAME}:
""" + body + kd(KNAME, 512, 256)
    if opt("amp"):
        a, b = [int(v) for v in opt("amp").split("_")]
        txt += ".text\n" + gen_amp("mlp_amp_kernel", a, b, iopt("ampx", 20), iopt("ampwg", 37))
    open(path, "w").write(txt)

if __name__ == "__main__":
    main(sys.argv[1] if len(sys.argv) > 1 else "f4.s")
```
